```python
import torch

def _softmax(x, axis=-1):
    return torch.softmax(x, dim=axis)
def _gelu(x):
    return torch.nn.functional.gelu(x, approximate="tanh")
def _silu(x):
    return torch.nn.functional.silu(x)
def _sigmoid(x):
    return torch.sigmoid(x)
def _layernorm(x, axis=-1, eps=1e-5):
    m = x.mean(dim=axis, keepdim=True)
    v = x.var(dim=axis, keepdim=True, unbiased=False)
    return (x - m) / torch.sqrt(v + eps)
def _scatter_add(tgt, idx, src, axis=0):
    return tgt.clone().index_add_(axis, idx, src)
def _segment_sum(src, seg, n):
    out = torch.zeros((n,) + src.shape[1:], dtype=src.dtype)
    return out.index_add_(0, seg, src)
def _pad(x, pw):
    flat = tuple(v for pair in reversed(pw) for v in pair)
    return torch.nn.functional.pad(x, flat)

kernel_name = 'concat_heads__mha_block_cached__gqa_block_cached__near_ridge'

def setup_inputs():

    _w = (lambda a: (lambda t: t.to(torch.bfloat16) if t.is_floating_point() else t)(torch.as_tensor(a)))
    def _A_setup():
        B, Sq, D = 32, 48, 448
        H, Sk, Dh = 16, 48, 256
        return {
            "x": _w((lambda *s: torch.randn(*s, dtype=torch.bfloat16) * 0.8)(B, Sq, D)),
            "k_cache": _w((lambda *s: torch.randn(*s, dtype=torch.bfloat16) * 0.8)(B, H, Sk, Dh)),
            "v_cache": _w((lambda *s: torch.randn(*s, dtype=torch.bfloat16) * 0.05)(B, H, Sk, Dh)),
            "wq": _w((lambda *s: torch.randn(*s, dtype=torch.bfloat16) * 0.8)(D, H * Dh) * (D ** -0.5)),
            "wo": _w((lambda *s: torch.randn(*s, dtype=torch.bfloat16) * 0.05)(H * Dh, D) * ((H * Dh) ** -0.5)),
        }
    _A_in = _A_setup()

    def _B_setup():
        B, Sq, D = 32, 48, 448
        Hq, Hkv, Sk, Dh = 16, 16, 48, 256
        assert Hq % Hkv == 0, (Hq, Hkv)
        return {
            "x": _w((lambda *s: torch.randn(*s, dtype=torch.bfloat16) * 0.8)(B, Sq, D)),
            "k_cache": _w((lambda *s: torch.randn(*s, dtype=torch.bfloat16) * 0.8)(B, Hkv, Sk, Dh)),
            "v_cache": _w((lambda *s: torch.randn(*s, dtype=torch.bfloat16) * 0.05)(B, Hkv, Sk, Dh)),
            "wq": _w((lambda *s: torch.randn(*s, dtype=torch.bfloat16) * 0.8)(D, Hq * Dh) * (D ** -0.5)),
            "wo": _w((lambda *s: torch.randn(*s, dtype=torch.bfloat16) * 0.05)(Hq * Dh, D) * ((Hq * Dh) ** -0.5)),
        }
    _B_in = _B_setup()

    return {
        "A_x": _A_in["x"],
        "A_k_cache": _A_in["k_cache"],
        "A_v_cache": _A_in["v_cache"],
        "A_wq": _A_in["wq"],
        "A_wo": _A_in["wo"],
        "B_x": _B_in["x"],
        "B_k_cache": _B_in["k_cache"],
        "B_v_cache": _B_in["v_cache"],
        "B_wq": _B_in["wq"],
        "B_wo": _B_in["wo"],
    }

def reference(A_x, A_k_cache, A_v_cache, A_wq, A_wo, B_x, B_k_cache, B_v_cache, B_wq, B_wo):
    def _A_ref(x, k_cache, v_cache, wq, wo):
        B, Sq, D = x.shape
        H, Dh = 16, 256
        q = (lambda x, *d: x.permute(*d))((x @ wq).reshape(B, Sq, H, Dh), 0, 2, 1, 3)
        scores = torch.einsum("bhqd,bhkd->bhqk", q, k_cache) * (Dh ** -0.5)
        p = _softmax(scores, axis=-1)
        o = torch.einsum("bhqk,bhkd->bhqd", p, v_cache)
        return (lambda x, *d: x.permute(*d))(o, 0, 2, 1, 3).reshape(B, Sq, H * Dh) @ wo

    def _B_ref(x, k_cache, v_cache, wq, wo):
        B, Sq, D = x.shape
        Hq, Dh = 16, 256
        Hkv = k_cache.shape[1]
        rep = Hq // Hkv
        q = (lambda x, *d: x.permute(*d))((x @ wq).reshape(B, Sq, Hq, Dh), 0, 2, 1, 3)
        k = (lambda x, n, axis: torch.repeat_interleave(x, n, dim=axis))(k_cache, rep, axis=1)
        v = (lambda x, n, axis: torch.repeat_interleave(x, n, dim=axis))(v_cache, rep, axis=1)
        scores = torch.einsum("bhqd,bhkd->bhqk", q, k) * (Dh ** -0.5)
        p = _softmax(scores, axis=-1)
        o = torch.einsum("bhqk,bhkd->bhqd", p, v)
        return (lambda x, *d: x.permute(*d))(o, 0, 2, 1, 3).reshape(B, Sq, Hq * Dh) @ wo

    a = _A_ref(A_x, A_k_cache, A_v_cache, A_wq, A_wo)
    b = _B_ref(B_x, B_k_cache, B_v_cache, B_wq, B_wo)
    return torch.concatenate([a, b], axis=-1)
```

```python
import re

_REG = re.compile(r'(?<![\w.])([vas])(?:\[(\d+):(\d+)\]|(\d+))(?![\w])')
def regs_of(op):
    out = []
    for m in _REG.finditer(op):
        k = m.group(1)
        if m.group(2) is not None:
            out += [f"{k}{i}" for i in range(int(m.group(2)), int(m.group(3)) + 1)]
        else:
            out.append(f"{k}{m.group(4)}")
    for sp in ('vcc', 'exec', 'm0'):
        if re.search(r'(?<![\w])' + sp + r'(?![\w])', op): out.append(sp)
    return out

def R(k, base, n=1):
    return f"{k}{base}" if n == 1 else f"{k}[{base}:{base+n-1}]"
def V(b, n=1): return R('v', b, n)
def A(b, n=1): return R('a', b, n)
def S(b, n=1): return R('s', b, n)

TRANS = ('v_exp_f32', 'v_log_f32', 'v_rcp_f32', 'v_rsq_f32', 'v_sqrt_f32', 'v_sin_f32', 'v_cos_f32')

class I:
    __slots__ = ('txt', 'kind', 'rd', 'wr', 'tag', 'srcc', 'ab', 'states', 'wtags', 'size')
    def __init__(self, txt, tag=None):
        self.txt = txt; self.tag = tag; self.srcc = []; self.ab = []; self.states = 1; self.wtags = None
        parts = txt.split(None, 1)
        op = parts[0]; rest = parts[1] if len(parts) > 1 else ''
        ops = [o.strip() for o in re.split(r',(?![^\[]*\])', rest)] if rest else []
        rd, wr = [], []
        allr = lambda xs: [r for o in xs for r in regs_of(o)]
        if op.startswith('v_mfma'):
            k = 'mfma'; wr = regs_of(ops[0]); self.ab = allr(ops[1:3]); self.srcc = regs_of(ops[3]); rd = self.ab + self.srcc
        elif op.startswith('buffer_load') or op.startswith('global_load'):
            if re.search(r'\blds\b', txt) or '_lds_' in op:
                k = 'dma'; rd = allr(ops) + ['m0']
            else:
                k = 'vld'; wr = regs_of(ops[0]); rd = allr(ops[1:])
        elif op.startswith('buffer_store') or op.startswith('global_store'):
            k = 'vst'; rd = allr(ops)
        elif op.startswith('buffer_atomic') or op.startswith('global_atomic'):
            k = 'vst'; rd = allr(ops)
            if 'sc0' in txt: k = 'vld'; wr = regs_of(ops[0])
        elif op in ('buffer_wbl2', 'buffer_inv'):
            k = 'vst'
        elif op.startswith('ds_read') or op.startswith('ds_bpermute') or op.startswith('ds_swizzle'):
            k = 'dsr'; wr = regs_of(ops[0]); rd = allr(ops[1:])
        elif op.startswith('ds_write'):
            k = 'dsw'; rd = allr(ops)
        elif op.startswith('s_load') or op in ('s_memtime', 's_memrealtime'):
            k = 'smem'; wr = regs_of(ops[0]); rd = allr(ops[1:])
        elif op == 's_nop':
            k = 'nop'; self.states = int(ops[0], 0) + 1
        elif op == 's_barrier': k = 'bar'
        elif op == 's_waitcnt': k = 'wait'
        elif op.startswith('s_cbranch') or op == 's_branch' or op == 's_endpgm' or op == 's_setprio' or op == 's_sleep':
            k = 'ctl'
        elif op.startswith('s_cmp'):
            k = 'salu'; rd = allr(ops)
        elif op.startswith('s_'):
            k = 'salu'; wr = regs_of(ops[0]); rd = allr(ops[1:])
            if 'saveexec' in op: wr = wr + ['exec']; rd = rd + ['exec']
        elif op.startswith('v_permlane') or op == 'v_swap_b32':
            k = 'perm' if op.startswith('v_permlane') else 'valu'; rd = allr(ops); wr = list(rd)
        elif op.startswith('v_readfirstlane') or op.startswith('v_readlane'):
            k = 'rfl'; wr = regs_of(ops[0]); rd = allr(ops[1:])
        elif op.startswith('v_'):
            k = 'trans' if op.replace('_e32', '').replace('_e64', '') in TRANS else 'valu'
            wr = regs_of(ops[0]); rd = allr(ops[1:])
            if op.startswith('v_fmac') or op.startswith('v_pk_fmac'): rd = rd + wr
            if '_co_' in op or op.startswith('v_div_scale'): wr = wr + regs_of(ops[1]); rd = allr(ops[2:])
            if 'dpp' in txt or 'row_' in txt: k = 'dpp'
        elif op.endswith(':') or op.startswith('.'):
            k = 'label'; self.states = 0
        else:
            raise ValueError("unknown op " + txt)
        self.kind = k; self.rd = rd; self.wr = wr

class WaitTag:
    def __init__(self, *tags): self.tags = set(tags)
class Fence:
    def __init__(self, vm=True, lgkm=True): self.vm = vm; self.lgkm = lgkm
class Raw:
    def __init__(self, txt): self.txt = txt

VALUISH = ('valu', 'trans', 'perm', 'rfl', 'dpp')
VMEMISH = ('vld', 'vst', 'dma')

def finalize(prog, strict_max=True, log=None):
    out = []
    vm = []
    lg = []
    stats = {'nops': 0, 'waits': 0, 'maxvm': 0, 'maxlg': 0}
    def emit(i): out.append(i)
    def do_wait(nvm, nlg):
        parts = []
        if nvm is not None:
            nvm = min(nvm, 63); parts.append(f"vmcnt({nvm})"); del vm[:max(0, len(vm) - nvm)]
        if nlg is not None:
            nlg = min(nlg, 15); parts.append(f"lgkmcnt({nlg})"); del lg[:max(0, len(lg) - nlg)]
        if parts:
            emit(I("s_waitcnt " + " ".join(parts))); stats['waits'] += 1
    def need(lst, pred):
        n = None
        for idx, e in enumerate(lst):
            if pred(e): n = len(lst) - 1 - idx
        return n
    def lg_need(pred):
        n = need(lg, pred)
        if n is not None and any(e.kind == 'smem' for e in lg): n = 0
        return n
    for it in prog:
        if isinstance(it, str): it = I(it)
        if isinstance(it, WaitTag):
            do_wait(need(vm, lambda e: e.tag in it.tags), lg_need(lambda e: e.tag in it.tags)); continue
        if isinstance(it, Fence):
            do_wait(0 if it.vm and vm else None, 0 if it.lgkm and lg else None); continue
        if isinstance(it, Raw):
            emit(I("s_nop 7")); emit(I("s_nop 7"))
            for ln in it.txt.strip().split("\n"):
                r = I("s_nop 0"); r.txt = ln; r.kind = 'raw'; r.rd = []; r.wr = []; emit(r)
            emit(I("s_nop 7")); emit(I("s_nop 7"))
            continue
        touched = set(it.rd) | set(it.wr)
        if touched:
            a = need(vm, lambda e: e.wr and not touched.isdisjoint(e.wr))
            b = lg_need(lambda e: e.wr and not touched.isdisjoint(e.wr))
            do_wait(a, b)
        req = 0; gap = 0
        rdS, wrS = set(it.rd), set(it.wr)
        for pv in reversed(out):
            if gap > 24: break
            n = 0
            pw = set(pv.wr)
            if pv.kind in VALUISH:
                vw = {r for r in pw if r[0] in 'va' and r not in ('vcc',)}
                sw = {r for r in pw if r[0] == 's' or r == 'vcc'}
                if it.kind == 'mfma' and vw & rdS: n = max(n, 2)
                if it.kind in ('perm', 'dpp') and vw & rdS: n = max(n, 2)
                if it.kind == 'rfl' and vw & rdS: n = max(n, 1)
                if pv.kind == 'trans' and it.kind in VALUISH and it.kind != 'trans' and vw & rdS: n = max(n, 1)
                if it.kind in VMEMISH and sw & rdS: n = max(n, 5)
                if it.kind in VALUISH and sw & rdS: n = max(n, 4 if it.kind == 'rfl' else 2)
                if it.kind in ('salu', 'smem') and sw & rdS: n = max(n, 2)
                if 'exec' in pw: n = max(n, 5)
            elif pv.kind == 'mfma':
                if it.kind == 'mfma':
                    if pw & set(it.ab): n = max(n, 8)
                    ov = pw & set(it.srcc)
                    if ov and (it.srcc != pv.wr): n = max(n, 6)
                    if not ov and pw & wrS and it.wr != pv.wr: n = max(n, 8)
                elif (pw & (rdS | wrS)): n = max(n, 8)
                if it.kind in VALUISH and set(pv.srcc) & wrS: n = max(n, 3)
            elif pv.kind == 'salu':
                if 'm0' in pw and it.kind == 'dma': n = max(n, 1)
            elif pv.kind == 'vst':
                if ('x4' in pv.txt or 'x3' in pv.txt) and set(pv.rd) & wrS: n = max(n, 2)
            if n - gap > req: req = n - gap
            gap += pv.states
        if req > 0:
            emit(I(f"s_nop {req-1}")); stats['nops'] += req
            if log is not None: log.append((len(out), it.txt, req))
        emit(it)
        if it.kind in VMEMISH:
            vm.append(it); stats['maxvm'] = max(stats['maxvm'], len(vm))
            if strict_max: assert len(vm) <= 63, "too many vmem outstanding at " + it.txt
        elif it.kind in ('dsr', 'dsw', 'smem'):
            lg.append(it); stats['maxlg'] = max(stats['maxlg'], len(lg))
    return [o.txt for o in out], stats

class Timeline:
    def __init__(self): self.main = []; self.side = {}
    def add(self, ins): self.main.append(ins); return len(self.main) - 1
    def at(self, pos, *ins):
        self.side.setdefault(pos, []).extend(ins)
    def flat(self):
        out = list(self.side.get(-1, []))
        for i, m in enumerate(self.main):
            out.append(m); out += self.side.get(i, [])
        mx = max(self.side.keys(), default=-1)
        for p in range(len(self.main), mx + 1): out += self.side.get(p, [])
        return out
```

```python
import struct
from fw import *

def fbits(x): return struct.unpack('<I', struct.pack('<f', x))[0]
SZ_X, SZ_KV, SZ_W, SZ_OUT, SZ_WS = 1376256, 12582912, 3670016, 2752512, 268435456
SCALE = 1.4426950408889634 / 16.0

sX, sWQ, sK, sWS, sV, sWO, sOUT = 4, 8, 12, 16, 64, 68, 72
sHQ, sP, sHH, sBG, sH, sW, sB = 20, 21, 22, 23, 24, 25, 26
sM0B, sODD, sSC, sT0, sT1, sMT1, sMT2, sKT1, sKT2 = 27, 28, 30, 31, 32, 33, 34, 35, 62
sSO = 63

def srd(d, lo, size):
    return [f"s_mov_b32 s{d}, s{lo}", f"s_mov_b32 s{d+1}, s{lo+1}", f"s_mov_b32 s{d+2}, {size}", f"s_mov_b32 s{d+3}, 0x20000"]

def prologue_common(endlabel):
    P = []
    P += ["s_cmp_ge_u32 s2, 256", f"s_cbranch_scc1 {endlabel}",
          "s_load_dwordx16 s[36:51], s[0:1], 0", "s_load_dwordx8 s[52:59], s[0:1], 64", "s_load_dwordx2 s[60:61], s[0:1], 96",
          f"s_and_b32 s{sHQ}, s2, 3", f"s_bfe_u32 s{sP}, s2, 0x10002", f"s_bfe_u32 s{sHH}, s2, 0x20003", f"s_lshr_b32 s{sBG}, s2, 5",
          f"s_lshl_b32 s{sH}, s{sHQ}, 2", f"s_add_u32 s{sH}, s{sH}, s{sHH}",
          "v_lshrrev_b32 v1, 6, v0", f"v_readfirstlane_b32 s{sW}, v1", "v_and_b32 v1, 63, v0",
          f"s_lshl_b32 s{sB}, s{sBG}, 2", f"s_add_u32 s{sB}, s{sB}, s{sW}",
          f"s_cmp_eq_u32 s{sP}, 0"]
    for i in range(5):
        P.append(f"s_cselect_b64 s[{76+2*i}:{77+2*i}], s[{36+2*i}:{37+2*i}], s[{46+2*i}:{47+2*i}]")
    P += srd(sX, 76, SZ_X) + srd(sK, 78, SZ_KV) + srd(sV, 80, SZ_KV) + srd(sWQ, 82, SZ_W) + srd(sWO, 84, SZ_W)
    P += srd(sOUT, 56, SZ_OUT) + srd(sWS, 60, SZ_WS)
    return P

vTR, vTRH, vDMA, vX, vK, vPA, vPB = 2, 44, 10, 11, 12, 13, 14
vT = 15
vAF, NS = 20, 6
vACC = 64
def acc(t, mt): return vACC + (t * 3 + mt) * 4
def xreg(ks, mt): return (ks * 3 + mt) * 4
def kreg(s, kt):
    f = s * 3 + kt
    return 168 + 4 * f if f < 22 else 4 * (f - 22)
RING = 8
SLAB = 16384

def stage1_setup(opt):
    P = []
    a, b, c, d = vT, vT + 1, vT + 2, vT + 3
    P += [f"s_and_b32 s{sT0}, s{sW}, 1", f"s_lshr_b32 s{sT1}, s{sW}, 1",
          f"s_lshl_b32 s{sM0B}, s{sT0}, 1", f"s_lshl_b32 s{sSO}, s{sT1}, 3", f"s_add_u32 s{sM0B}, s{sM0B}, s{sSO}",
          f"s_lshl_b32 s{sT0}, s{sT0}, 2", f"s_or_b32 s{sT0}, s{sT0}, s{sSO}",
          f"s_lshl_b32 s{sT1}, s{sM0B}, 13", f"s_lshl_b32 s{sSO}, s{sH}, 9", f"s_add_u32 s{sT1}, s{sT1}, s{sSO}",
          f"s_lshl_b32 s{sM0B}, s{sM0B}, 9"]
    P += [f"v_lshrrev_b32 v{a}, 5, v1", f"v_and_b32 v{b}, 31, v1", f"v_or_b32 v{c}, s{sT0}, v{a}", f"v_xor_b32 v{b}, v{b}, v{c}",
          f"v_lshlrev_b32 v{b}, 4, v{b}", f"v_lshl_add_u32 v{b}, v{a}, 13, v{b}", f"v_add_u32 v{vDMA}, s{sT1}, v{b}"]
    P += [f"v_and_b32 v{a}, 15, v1", f"v_lshrrev_b32 v{b}, 4, v1", f"v_lshlrev_b32 v{b}, 4, v{b}",
          f"v_mul_u32_u24 v{c}, 896, v{a}", f"v_add_u32 v{c}, v{c}, v{b}", f"s_mul_i32 s{sT0}, s{sB}, 43008", f"v_add_u32 v{vX}, s{sT0}, v{c}",
          f"v_lshl_add_u32 v{c}, v{a}, 9, v{b}", f"s_lshl_b32 s{sT0}, s{sB}, 4", f"s_add_u32 s{sT0}, s{sT0}, s{sH}", f"s_mul_i32 s{sT1}, s{sT0}, 24576",
          f"v_add_u32 v{vK}, s{sT1}, v{c}",
          f"s_mov_b32 s{sMT1}, 14336", f"s_mov_b32 s{sMT2}, 28672", f"s_mov_b32 s{sKT1}, 8192", f"s_mov_b32 s{sKT2}, 16384"]
    return P

def stage1_setup2(opt):
    P = []
    a, b, c, d = vT, vT + 1, vT + 2, vT + 3
    P += [f"s_lshl_b32 s{sT1}, s{sP}, 9", f"s_add_u32 s{sT1}, s{sT1}, s{sT0}", f"s_mul_i32 s{sT1}, s{sT1}, 4608",
          f"v_lshlrev_b32 v{a}, 4, v1", f"v_add_u32 v{vPA}, s{sT1}, v{a}", f"v_lshlrev_b32 v{a}, 3, v1", f"s_add_u32 s{sT1}, s{sT1}, 1024", f"v_add_u32 v{vPB}, s{sT1}, v{a}"]
    P += [f"v_lshrrev_b32 v{a}, 4, v1", f"v_bfe_u32 v{b}, v1, 2, 2", f"v_and_b32 v{c}, 3, v1",
          f"v_lshl_add_u32 v{d}, v{a}, 3, v{b}", f"v_lshlrev_b32 v{d}, 9, v{d}",
          f"v_and_b32 v{a}, 1, v{a}", f"v_lshlrev_b32 v{a}, 3, v{a}",
          f"v_lshrrev_b32 v{vT+4}, 1, v{b}", f"v_lshl_or_b32 v{a}, v{vT+4}, 2, v{a}",
          f"v_and_b32 v{b}, 1, v{b}", f"v_or_b32 v{a}, v{a}, v{b}",
          f"v_xor_b32 v{a}, v{a}, v{c}", f"v_lshl_add_u32 v{d}, v{a}, 4, v{d}",
          f"v_and_b32 v{c}, 1, v{c}", f"v_lshl_add_u32 v{d}, v{c}, 3, v{d}"]
    for bb in range(4):
        for tau in range(2):
            P.append(f"v_xor_b32 v{vTR + bb*2 + tau}, {(bb << 6) | (tau << 3)}, v{d}")
            P.append(f"v_xor_b32 v{vTRH + bb*2 + tau}, {0x10000 | (bb << 6) | (tau << 3)}, v{d}")
    P += [f"s_mov_b32 s{sODD}, 0xffff0000", f"s_mov_b32 s{sODD+1}, 0xffff0000", f"s_mov_b32 s{sSC}, {fbits(SCALE)}"]
    return P

def g_dma(s, opt):
    out = []
    slot = (s % RING) * SLAB
    for a in range(2):
        for c in range(2):
            ro = 4 * a + 16 * c
            out.append([f"s_add_u32 m0, s{sM0B}, {slot + ro * 512}", f"s_mov_b32 s{sSO}, {(32 * s + ro) * 8192}",
                        I(f"buffer_load_dwordx4 v{vDMA}, s[{sWQ}:{sWQ+3}], s{sSO} offen{opt['wq_pol']} lds", tag=f"slab{s}")])
    return out
def g_x(ks, opt):
    so = ['0', f"s{sMT1}", f"s{sMT2}"]
    return [[I(f"buffer_load_dwordx4 {A(xreg(ks, mt), 4)}, v{vX}, s[{sX}:{sX+3}], {so[mt]} offen offset:{ks*64}{opt['x_pol']}")] for mt in range(3)]
def g_k(f, opt):
    s, kt = divmod(f, 3)
    so = ['0', f"s{sKT1}", f"s{sKT2}"]
    return [I(f"buffer_load_dwordx4 {A(kreg(s, kt), 4)}, v{vK}, s[{sK}:{sK+3}], {so[kt]} offen offset:{s*64}{opt['kv_pol']}")]

def tr_reads(T):
    ks, t = divmod(T, 16)
    sp, tau = divmod(t, 2)
    ap, bp = divmod(sp, 4)
    slot = ks % RING
    base = (vTR if slot < 4 else vTRH) + bp * 2 + tau
    off = (slot % 4) * SLAB + ap * 256
    d = vAF + (T % NS) * 4
    return [f"ds_read_b64_tr_b16 {V(d, 2)}, v{base} offset:{off}", f"ds_read_b64_tr_b16 {V(d+2, 2)}, v{base} offset:{off + 2048}"]

STAMP_REGS = [36 + 2*i for i in range(12)] + [86 + 2*i for i in range(8)]
class Stamps:
    def __init__(self, on): self.on = on; self.n = 0
    def __call__(self):
        if not self.on: return []
        r = STAMP_REGS[self.n]; self.n += 1
        return [f"s_memtime s[{r}:{r+1}]"]
    def dump(self):
        if not self.on: return []
        P = [Fence(), f"s_lshl_b32 s{sT0}, s2, 2", f"s_add_u32 s{sT0}, s{sT0}, s{sW}", f"s_lshl_b32 s{sT0}, s{sT0}, 7", f"s_add_u32 s{sT0}, s{sT0}, {64 << 20}", "v_mov_b32 v3, 0"]
        for i in range(self.n):
            P += [f"v_mov_b32 v2, s{STAMP_REGS[i]}", f"buffer_store_dword v2, v3, s[{sWS}:{sWS+3}], s{sT0} offen offset:{4*i}"]
        return P

def stage1(opt):
    st = opt['st']
    P = st() + stage1_setup(opt)
    flat = lambda gs: [x for g in gs for x in g]
    kq = list(range(24))
    for s in range(6):
        P += flat(g_dma(s, opt)) + flat(g_x(s, opt))
        if s == 0: P += stage1_setup2(opt)
        if s >= 2:
            for _ in range(3): P += g_k(kq.pop(0), opt)
    tl = Timeline()
    LA = 4
    for ks in range(14):
        for t in range(16):
            T = ks * 16 + t
            af = vAF + (T % NS) * 4
            for mt in range(3):
                c = '0' if ks == 0 else V(acc(t, mt), 4)
                idx = tl.add(f"v_mfma_f32_16x16x32_bf16 {V(acc(t, mt), 4)}, {V(af, 4)}, {A(xreg(ks, mt), 4)}, {c}")
                if mt == 0 and T + LA < 224: tl.at(idx, tr_reads(T + LA)[0])
                if mt == 1 and T + LA < 224: tl.at(idx, tr_reads(T + LA)[1])
        base = ks * 48
        if ks < 13:
            pre = [WaitTag(f"slab{ks+1}"), "s_barrier"] + st()
            if ks == 0:
                for T in range(LA): pre += tr_reads(T)
            tl.at(base - 1, *pre)
        items = []
        todo = {0: [6], 1: [7, 8]}.get(ks, [ks + 7] if ks + 7 < 14 else [])
        for s in todo: items += g_dma(s, opt) + g_x(s, opt)
        if ks in (0, 2, 3, 4):
            for _ in range(3): items.append(g_k(kq.pop(0), opt))
        n = len(items)
        for j, it in enumerate(items):
            tl.at(base + 2 + (j * 45) // max(n, 1) // 3 * 3, *it)
    assert not kq
    b13 = 13 * 48
    cv = []
    for sp in range(8):
        for mt in range(3):
            t0, t1 = acc(2 * sp, mt), acc(2 * sp + 1, mt)
            cv += [f"v_cvt_pk_bf16_f32 v{t0}, v{t0}, v{t0+1}", f"v_cvt_pk_bf16_f32 v{t0+1}, v{t0+2}, v{t0+3}",
                   f"v_cvt_pk_bf16_f32 v{t0+2}, v{t1}, v{t1+1}", f"v_cvt_pk_bf16_f32 v{t0+3}, v{t1+2}, v{t1+3}"]
        sw = [f"s_mov_b64 exec, s[{sODD}:{sODD+1}]"]
        for mt in range(3):
            t0 = acc(2 * sp, mt)
            sw += [f"v_swap_b32 v{t0}, v{t0+2}", f"v_swap_b32 v{t0+1}, v{t0+3}"]
        sw.append("s_mov_b64 exec, -1")
        cv.append(sw)
    pos = b13 + 10; cnt = 0
    for c in cv:
        if isinstance(c, list):
            tl.at(pos, *c); pos += 3; cnt = 0
        else:
            tl.at(pos, c); cnt += 1
            if cnt == 2: cnt = 0; pos += 1
    sacc = lambda kt, mt: acc(2 * kt + 1, mt)
    for sp in range(8):
        for mt in range(3):
            for kt in range(3):
                c = '0' if sp == 0 else V(sacc(kt, mt), 4)
                tl.add(f"v_mfma_f32_16x16x32_bf16 {V(sacc(kt, mt), 4)}, {A(kreg(sp, kt), 4)}, {V(acc(2*sp, mt), 4)}, {c}")
    tl.at(b13 + 47, *st())
    P += tl.flat() + st()
    m = [20, 21, 22]; t = [23, 24, 25]; pk = 26
    sv = lambda mt: [sacc(kt, mt) + r for kt in range(3) for r in range(4)]
    Q = []
    for mt in range(3):
        x = sv(mt)
        Q.append(f"v_max3_f32 v{m[mt]}, v{x[0]}, v{x[1]}, v{x[2]}")
    for j in range(4):
        for mt in range(3):
            x = sv(mt); Q.append(f"v_max3_f32 v{m[mt]}, v{m[mt]}, v{x[3+2*j]}, v{x[4+2*j]}")
    for mt in range(3): Q.append(f"v_max_f32 v{m[mt]}, v{m[mt]}, v{sv(mt)[11]}")
    def xred(op):
        o = []
        for pl in ('v_permlane32_swap_b32', 'v_permlane16_swap_b32'):
            o += [f"v_mov_b32 v{t[mt]}, v{m[mt]}" for mt in range(3)]
            o += [f"{pl} v{m[mt]}, v{t[mt]}" for mt in range(3)]
            o += [f"{op} v{m[mt]}, v{m[mt]}, v{t[mt]}" for mt in range(3)]
        return o
    Q += xred('v_max_f32')
    Q += [f"v_mul_f32 v{m[mt]}, s{sSC}, v{m[mt]}" for mt in range(3)]
    for j in range(12):
        Q += [f"v_fma_f32 v{sv(mt)[j]}, v{sv(mt)[j]}, s{sSC}, -v{m[mt]}" for mt in range(3)]
        Q += [f"v_exp_f32 v{sv(mt)[j]}, v{sv(mt)[j]}" for mt in range(3)]
    Q += [f"v_add_f32 v{m[mt]}, v{sv(mt)[0]}, v{sv(mt)[1]}" for mt in range(3)]
    for j in range(2, 12):
        Q += [f"v_add_f32 v{m[mt]}, v{m[mt]}, v{sv(mt)[j]}" for mt in range(3)]
    Q += xred('v_add_f32')
    Q += [f"v_rcp_f32 v{m[mt]}, v{m[mt]}" for mt in range(3)]
    for mt in range(3):
        x = sv(mt)
        for j in range(12): Q.append(f"v_mul_f32 v{x[j]}, v{x[j]}, v{m[mt]}")
        for j in range(6): Q.append(f"v_cvt_pk_bf16_f32 v{pk + mt*6 + j}, v{x[2*j]}, v{x[2*j+1]}")
        Q.append(f"buffer_store_dwordx4 {V(pk + mt*6, 4)}, v{vPA}, s[{sWS}:{sWS+3}], 0 offen offset:{mt*1536}")
        Q.append(f"buffer_store_dwordx2 {V(pk + mt*6 + 4, 2)}, v{vPB}, s[{sWS}:{sWS+3}], 0 offen offset:{mt*1536}")
    P += Q + st()
    return P

def kernel(name, body, nv=512, acc_off=256):
    lines, st = finalize(body)
    print(name, st, len(lines))
    hdr = f".globl {name}\n.p2align 8\n.type {name},@function\n{name}:\n"
    kd = (f'.section .rodata,"a"\n.p2align 6\n.amdhsa_kernel {name}\n  .amdhsa_next_free_vgpr {nv}\n  .amdhsa_next_free_sgpr 102\n  .amdhsa_accum_offset {acc_off}\n'
          "  .amdhsa_group_segment_fixed_size 0\n  .amdhsa_kernarg_size 104\n  .amdhsa_user_sgpr_count 2\n  .amdhsa_user_sgpr_kernarg_segment_ptr 1\n"
          "  .amdhsa_system_sgpr_workgroup_id_x 1\n.end_amdhsa_kernel\n.text\n")
    return hdr + "\n".join("  " + l if not l.endswith(':') else l for l in lines) + "\n", kd

if __name__ == "__main__":
    import sys
    opt = dict(wq_pol='', x_pol='', kv_pol=' nt', st=Stamps(len(sys.argv) > 2))
    body = prologue_common("Lend1") + stage1(opt) + opt["st"].dump() + ["Lend1:", "s_endpgm"]
    code, kd = kernel("k1_kernel", body)
    txt = "; @launch kernel=k1_kernel grid=(256,1,1) block=(256,1,1) lds=131072\n" + '.amdgcn_target "amdgcn-amd-amdhsa--gfx950"\n.text\n' + code + kd
    open(sys.argv[1], "w").write(txt)
```

```python
from k1 import *

PART_OFF = 8 << 20
v2TW, v2TWH, v2VD0, v2VD1, v2VR0, v2VR1, v2PA, v2PB, v2ST = 2, 3, 4, 5, 6, 7, 8, 9, 10
v2WO = 11
v2T = 18
v2BF, NB = 24, 6
v2U = 48
v2UB = 132
v2P = 188
def uacc(kt, nt): return v2U + (nt * 3 + kt) * 4
def oacc(nt, mt): return (nt * 3 + mt) * 4
aV, NVF = 84, 42
SUP = 28672; R2 = 4
VST = R2 * SUP
sHB = [86, 87, 88, 89]
sVH, sWH, sVST, sWOM = 90, 91, 92, 93

def stage2_setup(opt):
    a, b, c, d = v2T, v2T + 1, v2T + 2, v2T + 3
    P = []
    P += [f"v_lshrrev_b32 v{a}, 3, v1", f"v_and_b32 v{b}, 7, v1", f"v_lshrrev_b32 v{c}, 4, v1", f"v_xor_b32 v{b}, v{b}, v{c}",
          f"v_lshlrev_b32 v{b}, 4, v{b}", f"v_lshl_add_u32 v{b}, v{a}, 9, v{b}",
          f"s_lshl_b32 s{sT0}, s{sB}, 4", f"s_lshl_b32 s{sT1}, s{sHQ}, 2", f"s_add_u32 s{sT0}, s{sT0}, s{sT1}", f"s_mul_i32 s{sT1}, s{sT0}, 24576",
          f"v_add_u32 v{v2VD0}, s{sT1}, v{b}", f"v_xor_b32 v{b}, 64, v{b}", f"s_add_u32 s{sT1}, s{sT1}, 4096", f"v_add_u32 v{v2VD1}, s{sT1}, v{b}",
          f"s_mul_i32 s{sVST}, s{sW}, 12288", f"s_add_u32 s{sVST}, s{sVST}, {VST}", f"s_mul_i32 s{sWOM}, s{sW}, 7168"]
    P += [f"s_lshl_b32 s{sT1}, s{sP}, 9", f"s_add_u32 s{sT1}, s{sT1}, s{sT0}", f"s_mul_i32 s{sT1}, s{sT1}, 4608",
          f"v_lshlrev_b32 v{a}, 4, v1", f"v_add_u32 v{v2PA}, s{sT1}, v{a}", f"v_lshlrev_b32 v{a}, 3, v1", f"s_add_u32 s{sT1}, s{sT1}, 1024", f"v_add_u32 v{v2PB}, s{sT1}, v{a}"]
    P += [f"s_mul_i32 s{sT0}, s{sHH}, 224", f"s_mul_i32 s{sT1}, s{sHQ}, {1024*896}", f"s_add_u32 s{sT0}, s{sT0}, s{sT1}", f"s_mul_i32 s{sT1}, s{sW}, {32*896}", f"s_add_u32 s{sT0}, s{sT0}, s{sT1}",
          f"s_mov_b32 s{sT1}, {(1 << 32) // 14 + 1}"]
    for i in range(7):
        P += [f"v_add_u32 v{a}, {64*i}, v1", f"v_mul_hi_u32 v{b}, v{a}, s{sT1}", f"v_mul_u32_u24 v{c}, 14, v{b}", f"v_sub_u32 v{c}, v{a}, v{c}",
              f"v_and_b32 v{a}, 19, v{b}", f"v_bfe_u32 v{d}, v{b}, 2, 1", f"v_lshl_or_b32 v{a}, v{d}, 3, v{a}", f"v_bfe_u32 v{d}, v{b}, 3, 1", f"v_lshl_or_b32 v{a}, v{d}, 2, v{a}",
              f"v_mul_u32_u24 v{a}, 896, v{a}", f"v_lshl_add_u32 v{a}, v{c}, 4, v{a}", f"v_add_u32 v{v2WO+i}, s{sT0}, v{a}"]
    return P

def stage2_setup2(opt):
    a, b, c, d = v2T, v2T + 1, v2T + 2, v2T + 3
    P = []
    P += [f"v_and_b32 v{a}, 15, v1", f"v_lshrrev_b32 v{b}, 4, v1", f"v_lshrrev_b32 v{c}, 1, v{a}", f"v_xor_b32 v{c}, v{c}, v{b}", f"v_lshlrev_b32 v{c}, 4, v{c}",
          f"v_lshl_add_u32 v{c}, v{a}, 7, v{c}", f"v_add_u32 v{v2VR0}, s{sVST}, v{c}", f"v_xor_b32 v{c}, 64, v{c}", f"v_add_u32 v{v2VR1}, s{sVST}, v{c}"]
    P += [f"v_bfe_u32 v{a}, v1, 2, 3", f"v_lshrrev_b32 v{b}, 5, v1", f"v_lshl_add_u32 v{a}, v{b}, 4, v{a}", f"v_mul_u32_u24 v{a}, 224, v{a}",
          f"v_and_b32 v{b}, 3, v1", f"v_lshl_add_u32 v{v2TW}, v{b}, 3, v{a}", f"v_add_u32 v{v2TWH}, {2*SUP}, v{v2TW}"]
    P += [f"s_lshl_b32 s{sT0}, s{sP}, 3", f"s_add_u32 s{sT0}, s{sT0}, s{sBG}", f"s_lshl_b32 s{sT0}, s{sT0}, 2", f"s_add_u32 s{sT0}, s{sT0}, s{sHH}",
          f"s_lshl_b32 s{sT0}, s{sT0}, 2", f"s_add_u32 s{sT0}, s{sT0}, s{sHQ}", f"s_lshl_b32 s{sT0}, s{sT0}, 2", f"s_add_u32 s{sT0}, s{sT0}, s{sW}",
          f"s_mul_i32 s{sT0}, s{sT0}, 21504", f"s_add_u32 s{sT0}, s{sT0}, {PART_OFF}", f"v_lshlrev_b32 v{a}, 4, v1", f"v_add_u32 v{v2ST}, s{sT0}, v{a}"]
    return P

def head_consts(opt):
    P = []
    for hn in range(4):
        if opt['hrot']: P += [f"s_add_u32 s{sHB[hn]}, s{sHH}, {hn}", f"s_and_b32 s{sHB[hn]}, s{sHB[hn]}, 3"]
        else: P += [f"s_mov_b32 s{sHB[hn]}, {hn}"]
    return P

def g_wo(j, opt):
    hn, half = divmod(j, 2)
    out = []
    for i in range(7):
        pre = [f"s_mul_i32 s{sWH}, s{sHB[hn]}, {256*896}", f"s_add_u32 s{sWH}, s{sWH}, {half*128*896}"] if i == 0 else []
        out.append(pre + [f"s_add_u32 m0, s{sWOM}, {(j % R2) * SUP + i * 1024}", "s_nop 0",
                   I(f"buffer_load_dwordx4 v{v2WO+i}, s[{sWO}:{sWO+3}], s{sWH} offen{opt['wo_pol']} lds", tag=f"sup{j}")])
    return out
def g_v(n, opt):
    hn, u = divmod(n, 4)
    out = []
    for kt in range(3):
        slot = (n * 3 + kt) % 6
        for hf in range(2):
            pre = [f"s_mul_i32 s{sVH}, s{sHB[hn]}, 24576"] if (kt == 0 and hf == 0) else []
            if hf == 0: pre += [f"s_add_u32 s{sSO}, s{sVH}, {kt*8192 + u*128}"]
            out.append(pre + [f"s_add_u32 m0, s{sVST}, {slot*2048 + hf*1024}"] + ([] if hf == 0 else []) + ["s_nop 0",
                       I(f"buffer_load_dwordx4 v{v2VD0+hf}, s[{sV}:{sV+3}], s{sSO} offen{opt['v_pol']} lds", tag=f"v{n}_{kt}")])
    return out
def vfrag(sig, kt): return aV + ((sig * 3 + kt) % NVF) * 4
def g_vread(n):
    out = []
    for kt in range(3):
        slot = (n * 3 + kt) % 6
        for e in range(2):
            out.append([WaitTag(f"v{n}_{kt}"), I(f"ds_read_b128 {A(vfrag(2*n+e, kt), 4)}, v{v2VR0+e} offset:{slot*2048}", tag=f"vr{n}_{kt}")])
    return out
def g_p(hn, opt):
    out = []
    o = (hn & 1) * 6
    for mt in range(3):
        pre = [f"s_mul_i32 s{sT0}, s{sHB[hn]}, 4608"] if mt == 0 else []
        out.append(pre + [f"buffer_load_dwordx4 {V(v2P + mt*12 + o, 4)}, v{v2PA}, s[{sWS}:{sWS+3}], s{sT0} offen offset:{mt*1536}"])
        out.append([f"buffer_load_dwordx2 {V(v2P + mt*12 + o + 4, 2)}, v{v2PB}, s[{sWS}:{sWS+3}], s{sT0} offen offset:{mt*1536}"])
    return out
def wo_reads(F):
    sig, nt = divmod(F, 7)
    j, sl = divmod(sig, 4)
    ss = j % R2
    base = v2TW if ss < 2 else v2TWH
    off = (ss % 2) * SUP + sl * 7168 + nt * 32
    d = v2BF + (F % NB) * 4
    return [f"ds_read_b64_tr_b16 {V(d, 2)}, v{base} offset:{off}", f"ds_read_b64_tr_b16 {V(d+2, 2)}, v{base} offset:{off + 1792}"]

def stage2(opt):
    st = opt['st']
    flat = lambda gs: [x for g in gs for x in g]
    P = st() + head_consts(opt) + stage2_setup(opt)
    P += flat(g_wo(0, opt)) + flat(g_v(0, opt)) + stage2_setup2(opt) + flat(g_v(1, opt)) + flat(g_wo(1, opt)) + flat(g_p(0, opt)) + flat(g_wo(2, opt))
    P += flat(g_vread(0)) + [WaitTag("vr0_0", "vr0_1", "vr0_2")] + flat(g_v(2, opt))
    P += flat(g_vread(1)) + [WaitTag("vr1_0", "vr1_1", "vr1_2")] + flat(g_v(3, opt))
    tl = Timeline()
    LA = 4
    kstart = {}
    first_o = [True] * 1
    oinit = set()
    for hn in range(4):
        for s in range(8):
            sig = hn * 8 + s
            kstart[sig] = len(tl.main)
            for nt in range(7):
                F = sig * 7 + nt
                bf = v2BF + (F % NB) * 4
                for kt in range(3):
                    c = '0' if s == 0 else V(uacc(kt, nt), 4)
                    idx = tl.add(f"v_mfma_f32_16x16x32_bf16 {V(uacc(kt, nt), 4)}, {A(vfrag(sig, kt), 4)}, {V(bf, 4)}, {c}")
                    if kt < 2 and F + LA < 224: tl.at(idx, wo_reads(F + LA)[kt])
                if s == 7:
                    ub = v2UB + nt * 8
                    dst = [ub, ub + 2, ub + 4] if hn % 2 == 0 else [ub + 6, ub, ub + 2]
                    cv = []
                    for kt in range(3):
                        u = uacc(kt, nt)
                        cv += [f"v_cvt_pk_bf16_f32 v{dst[kt]}, v{u}, v{u+1}", f"v_cvt_pk_bf16_f32 v{dst[kt]+1}, v{u+2}, v{u+3}"]
                    for q in range(3): tl.at(idx + 4 + q, cv[2*q], cv[2*q+1])
        us = [0] if hn % 2 == 0 else [1, 2]
        for nt in range(7):
            for u in us:
                ub = v2UB + nt * 8 + (4 if u == 1 else 0)
                for mt in range(3):
                    c = A(oacc(nt, mt), 4) if (nt, mt) in oinit else '0'
                    oinit.add((nt, mt))
                    tl.add(f"v_mfma_f32_16x16x32_bf16 {A(oacc(nt, mt), 4)}, {V(ub, 4)}, {V(v2P + mt*12 + u*4, 4)}, {c}")
    kstart[32] = len(tl.main)
    for j in range(8):
        base = kstart[4 * j]
        pre = []
        if j == 0: pre = [WaitTag("sup0", "sup1"), "s_barrier"] + st() + flat([wo_reads(F) for F in range(LA)])
        elif j < 7: pre = [WaitTag(f"sup{j+1}"), "s_barrier"] + st()
        tl.at(base - 1, *pre)
        if j >= 0 and j + 3 < 8 and (j > 0 or True):
            if j == 0:
                items = g_wo(3, opt)
            else:
                items = g_wo(j + 3, opt)
            for q, it in enumerate(items): tl.at(base + 3 + q * 12, *it)
    for n in range(0, 14):
        base = kstart[2 * n]
        for q, it in enumerate(g_vread(n + 2)): tl.at(base + 2 + q * 3, *it)
        if n + 4 < 16:
            items = g_v(n + 4, opt)
            for q, it in enumerate(items):
                kt = q // 2
                tl.at(base + 23 + q * 3, WaitTag(f"vr{n+2}_{kt}"), *it)
    for q, it in enumerate(g_p(1, opt)): tl.at(kstart[2] + 1 + q * 6, *it)
    for q, it in enumerate(g_p(2, opt)): tl.at(kstart[17] + 1 + q * 6, *it)
    for q, it in enumerate(g_p(3, opt)): tl.at(kstart[19] + 1 + q * 6, *it)
    P += tl.flat() + st()
    for nt in range(7):
        for mt in range(3):
            tile = nt * 3 + mt
            P += [f"s_mov_b32 s{sSO}, {tile*1024}", f"buffer_store_dwordx4 {A(oacc(nt, mt), 4)}, v{v2ST}, s[{sWS}:{sWS+3}], s{sSO} offen{opt['part_pol']}"]
    P += st()
    return P

def k3_body():
    P = ["s_cmp_ge_u32 s2, 1344", "s_cbranch_scc1 Lend3",
         "s_load_dwordx2 s[56:57], s[0:1], 80", "s_load_dwordx2 s[60:61], s[0:1], 96",
         "v_lshrrev_b32 v1, 6, v0", "v_readfirstlane_b32 s25, v1", "v_and_b32 v1, 63, v0",
         "s_lshl_b32 s20, s2, 2", "s_add_u32 s20, s20, s25",
         f"s_mov_b32 s21, {(1 << 32) // 84 + 1}", "s_mul_hi_u32 s22, s20, s21", "s_mul_i32 s23, s22, 84", "s_sub_u32 s23, s20, s23",
         f"s_mov_b32 s21, {(1 << 32) // 21 + 1}", "s_mul_hi_u32 s24, s23, s21", "s_mul_i32 s26, s24, 21", "s_sub_u32 s26, s23, s26",
         f"s_mul_i32 s27, s22, {16*21504}", "s_mul_i32 s28, s24, 21504", "s_add_u32 s27, s27, s28", "s_lshl_b32 s28, s26, 10", "s_add_u32 s27, s27, s28", f"s_add_u32 s27, s27, {PART_OFF}",
         "v_lshlrev_b32 v2, 4, v1", "v_add_u32 v2, s27, v2"]
    P += srd(sOUT, 56, SZ_OUT) + srd(sWS, 60, SZ_WS)
    for hq in range(4):
        P += [f"s_mov_b32 s29, {hq*4*21504}", f"buffer_load_dwordx4 {V(8+4*hq, 4)}, v2, s[{sWS}:{sWS+3}], s29 offen"]
    P += ["s_and_b32 s30, s22, 3", "s_bfe_u32 s31, s22, 0x30002", "s_lshr_b32 s32, s22, 5",
          f"s_mov_b32 s21, {(1 << 32) // 3 + 1}", "s_mul_hi_u32 s33, s26, s21", "s_mul_i32 s34, s33, 3", "s_sub_u32 s34, s26, s34",
          "s_lshl_b32 s35, s31, 2", "s_add_u32 s35, s35, s24", "s_mul_i32 s35, s35, 48", "s_lshl_b32 s36, s34, 4", "s_add_u32 s35, s35, s36", "s_mul_i32 s35, s35, 1792",
          "s_mul_i32 s36, s32, 896", "s_add_u32 s35, s35, s36", "s_mul_i32 s36, s30, 224", "s_add_u32 s35, s35, s36", "s_lshl_b32 s36, s33, 5", "s_add_u32 s35, s35, s36",
          "v_and_b32 v3, 15, v1", "v_mul_u32_u24 v3, 1792, v3", "v_lshrrev_b32 v4, 4, v1", "v_lshl_add_u32 v3, v4, 3, v3", "v_add_u32 v3, s35, v3"]
    for r in range(4):
        P += [f"v_add_f32 v{8+r}, v{8+r}, v{12+r}", f"v_add_f32 v{16+r}, v{16+r}, v{20+r}", f"v_add_f32 v{8+r}, v{8+r}, v{16+r}"]
    P += ["v_cvt_pk_bf16_f32 v8, v8, v9", "v_cvt_pk_bf16_f32 v9, v10, v11", f"buffer_store_dwordx2 v[8:9], v3, s[{sOUT}:{sOUT+3}], 0 offen", "Lend3:", "s_endpgm"]
    return P

HDR = open('concat_heads__mha_block_cached__gqa_block_cached__near_ridge.s.ref').read().split('; Override')[0]
if __name__ == "__main__":
    import sys
    stamps = len(sys.argv) > 2 and sys.argv[2] == 's'
    o1 = dict(wq_pol='', x_pol='', kv_pol=' nt', st=Stamps(False))
    o2 = dict(wo_pol='', v_pol='', part_pol='', hrot=1, st=Stamps(stamps))
    for kv in sys.argv[3:]:
        k, v = kv.split('=')
        for o in (o1, o2):
            if k in o: o[k] = int(v) if k == 'hrot' else ((' ' + v) if v else '')
    c1, d1 = kernel("k1_kernel", prologue_common("Lend1") + stage1(o1) + ["Lend1:", "s_endpgm"])
    c2, d2 = kernel("k2_kernel", prologue_common("Lend2") + stage2(o2) + o2['st'].dump() + ["Lend2:", "s_endpgm"])
    c3, d3 = kernel("k3_kernel", k3_body(), nv=32, acc_off=32)
    txt = (HDR + "; @launch kernel=k1_kernel grid=(256,1,1) block=(256,1,1) lds=131072\n; @launch kernel=k2_kernel grid=(256,1,1) block=(256,1,1) lds=163840\n"
           "; @launch kernel=k3_kernel grid=(1344,1,1) block=(256,1,1) lds=0\n" + '.amdgcn_target "amdgcn-amd-amdhsa--gfx950"\n.text\n' + c1 + c2 + c3 + d1 + d2 + d3)
    open(sys.argv[1], "w").write(txt)
```

```python
import struct
from fw import *

def fbits(x): return struct.unpack('<I', struct.pack('<f', x))[0]
SZ_X, SZ_KV, SZ_W, SZ_OUT, SZ_WS = 1376256, 12582912, 3670016, 2752512, 268435456
SCALE = 1.4426950408889634 / 16.0
PART_OFF = 8 << 20

sX, sWQ, sK, sWS, sV, sWO, sOUT = 4, 8, 12, 16, 64, 68, 72
sHQ, sP, sHH, sBG, sH, sW, sB = 20, 21, 22, 23, 24, 25, 26
sM0B, sODD, sSC, sT0, sT1 = 27, 28, 30, 31, 32
sSTG, sWOM, sSO2 = 33, 34, 35
sXO = 36
sWQO = 43
sHB = 50
sVH, sWH = 54, 55
sSO = 63
STAMP_REGS = [76 + 2*i for i in range(13)]

def srd(d, lo, size):
    return [f"s_mov_b32 s{d}, s{lo}", f"s_mov_b32 s{d+1}, s{lo+1}", f"s_mov_b32 s{d+2}, {size}", f"s_mov_b32 s{d+3}, 0x20000"]

def prologue_common(endlabel):
    P = []
    P += ["s_cmp_ge_u32 s2, 256", f"s_cbranch_scc1 {endlabel}",
          "s_load_dwordx16 s[36:51], s[0:1], 0", "s_load_dwordx8 s[52:59], s[0:1], 64", "s_load_dwordx2 s[60:61], s[0:1], 96",
          f"s_and_b32 s{sHQ}, s2, 3", f"s_bfe_u32 s{sP}, s2, 0x10002", f"s_bfe_u32 s{sHH}, s2, 0x20003", f"s_lshr_b32 s{sBG}, s2, 5",
          f"s_lshl_b32 s{sH}, s{sHQ}, 2", f"s_add_u32 s{sH}, s{sH}, s{sHH}",
          "v_lshrrev_b32 v1, 6, v0", f"v_readfirstlane_b32 s{sW}, v1", "v_and_b32 v1, 63, v0",
          f"s_lshl_b32 s{sB}, s{sBG}, 2", f"s_add_u32 s{sB}, s{sB}, s{sW}",
          f"s_cmp_eq_u32 s{sP}, 0"]
    for i in range(5):
        P.append(f"s_cselect_b64 s[{76+2*i}:{77+2*i}], s[{36+2*i}:{37+2*i}], s[{46+2*i}:{47+2*i}]")
    P += srd(sX, 76, SZ_X) + srd(sK, 78, SZ_KV) + srd(sV, 80, SZ_KV) + srd(sWQ, 82, SZ_W) + srd(sWO, 84, SZ_W)
    P += srd(sOUT, 56, SZ_OUT) + srd(sWS, 60, SZ_WS)
    return P

class Stamps:
    def __init__(self, on, slot=0): self.on = on; self.n = 0; self.slot = slot
    def __call__(self):
        if not self.on or self.n >= len(STAMP_REGS): return []
        r = STAMP_REGS[self.n]; self.n += 1
        return [f"s_memtime s[{r}:{r+1}]"]
    def dump(self):
        if not self.on: return []
        P = [Fence(), f"s_lshl_b32 s{sT0}, s2, 2", f"s_add_u32 s{sT0}, s{sT0}, s{sW}", f"s_lshl_b32 s{sT0}, s{sT0}, 7", f"s_add_u32 s{sT0}, s{sT0}, {(64 << 20) + self.slot * (1 << 20)}", "v_mov_b32 v3, 0"]
        for i in range(self.n):
            P += [f"v_mov_b32 v2, s{STAMP_REGS[i]}", f"buffer_store_dword v2, v3, s[{sWS}:{sWS+3}], s{sT0} offen offset:{4*i}"]
        return P

flat = lambda gs: [x for g in gs for x in g]

def kernel(name, body, nv=512, acc_off=256, quiet=False):
    lines, st = finalize(body)
    if not quiet: print(name, st, len(lines))
    hdr = f".globl {name}\n.p2align 8\n.type {name},@function\n{name}:\n"
    kd = (f'.section .rodata,"a"\n.p2align 6\n.amdhsa_kernel {name}\n  .amdhsa_next_free_vgpr {nv}\n  .amdhsa_next_free_sgpr 102\n  .amdhsa_accum_offset {acc_off}\n'
          "  .amdhsa_group_segment_fixed_size 0\n  .amdhsa_kernarg_size 104\n  .amdhsa_user_sgpr_count 2\n  .amdhsa_user_sgpr_kernarg_segment_ptr 1\n"
          "  .amdhsa_system_sgpr_workgroup_id_x 1\n.end_amdhsa_kernel\n.text\n")
    return hdr + "\n".join("  " + l if not l.endswith(':') else l for l in lines) + "\n", kd

HDR = open('concat_heads__mha_block_cached__gqa_block_cached__near_ridge.s.ref').read().split('; Override')[0]

class Stager:
    def __init__(self, nsl, vrd): self.nsl = nsl; self.n = 0; self.vrd = vrd; self.last = {}
    def tile(self, vdma, srd_, so_ins, pol, dst0, dst1):
        n = self.n; self.n += 1
        slot = n % self.nsl
        pre = [WaitTag(f"sr{n - self.nsl}")] if n >= self.nsl else []
        iss = []
        for hf in range(2):
            iss.append((pre + so_ins if hf == 0 else []) + [f"s_add_u32 m0, s{sSTG}, {slot*2048 + hf*1024}"] + (["s_nop 0"] if True else []) +
                       [I(f"buffer_load_dwordx4 v{vdma+hf}, s[{srd_}:{srd_+3}], s{sSO2} offen{pol} lds", tag=f"sd{n}")])
        rd = [WaitTag(f"sd{n}"), I(f"ds_read_b128 {dst0}, v{self.vrd} offset:{slot*2048}", tag=f"sr{n}"), I(f"ds_read_b128 {dst1}, v{self.vrd+1} offset:{slot*2048}", tag=f"sr{n}")]
        return iss, rd

def stage_dma_voff(vd, rowstride, sbase, t):
    a, b, c = t, t + 1, t + 2
    return [f"v_lshrrev_b32 v{a}, 3, v1", f"v_and_b32 v{b}, 7, v1", f"v_lshrrev_b32 v{c}, 4, v1", f"v_xor_b32 v{b}, v{b}, v{c}", f"v_lshlrev_b32 v{b}, 4, v{b}",
            f"v_mul_u32_u24 v{a}, {rowstride}, v{a}", f"v_add3_u32 v{vd}, v{a}, v{b}, s{sbase}", f"v_xor_b32 v{b}, 64, v{b}", f"v_add3_u32 v{vd+1}, v{a}, v{b}, s{sbase}",
            f"v_add_u32 v{vd+1}, {8*rowstride}, v{vd+1}"]
def stage_rd_addr(vr, t):
    a, b, c = t, t + 1, t + 2
    return [f"v_and_b32 v{a}, 15, v1", f"v_lshrrev_b32 v{b}, 4, v1", f"v_lshrrev_b32 v{c}, 1, v{a}", f"v_xor_b32 v{c}, v{c}, v{b}", f"v_lshlrev_b32 v{c}, 4, v{c}",
            f"v_lshl_add_u32 v{c}, v{a}, 7, v{c}", f"v_add_u32 v{vr}, s{sSTG}, v{c}", f"v_xor_b32 v{c}, 64, v{c}", f"v_add_u32 v{vr+1}, s{sSTG}, v{c}"]
```

```python
import re

_REG = re.compile(r'(?<![\w.])([vas])(?:\[(\d+):(\d+)\]|(\d+))(?![\w])')
def regs_of(op):
    out = []
    for m in _REG.finditer(op):
        k = m.group(1)
        if m.group(2) is not None:
            out += [f"{k}{i}" for i in range(int(m.group(2)), int(m.group(3)) + 1)]
        else:
            out.append(f"{k}{m.group(4)}")
    for sp in ('vcc', 'exec', 'm0'):
        if re.search(r'(?<![\w])' + sp + r'(?![\w])', op): out.append(sp)
    return out

def R(k, base, n=1):
    return f"{k}{base}" if n == 1 else f"{k}[{base}:{base+n-1}]"
def V(b, n=1): return R('v', b, n)
def A(b, n=1): return R('a', b, n)
def S(b, n=1): return R('s', b, n)

TRANS = ('v_exp_f32', 'v_log_f32', 'v_rcp_f32', 'v_rsq_f32', 'v_sqrt_f32', 'v_sin_f32', 'v_cos_f32')

class I:
    __slots__ = ('txt', 'kind', 'rd', 'wr', 'tag', 'srcc', 'ab', 'states', 'wtags', 'size')
    def __init__(self, txt, tag=None):
        self.txt = txt; self.tag = tag; self.srcc = []; self.ab = []; self.states = 1; self.wtags = None
        parts = txt.split(None, 1)
        op = parts[0]; rest = parts[1] if len(parts) > 1 else ''
        ops = [o.strip() for o in re.split(r',(?![^\[]*\])', rest)] if rest else []
        rd, wr = [], []
        allr = lambda xs: [r for o in xs for r in regs_of(o)]
        if op.startswith('v_mfma'):
            k = 'mfma'; wr = regs_of(ops[0]); self.ab = allr(ops[1:3]); self.srcc = regs_of(ops[3]); rd = self.ab + self.srcc
        elif op.startswith('buffer_load') or op.startswith('global_load'):
            if re.search(r'\blds\b', txt) or '_lds_' in op:
                k = 'dma'; rd = allr(ops) + ['m0']
            else:
                k = 'vld'; wr = regs_of(ops[0]); rd = allr(ops[1:])
        elif op.startswith('buffer_store') or op.startswith('global_store'):
            k = 'vst'; rd = allr(ops)
        elif op.startswith('buffer_atomic') or op.startswith('global_atomic'):
            k = 'vst'; rd = allr(ops)
            if 'sc0' in txt: k = 'vld'; wr = regs_of(ops[0])
        elif op in ('buffer_wbl2', 'buffer_inv'):
            k = 'vst'
        elif op.startswith('ds_read') or op.startswith('ds_bpermute') or op.startswith('ds_swizzle'):
            k = 'dsr'; wr = regs_of(ops[0]); rd = allr(ops[1:])
        elif op.startswith('ds_write'):
            k = 'dsw'; rd = allr(ops)
        elif op.startswith('s_load') or op in ('s_memtime', 's_memrealtime'):
            k = 'smem'; wr = regs_of(ops[0]); rd = allr(ops[1:])
        elif op == 's_nop':
            k = 'nop'; self.states = int(ops[0], 0) + 1
        elif op == 's_barrier': k = 'bar'
        elif op == 's_waitcnt': k = 'wait'
        elif op.startswith('s_cbranch') or op == 's_branch' or op == 's_endpgm' or op == 's_setprio' or op == 's_sleep':
            k = 'ctl'
        elif op.startswith('s_cmp'):
            k = 'salu'; rd = allr(ops)
        elif op.startswith('s_'):
            k = 'salu'; wr = regs_of(ops[0]); rd = allr(ops[1:])
            if 'saveexec' in op: wr = wr + ['exec']; rd = rd + ['exec']
        elif op.startswith('v_permlane') or op == 'v_swap_b32':
            k = 'perm' if op.startswith('v_permlane') else 'valu'; rd = allr(ops); wr = list(rd)
        elif op.startswith('v_readfirstlane') or op.startswith('v_readlane'):
            k = 'rfl'; wr = regs_of(ops[0]); rd = allr(ops[1:])
        elif op.startswith('v_'):
            k = 'trans' if op.replace('_e32', '').replace('_e64', '') in TRANS else 'valu'
            wr = regs_of(ops[0]); rd = allr(ops[1:])
            if op.startswith('v_fmac') or op.startswith('v_pk_fmac'): rd = rd + wr
            if '_co_' in op or op.startswith('v_div_scale'): wr = wr + regs_of(ops[1]); rd = allr(ops[2:])
            if 'dpp' in txt or 'row_' in txt: k = 'dpp'
        elif op.endswith(':') or op.startswith('.'):
            k = 'label'; self.states = 0
        else:
            raise ValueError("unknown op " + txt)
        self.kind = k; self.rd = rd; self.wr = wr

class WaitTag:
    def __init__(self, *tags): self.tags = set(tags)
class Fence:
    def __init__(self, vm=True, lgkm=True): self.vm = vm; self.lgkm = lgkm
class Raw:
    def __init__(self, txt): self.txt = txt

VALUISH = ('valu', 'trans', 'perm', 'rfl', 'dpp')
VMEMISH = ('vld', 'vst', 'dma')

def finalize(prog, strict_max=True, log=None):
    out = []
    vm = []
    lg = []
    seen = set()
    stats = {'nops': 0, 'waits': 0, 'maxvm': 0, 'maxlg': 0}
    def emit(i): out.append(i)
    def do_wait(nvm, nlg):
        parts = []
        if nvm is not None:
            nvm = min(nvm, 63); parts.append(f"vmcnt({nvm})"); del vm[:max(0, len(vm) - nvm)]
        if nlg is not None:
            nlg = min(nlg, 15); parts.append(f"lgkmcnt({nlg})"); del lg[:max(0, len(lg) - nlg)]
        if parts:
            emit(I("s_waitcnt " + " ".join(parts))); stats['waits'] += 1
    def need(lst, pred):
        n = None
        for idx, e in enumerate(lst):
            if pred(e): n = len(lst) - 1 - idx
        return n
    def lg_need(pred):
        n = need(lg, pred)
        if n is not None and any(e.kind == 'smem' for e in lg): n = 0
        return n
    for it in prog:
        if isinstance(it, str): it = I(it)
        if isinstance(it, WaitTag):
            for tg in it.tags: assert tg in seen, f"WaitTag {tg} before its op was issued"
            do_wait(need(vm, lambda e: e.tag in it.tags), lg_need(lambda e: e.tag in it.tags)); continue
        if isinstance(it, Fence):
            do_wait(0 if it.vm and vm else None, 0 if it.lgkm and lg else None); continue
        if isinstance(it, Raw):
            emit(I("s_nop 7")); emit(I("s_nop 7"))
            for ln in it.txt.strip().split("\n"):
                r = I("s_nop 0"); r.txt = ln; r.kind = 'raw'; r.rd = []; r.wr = []; emit(r)
            emit(I("s_nop 7")); emit(I("s_nop 7"))
            continue
        touched = set(it.rd) | set(it.wr)
        if touched:
            a = need(vm, lambda e: e.wr and not touched.isdisjoint(e.wr))
            b = lg_need(lambda e: e.wr and not touched.isdisjoint(e.wr))
            do_wait(a, b)
        if it.kind in ('dsr', 'dsw', 'smem') and len(lg) >= 15: do_wait(None, 0 if any(e.kind == 'smem' for e in lg) else 14)
        req = 0; gap = 0
        rdS, wrS = set(it.rd), set(it.wr)
        for pv in reversed(out):
            if gap > 24: break
            n = 0
            pw = set(pv.wr)
            if pv.kind in VALUISH:
                vw = {r for r in pw if r[0] in 'va' and r not in ('vcc',)}
                sw = {r for r in pw if r[0] == 's' or r == 'vcc'}
                if it.kind == 'mfma' and vw & rdS: n = max(n, 2)
                if it.kind in ('perm', 'dpp') and vw & rdS: n = max(n, 2)
                if it.kind == 'rfl' and vw & rdS: n = max(n, 1)
                if pv.kind == 'trans' and it.kind in VALUISH and it.kind != 'trans' and vw & rdS: n = max(n, 1)
                if it.kind in VMEMISH and sw & rdS: n = max(n, 5)
                if it.kind in VALUISH and sw & rdS: n = max(n, 4 if it.kind == 'rfl' else 2)
                if it.kind in ('salu', 'smem') and sw & rdS: n = max(n, 2)
                if 'exec' in pw: n = max(n, 5)
            elif pv.kind == 'mfma':
                if it.kind == 'mfma':
                    if pw & set(it.ab): n = max(n, 8)
                    ov = pw & set(it.srcc)
                    if ov and (it.srcc != pv.wr): n = max(n, 6)
                    if not ov and pw & wrS and it.wr != pv.wr: n = max(n, 8)
                elif (pw & (rdS | wrS)): n = max(n, 8)
                if it.kind in VALUISH and set(pv.srcc) & wrS: n = max(n, 3)
            elif pv.kind == 'salu':
                if 'm0' in pw and it.kind == 'dma': n = max(n, 1)
            elif pv.kind == 'vst':
                if ('x4' in pv.txt or 'x3' in pv.txt) and set(pv.rd) & wrS: n = max(n, 2)
            if n - gap > req: req = n - gap
            gap += pv.states
        if req > 0:
            emit(I(f"s_nop {req-1}")); stats['nops'] += req
            if log is not None: log.append((len(out), it.txt, req))
        emit(it)
        if it.tag: seen.add(it.tag)
        if it.kind in VMEMISH:
            vm.append(it); stats['maxvm'] = max(stats['maxvm'], len(vm))
            if strict_max: assert len(vm) <= 63, "too many vmem outstanding at " + it.txt
        elif it.kind in ('dsr', 'dsw', 'smem'):
            lg.append(it); stats['maxlg'] = max(stats['maxlg'], len(lg))
    return [o.txt for o in out], stats

class Timeline:
    def __init__(self): self.main = []; self.side = {}
    def add(self, ins): self.main.append(ins); return len(self.main) - 1
    def at(self, pos, *ins):
        self.side.setdefault(pos, []).extend(ins)
    def flat(self):
        out = []
        for p in sorted(k for k in self.side if k < 0): out += self.side[p]
        for i, m in enumerate(self.main):
            if m is not None: out.append(m)
            out += self.side.get(i, [])
        mx = max(self.side.keys(), default=-1)
        for p in range(len(self.main), mx + 1): out += self.side.get(p, [])
        return out
```

```python
from common import *

vTR, vTRH, vDMA, vXD, vKD, vSR, vPA, vPB = 2, 44, 10, 11, 13, 52, 54, 55
vT = 15
vAF, NS = 20, 6
vACC = 64
def acc(t, mt): return vACC + (t * 3 + mt) * 4
def xreg(j, mt): return (j * 3 + mt) * 4
def kreg(s, kt):
    f = s * 3 + kt
    return 168 + 4 * f if f < 22 else 4 * (f - 22)
RING = 7
SLAB = 16384
STG1 = RING * SLAB

def s1_setup(opt):
    P = []
    a, b, c, d = vT, vT + 1, vT + 2, vT + 3
    if opt['rot']:
        P += [f"s_lshl_b32 s{sT0}, s{sHH}, 1", f"s_add_u32 s{sT0}, s{sT0}, s{sBG}"]
        if opt['rot'] == 2: P += [f"s_add_u32 s{sT0}, s{sT0}, s{sHQ}"]
        for _ in range(2): P += [f"s_cmp_ge_u32 s{sT0}, 7", f"s_cselect_b32 s{sT1}, 7, 0", f"s_sub_u32 s{sT0}, s{sT0}, s{sT1}"]
    else: P += [f"s_mov_b32 s{sT0}, 0"]
    for j in range(7):
        P += [f"s_lshl_b32 s{sXO+j}, s{sT0}, 7", f"s_lshl_b32 s{sWQO+j}, s{sT0}, 19"]
        if j < 6: P += [f"s_add_u32 s{sT0}, s{sT0}, 1", f"s_cmp_eq_u32 s{sT0}, 7", f"s_cselect_b32 s{sT0}, 0, s{sT0}"]
    P += [f"s_mul_i32 s{sSTG}, s{sW}, 12288", f"s_add_u32 s{sSTG}, s{sSTG}, {STG1}", f"s_mul_i32 s{sT0}, s{sB}, 43008"]
    P += stage_dma_voff(vXD, 896, sT0, vT)
    P += [f"s_and_b32 s{sT0}, s{sW}, 1", f"s_lshr_b32 s{sT1}, s{sW}, 1",
          f"s_lshl_b32 s{sM0B}, s{sT0}, 1", f"s_lshl_b32 s{sSO}, s{sT1}, 3", f"s_add_u32 s{sM0B}, s{sM0B}, s{sSO}",
          f"s_lshl_b32 s{sT0}, s{sT0}, 2", f"s_or_b32 s{sT0}, s{sT0}, s{sSO}",
          f"s_lshl_b32 s{sT1}, s{sM0B}, 13", f"s_lshl_b32 s{sSO}, s{sH}, 9", f"s_add_u32 s{sT1}, s{sT1}, s{sSO}",
          f"s_lshl_b32 s{sM0B}, s{sM0B}, 9"]
    P += [f"v_lshrrev_b32 v{a}, 5, v1", f"v_and_b32 v{b}, 31, v1", f"v_or_b32 v{c}, s{sT0}, v{a}", f"v_xor_b32 v{b}, v{b}, v{c}",
          f"v_lshlrev_b32 v{b}, 4, v{b}", f"v_lshl_add_u32 v{b}, v{a}, 13, v{b}", f"v_add_u32 v{vDMA}, s{sT1}, v{b}"]
    return P

def s1_setup2(opt):
    P = []
    a, b, c, d = vT, vT + 1, vT + 2, vT + 3
    P += [f"s_lshl_b32 s{sT0}, s{sB}, 4", f"s_add_u32 s{sT0}, s{sT0}, s{sH}", f"s_mul_i32 s{sT1}, s{sT0}, 24576"]
    P += stage_dma_voff(vKD, 512, sT1, vT) + stage_rd_addr(vSR, vT)
    P += [f"s_lshl_b32 s{sT1}, s{sP}, 9", f"s_add_u32 s{sT1}, s{sT1}, s{sT0}", f"s_mul_i32 s{sT1}, s{sT1}, 4608",
          f"v_lshlrev_b32 v{a}, 4, v1", f"v_add_u32 v{vPA}, s{sT1}, v{a}", f"v_lshlrev_b32 v{a}, 3, v1", f"s_add_u32 s{sT1}, s{sT1}, 1024", f"v_add_u32 v{vPB}, s{sT1}, v{a}"]
    P += [f"v_lshrrev_b32 v{a}, 4, v1", f"v_bfe_u32 v{b}, v1, 2, 2", f"v_and_b32 v{c}, 3, v1",
          f"v_lshl_add_u32 v{d}, v{a}, 3, v{b}", f"v_lshlrev_b32 v{d}, 9, v{d}",
          f"v_and_b32 v{a}, 1, v{a}", f"v_lshlrev_b32 v{a}, 3, v{a}",
          f"v_lshrrev_b32 v{vT+4}, 1, v{b}", f"v_lshl_or_b32 v{a}, v{vT+4}, 2, v{a}",
          f"v_and_b32 v{b}, 1, v{b}", f"v_or_b32 v{a}, v{a}, v{b}",
          f"v_xor_b32 v{a}, v{a}, v{c}", f"v_lshl_add_u32 v{d}, v{a}, 4, v{d}",
          f"v_and_b32 v{c}, 1, v{c}", f"v_lshl_add_u32 v{d}, v{c}, 3, v{d}"]
    for bb in range(4):
        for tau in range(2):
            P.append(f"v_xor_b32 v{vTR + bb*2 + tau}, {(bb << 6) | (tau << 3)}, v{d}")
            P.append(f"v_xor_b32 v{vTRH + bb*2 + tau}, {0x10000 | (bb << 6) | (tau << 3)}, v{d}")
    P += [f"s_mov_b32 s{sODD}, 0xffff0000", f"s_mov_b32 s{sODD+1}, 0xffff0000", f"s_mov_b32 s{sSC}, {fbits(SCALE)}"]
    return P

def g_w(s, opt):
    out = []
    slot = (s % RING) * SLAB
    for a in range(2):
        for c in range(2):
            ro = 4 * a + 16 * c
            out.append([f"s_add_u32 m0, s{sM0B}, {slot + ro * 512}", f"s_add_u32 s{sSO}, s{sWQO + s//2}, {(32 * (s & 1) + ro) * 8192}",
                        I(f"buffer_load_dwordx4 v{vDMA}, s[{sWQ}:{sWQ+3}], s{sSO} offen{opt['wq_pol']} lds", tag=f"slab{s}")])
    return out

def tr_reads(T):
    ks, t = divmod(T, 16)
    sp, tau = divmod(t, 2)
    ap, bp = divmod(sp, 4)
    slot = ks % RING
    base = (vTR if slot < 4 else vTRH) + bp * 2 + tau
    off = (slot % 4) * SLAB + ap * 256
    d = vAF + (T % NS) * 4
    return [f"ds_read_b64_tr_b16 {V(d, 2)}, v{base} offset:{off}", f"ds_read_b64_tr_b16 {V(d+2, 2)}, v{base} offset:{off + 2048}"]

def softmax_block(sacc, m, t, pk):
    sv = lambda mt: [sacc(kt, mt) + r for kt in range(3) for r in range(4)]
    Q = []
    for mt in range(3):
        x = sv(mt)
        Q.append(f"v_max3_f32 v{m[mt]}, v{x[0]}, v{x[1]}, v{x[2]}")
    for j in range(4):
        for mt in range(3):
            x = sv(mt); Q.append(f"v_max3_f32 v{m[mt]}, v{m[mt]}, v{x[3+2*j]}, v{x[4+2*j]}")
    for mt in range(3): Q.append(f"v_max_f32 v{m[mt]}, v{m[mt]}, v{sv(mt)[11]}")
    def xred(op):
        o = []
        for pl in ('v_permlane32_swap_b32', 'v_permlane16_swap_b32'):
            o += [f"v_mov_b32 v{t[mt]}, v{m[mt]}" for mt in range(3)]
            o += [f"{pl} v{m[mt]}, v{t[mt]}" for mt in range(3)]
            o += [f"{op} v{m[mt]}, v{m[mt]}, v{t[mt]}" for mt in range(3)]
        return o
    Q += xred('v_max_f32')
    Q += [f"v_mul_f32 v{m[mt]}, s{sSC}, v{m[mt]}" for mt in range(3)]
    for j in range(12):
        Q += [f"v_fma_f32 v{sv(mt)[j]}, v{sv(mt)[j]}, s{sSC}, -v{m[mt]}" for mt in range(3)]
        Q += [f"v_exp_f32 v{sv(mt)[j]}, v{sv(mt)[j]}" for mt in range(3)]
    Q += [f"v_add_f32 v{m[mt]}, v{sv(mt)[0]}, v{sv(mt)[1]}" for mt in range(3)]
    for j in range(2, 12):
        Q += [f"v_add_f32 v{m[mt]}, v{m[mt]}, v{sv(mt)[j]}" for mt in range(3)]
    Q += xred('v_add_f32')
    Q += [f"v_rcp_f32 v{m[mt]}, v{m[mt]}" for mt in range(3)]
    for mt in range(3):
        x = sv(mt)
        for j in range(12): Q.append(f"v_mul_f32 v{x[j]}, v{x[j]}, v{m[mt]}")
        for j in range(6): Q.append(f"v_cvt_pk_bf16_f32 v{pk + mt*6 + j}, v{x[2*j]}, v{x[2*j+1]}")
        Q.append(f"buffer_store_dwordx4 {V(pk + mt*6, 4)}, v{vPA}, s[{sWS}:{sWS+3}], 0 offen offset:{mt*1536}")
        Q.append(f"buffer_store_dwordx2 {V(pk + mt*6 + 4, 2)}, v{vPB}, s[{sWS}:{sWS+3}], 0 offen offset:{mt*1536}")
    return Q

def stage1(opt, sched):
    st = opt['st']
    sg = Stager(6, vSR)
    P = st() + s1_setup(opt)
    tl = Timeline()
    LA = 4
    for ks in range(14):
        for t in range(16):
            T = ks * 16 + t
            af = vAF + (T % NS) * 4
            for mt in range(3):
                c = '0' if ks == 0 else V(acc(t, mt), 4)
                idx = tl.add(f"v_mfma_f32_16x16x32_bf16 {V(acc(t, mt), 4)}, {V(af, 4)}, {A(xreg(ks, mt), 4)}, {c}")
                if mt == 0 and T + LA < 224: tl.at(idx, tr_reads(T + LA)[0])
                if mt == 1 and T + LA < 224: tl.at(idx, tr_reads(T + LA)[1])
        if ks < 13:
            pre = [WaitTag(f"slab{ks+1}"), "s_barrier"] + (st() if ks in opt['stk'] else [])
            if ks == 0:
                for T in range(LA): pre += tr_reads(T)
            tl.at(ks * 48 - 1, *pre)
    pace = {'m': opt['mp'], 'h': opt['hp']}; lag = {'m': opt['ml'], 'h': opt['hl']}
    cur = opt['start']
    rdpos = []
    rep = []
    for n_, (kind, idx, cls, earliest) in enumerate(sched):
        tiles = []
        if kind == 'W':
            if idx >= RING: earliest = max(earliest, 48 * (idx - RING + 1))
            cur = max(cur, earliest)
            for it in g_w(idx, opt):
                tl.at(cur, *it); cur += pace[cls]
            rep.append(f"W{idx}:{48*max(idx-1,0) - 1 - (cur - pace[cls])}")
        else:
            cur = max(cur, earliest)
            for q in range(3):
                if kind == 'X':
                    iss, rd = sg.tile(vXD, sX, [f"s_add_u32 s{sSO2}, s{sXO+idx}, {q*14336}"], opt['x_pol'], A(xreg(2*idx, q), 4), A(xreg(2*idx+1, q), 4))
                    dl = 96 * idx - 6
                else:
                    iss, rd = sg.tile(vKD, sK, [f"s_mov_b32 s{sSO2}, {q*8192 + idx*128}"], opt['k_pol'], A(kreg(2*idx, q), 4), A(kreg(2*idx+1, q), 4))
                    dl = 672 + 18 * idx - 6
                n = len(rdpos)
                if n >= sg.nsl: cur = max(cur, rdpos[n - sg.nsl] + 4)
                for it in iss:
                    tl.at(cur, *it); cur += pace[cls]
                rp = min(cur - pace[cls] + lag[cls], dl)
                if rdpos: rp = max(rp, rdpos[-1])
                if kind == 'K' and idx == 3 and q >= 1: rp = max(rp, 48)
                rp = max(rp, cur - pace[cls])
                if rp == -1: rp = -2
                assert rp <= dl or dl < 0, (kind, idx, rp, dl)
                tl.at(rp, *rd); rdpos.append(rp)
                rep.append(f"{kind}{idx}.{q}:{rp - (cur - pace[cls])}")
        if n_ == 0: tl.at(cur - 1, *s1_setup2(opt))
    if opt.get('verbose'): print(" ".join(rep), "end", cur)
    b13 = 13 * 48
    cv = []
    for sp in range(8):
        for mt in range(3):
            t0, t1 = acc(2 * sp, mt), acc(2 * sp + 1, mt)
            cv += [f"v_cvt_pk_bf16_f32 v{t0}, v{t0}, v{t0+1}", f"v_cvt_pk_bf16_f32 v{t0+1}, v{t0+2}, v{t0+3}",
                   f"v_cvt_pk_bf16_f32 v{t0+2}, v{t1}, v{t1+1}", f"v_cvt_pk_bf16_f32 v{t0+3}, v{t1+2}, v{t1+3}"]
        sw = [f"s_mov_b64 exec, s[{sODD}:{sODD+1}]"]
        for mt in range(3):
            t0 = acc(2 * sp, mt)
            sw += [f"v_swap_b32 v{t0}, v{t0+2}", f"v_swap_b32 v{t0+1}, v{t0+3}"]
        sw.append("s_mov_b64 exec, -1")
        cv.append(sw)
    pos = b13 + 10; cnt = 0
    for c in cv:
        if isinstance(c, list):
            tl.at(pos, *c); pos += 3; cnt = 0
        else:
            tl.at(pos, c); cnt += 1
            if cnt == 2: cnt = 0; pos += 1
    sacc = lambda kt, mt: acc(2 * kt + 1, mt)
    for sp in range(8):
        for mt in range(3):
            for kt in range(3):
                c = '0' if sp == 0 else V(sacc(kt, mt), 4)
                tl.add(f"v_mfma_f32_16x16x32_bf16 {V(sacc(kt, mt), 4)}, {A(kreg(sp, kt), 4)}, {V(acc(2*sp, mt), 4)}, {c}")
    tl.at(b13 + 47, *st())
    P += tl.flat() + st()
    P += softmax_block(sacc, [20, 21, 22], [23, 24, 25], 26) + st()
    return P

def sched_u(name):
    S = [('X', 0, 'm'), ('W', 0, 'm'), ('W', 1, 'm'), ('X', 1, 'm'), ('W', 2, 'm'), ('W', 3, 'm')]
    KB = [('K', u, 'm') for u in range(4)]
    h = lambda s: [(t[0], int(t[1:]), 'h') for t in s.split()]
    if name == 'L': S += h("W4 X2 W5 W6 W7 X3 W8 W9 X4 W10 W11 X5 W12 X6 W13") + KB
    elif name == 'E': S += h("W4 X2 W5 W6 X3 W7 X4 W8 W9 W10") + KB + h("X5 W11 W12 X6 W13")
    elif name == 'M': S += h("W4 X2 W5 W6 X3 W7 X4 W8 X5 W9 X6 W10 W11") + KB + h("W12 W13")
    return [(k, i, c, -999) for k, i, c in S]

if __name__ == "__main__":
    import sys
    opt = dict(wq_pol='', x_pol='', k_pol=' nt', rot=1, st=Stamps(True), stk=(0, 1, 2, 4, 6, 8, 10, 12), mp=9, hp=4, ml=90, hl=40, start=-200, verbose=1, kp='L')
    for kv in sys.argv[2:]:
        k, v = kv.split('=')
        opt[k] = ((' ' + v) if v else '') if k.endswith('pol') else (v if k == 'kp' else int(v))
    body = prologue_common("Lend1") + stage1(opt, sched_u(opt['kp'])) + opt['st'].dump() + ["Lend1:", "s_endpgm"]
    code, kd = kernel("k1_kernel", body)
    open(sys.argv[1], "w").write("; @launch kernel=k1_kernel grid=(256,1,1) block=(256,1,1) lds=163840\n" + '.amdgcn_target "amdgcn-amd-amdhsa--gfx950"\n.text\n' + code + kd)
```

```python
import sys
import s1, common
import k2 as K2
def build(path, **kw):
    opt = dict(wq_pol='', x_pol='', k_pol=' nt', rot=1, st=common.Stamps(False), stk=(), mp=9, hp=4, ml=90, hl=40, start=-200, kp='L')
    opt.update(kw)
    c1, d1 = common.kernel("k1_kernel", common.prologue_common("Lend1") + s1.stage1(opt, s1.sched_u(opt['kp'])) + ["Lend1:", "s_endpgm"], quiet=True)
    o2 = dict(wo_pol='', v_pol='', part_pol='', hrot=1, st=K2.Stamps(False))
    c2, d2 = K2.kernel("k2_kernel", K2.prologue_common("Lend2") + K2.stage2(o2) + ["Lend2:", "s_endpgm"])
    c3, d3 = K2.kernel("k3_kernel", K2.k3_body(), nv=32, acc_off=32)
    txt = (common.HDR + "; @launch kernel=k1_kernel grid=(256,1,1) block=(256,1,1) lds=163840\n; @launch kernel=k2_kernel grid=(256,1,1) block=(256,1,1) lds=163840\n"
           "; @launch kernel=k3_kernel grid=(1344,1,1) block=(256,1,1) lds=0\n" + '.amdgcn_target "amdgcn-amd-amdhsa--gfx950"\n.text\n' + c1 + c2 + c3 + d1 + d2 + d3)
    open(path, "w").write(txt)
build('qa.s')
build('qb.s', wq_pol=' nt', x_pol=' nt')
build('qc.s', k_pol='')
build('qd.s', rot=0)
```

```python
import struct, sys
from fw import *

def fbits(x): return struct.unpack('<I', struct.pack('<f', x))[0]
SZ_X, SZ_KV, SZ_W, SZ_OUT, SZ_WS = 1376256, 12582912, 3670016, 2752512, 268435456
SCALE = 1.4426950408889634 / 16.0
PART_OFF = 8 << 20
FLAG1_OFF = 40 << 20
FLAG2_OFF = 41 << 20
TAG_OFF = 42 << 20
NAME = "concat_heads__mha_block_cached__gqa_block_cached__near_ridge_kernel"

sX, sWQ, sK, sWS, sV, sWO, sOUT = 4, 8, 12, 16, 64, 68, 72
sHQ, sP, sHH, sBG, sH, sW, sB = 20, 21, 22, 23, 24, 25, 26
sM0B, sODD, sSC, sT0, sT1 = 27, 28, 30, 31, 32
sSTG, sWOM, sSO2 = 33, 34, 35
sWQO = 36
sXO = 50
sTAG, sCNT, sSO = 57, 62, 63
sDBG = 76
sHB = 80
sVU = 84
sWOR = 88
sVH, sWH = 90, 91
STAMP_REGS = [92, 94, 96, 98, 100]

vTR, vTRH, vW, vXD, vKD, vSR, vVD, vWO, vPA, vPB, vF = 2, 10, 18, 22, 24, 26, 28, 30, 37, 38, 39
vFR, NS = 40, 6
vACC = 64
vT = 64
def acc(t, mt): return vACC + (t * 3 + mt) * 4
def xreg(j, mt): return (j * 3 + mt) * 4
def kreg(s, kt):
    f = s * 3 + kt
    return 168 + 4 * f if f < 22 else 4 * (f - 22)
vTW, vTWH, vP2A, vP2B, vST, vF1A, vF2A, vLD, vOUT = 2, 3, 4, 5, 6, 7, 8, 9, 10
vU = 64
vUB = 148
def uacc(kt, nt): return vU + (nt * 3 + kt) * 4
def oacc(nt, mt): return 168 + (nt * 3 + mt) * 4
aV, NVF = 8, 31
aP = 132
def vfrag(sig, kt): return aV + ((sig * 3 + kt) % NVF) * 4
RING, SLAB = 7, 16384
SUP, R2 = 28672, 4
STG = 114688

flat = lambda gs: [x for g in gs for x in g]
def srd(d, lo, size):
    return [f"s_mov_b32 s{d}, s{lo}", f"s_mov_b32 s{d+1}, s{lo+1}", f"s_mov_b32 s{d+2}, {size}", f"s_mov_b32 s{d+3}, 0x20000"]

class Stamps:
    def __init__(self, on): self.on = on; self.n = 0; self.pend = []
    def __call__(self):
        if not self.on: return []
        r = STAMP_REGS[self.n % len(STAMP_REGS)]
        out = []
        if self.n >= len(STAMP_REGS): raise RuntimeError("too many stamps")
        self.n += 1
        return [f"s_memtime s[{r}:{r+1}]"]
    def dump(self):
        if not self.on: return []
        P = [Fence(), f"s_lshl_b32 s{sT0}, s2, 2", f"s_add_u32 s{sT0}, s{sT0}, s{sW}", f"s_lshl_b32 s{sT0}, s{sT0}, 7", f"s_add_u32 s{sT0}, s{sT0}, {64 << 20}", "v_mov_b32 v3, 0"]
        for i in range(self.n):
            P += [f"v_mov_b32 v2, s{STAMP_REGS[i]}", f"buffer_store_dword v2, v3, s[{sWS}:{sWS+3}], s{sT0} offen offset:{4*i}"]
        return P

def prologue(opt):
    P = ["s_cmp_ge_u32 s2, 256", "s_cbranch_scc1 Lend",
         "s_load_dwordx16 s[36:51], s[0:1], 0", "s_load_dwordx8 s[52:59], s[0:1], 64", "s_load_dwordx2 s[60:61], s[0:1], 96"] + opt['st']() + [
         f"s_and_b32 s{sHQ}, s2, 3", f"s_bfe_u32 s{sP}, s2, 0x10002", f"s_bfe_u32 s{sHH}, s2, 0x20003", f"s_lshr_b32 s{sBG}, s2, 5",
         f"s_lshl_b32 s{sH}, s{sHQ}, 2", f"s_add_u32 s{sH}, s{sH}, s{sHH}",
         "v_lshrrev_b32 v1, 6, v0", f"v_readfirstlane_b32 s{sW}, v1", "v_and_b32 v1, 63, v0",
         f"s_lshl_b32 s{sB}, s{sBG}, 2", f"s_add_u32 s{sB}, s{sB}, s{sW}"]
    a, b, c, d = vT, vT + 1, vT + 2, vT + 3
    P += [f"s_mul_i32 s{sSTG}, s{sW}, 12288", f"s_add_u32 s{sSTG}, s{sSTG}, {STG}", f"s_mul_i32 s{sT0}, s{sB}, 43008"]
    P += stage_dma_voff(vXD, 896, sT0)
    P += [f"s_lshl_b32 s{sM0B}, s{sW}, 12", f"s_and_b32 s{sT0}, s{sW}, 1", f"s_lshl_b32 s{sT0}, s{sT0}, 3",
          f"s_lshl_b32 s{sT1}, s{sW}, 16", f"s_lshl_b32 s{sSO}, s{sH}, 9", f"s_add_u32 s{sT1}, s{sT1}, s{sSO}",
          f"v_lshrrev_b32 v{a}, 5, v1", f"v_and_b32 v{b}, 31, v1", f"v_or_b32 v{c}, s{sT0}, v{a}", f"v_xor_b32 v{b}, v{b}, v{c}",
          f"v_lshlrev_b32 v{b}, 4, v{b}", f"v_lshl_add_u32 v{b}, v{a}, 13, v{b}", f"v_add_u32 v{vW}, s{sT1}, v{b}",
          f"v_xor_b32 v{c}, 64, v{vW}", f"v_add_u32 v{vW+1}, {16384-1024}, v{c}", f"v_add_u32 v{vW+2}, {2*(16384-1024)}, v{vW}", f"v_add_u32 v{vW+3}, {3*(16384-1024)}, v{c}"]
    P += [f"v_and_b32 v{a}, 15, v1", f"v_lshrrev_b32 v{b}, 4, v1", f"v_lshrrev_b32 v{c}, 1, v{a}", f"v_xor_b32 v{c}, v{c}, v{b}", f"v_lshlrev_b32 v{c}, 4, v{c}",
          f"v_lshl_add_u32 v{c}, v{a}, 7, v{c}", f"v_add_u32 v{vSR}, s{sSTG}, v{c}", f"v_xor_b32 v{c}, 64, v{c}", f"v_add_u32 v{vSR+1}, s{sSTG}, v{c}"]
    P += [f"s_cmp_eq_u32 s{sP}, 0"]
    for i, d_ in enumerate((sX, sK, sV, sWQ, sWO)):
        P.append(f"s_cselect_b64 s[{d_}:{d_+1}], s[{36+2*i}:{37+2*i}], s[{46+2*i}:{47+2*i}]")
    for d_, sz in ((sX, SZ_X), (sWQ, SZ_W), (sK, SZ_KV), (sV, SZ_KV), (sWO, SZ_W)):
        P += [f"s_mov_b32 s{d_+2}, {sz}", f"s_mov_b32 s{d_+3}, 0x20000"]
    P += srd(sOUT, 56, SZ_OUT) + srd(sWS, 60, SZ_WS) + srd(sDBG, 58, 256)
    P += [f"s_add_u32 s{sVH}, s60, {TAG_OFF}", f"s_addc_u32 s{sWH}, s61, 0"]
    P += [f"s_mov_b32 s{sXO}, 0", f"s_mov_b32 s{sWQO}, 0", f"s_mov_b32 s{sWQO+1}, {1 << 18}", f"s_mov_b32 s{sXO+1}, 128", f"s_mov_b32 s{sWQO+2}, {2 << 18}", f"s_mov_b32 s{sWQO+3}, {3 << 18}"]
    return P

def stage_dma_voff(vd, rowstride, sbase):
    a, b, c = vT, vT + 1, vT + 2
    return [f"v_lshrrev_b32 v{a}, 3, v1", f"v_and_b32 v{b}, 7, v1", f"v_lshrrev_b32 v{c}, 4, v1", f"v_xor_b32 v{b}, v{b}, v{c}", f"v_lshlrev_b32 v{b}, 4, v{b}",
            f"v_mul_u32_u24 v{a}, {rowstride}, v{a}", f"v_add3_u32 v{vd}, v{a}, v{b}, s{sbase}", f"v_xor_b32 v{b}, 64, v{b}", f"v_add3_u32 v{vd+1}, v{a}, v{b}, s{sbase}",
            f"v_add_u32 v{vd+1}, {8*rowstride - 1024}, v{vd+1}"]

def setup2(opt):
    P = []
    a, b, c, d, e = vT, vT + 1, vT + 2, vT + 3, vT + 4
    nl = opt['nlock']; nr = 7 - nl
    if opt['rot']:
        P += [f"s_lshl_b32 s{sCNT}, s{sHH}, 1", f"s_add_u32 s{sCNT}, s{sCNT}, s{sBG}"]
        for _ in range(3): P += [f"s_cmp_ge_u32 s{sCNT}, {nr}", f"s_cselect_b32 s{sSO}, {nr}, 0", f"s_sub_u32 s{sCNT}, s{sCNT}, s{sSO}"]
    else: P += [f"s_mov_b32 s{sCNT}, 0"]
    P += [f"s_add_u32 s{sCNT}, s{sCNT}, {nl}"]
    for j in range(2, nl):
        P += [f"s_mov_b32 s{sXO+j}, {j*128}", f"s_mov_b32 s{sWQO+2*j}, {j << 19}", f"s_mov_b32 s{sWQO+2*j+1}, {(j << 19) + (1 << 18)}"]
    for j in range(nl, 7):
        P += [f"s_lshl_b32 s{sXO+j}, s{sCNT}, 7", f"s_lshl_b32 s{sWQO+2*j}, s{sCNT}, 19", f"s_add_u32 s{sWQO+2*j+1}, s{sWQO+2*j}, {1 << 18}"]
        if j < 6: P += [f"s_add_u32 s{sCNT}, s{sCNT}, 1", f"s_cmp_eq_u32 s{sCNT}, 7", f"s_cselect_b32 s{sCNT}, {nl}, s{sCNT}"]
    P += [f"v_lshrrev_b32 v{a}, 4, v1", f"v_bfe_u32 v{b}, v1, 2, 2", f"v_and_b32 v{c}, 3, v1",
          f"v_lshl_add_u32 v{d}, v{a}, 3, v{b}", f"v_lshlrev_b32 v{d}, 9, v{d}",
          f"v_and_b32 v{a}, 1, v{a}", f"v_lshlrev_b32 v{a}, 3, v{a}",
          f"v_lshrrev_b32 v{e}, 1, v{b}", f"v_lshl_or_b32 v{a}, v{e}, 2, v{a}",
          f"v_and_b32 v{b}, 1, v{b}", f"v_or_b32 v{a}, v{a}, v{b}",
          f"v_xor_b32 v{a}, v{a}, v{c}", f"v_lshl_add_u32 v{d}, v{a}, 4, v{d}",
          f"v_and_b32 v{c}, 1, v{c}", f"v_lshl_add_u32 v{d}, v{c}, 3, v{d}"]
    for bb in range(4):
        for tau in range(2):
            P.append(f"v_xor_b32 v{vTR + bb*2 + tau}, {(bb << 6) | (tau << 3)}, v{d}")
            P.append(f"v_xor_b32 v{vTRH + bb*2 + tau}, {0x10000 | (bb << 6) | (tau << 3)}, v{d}")
    P += [f"s_lshl_b32 s{sSO}, s{sB}, 4", f"s_add_u32 s{sCNT}, s{sSO}, s{sH}", f"s_mul_i32 s{sSO2}, s{sCNT}, 24576"]
    P += stage_dma_voff(vKD, 512, sSO2)
    P += [f"s_mul_i32 s{sSO2}, s{sHH}, 24576", f"v_subrev_u32 v{vVD}, s{sSO2}, v{vKD}", f"v_subrev_u32 v{vVD+1}, s{sSO2}, v{vKD+1}"]
    P += [f"s_lshl_b32 s{sSO}, s{sP}, 9", f"s_add_u32 s{sSO}, s{sSO}, s{sCNT}", f"s_mul_i32 s{sSO}, s{sSO}, 4608",
          f"v_lshlrev_b32 v{a}, 4, v1", f"v_add_u32 v{vPA}, s{sSO}, v{a}", f"v_lshlrev_b32 v{a}, 3, v1", f"s_add_u32 s{sSO}, s{sSO}, 1024", f"v_add_u32 v{vPB}, s{sSO}, v{a}"]
    P += [f"s_mov_b32 s{sODD}, 0xffff0000", f"s_mov_b32 s{sODD+1}, 0xffff0000", f"s_mov_b32 s{sSC}, {fbits(SCALE)}"]
    for hn in range(4):
        src = sBG if opt['hrot'] else None
        if src is not None: P += [f"s_add_u32 s{sHB+hn}, s{src}, {hn}", f"s_and_b32 s{sHB+hn}, s{sHB+hn}, 3"]
        else: P += [f"s_mov_b32 s{sHB+hn}, {hn}"]
        if opt['urot']: P += [f"s_add_u32 s{sVU+hn}, s{sHH}, {hn}", f"s_and_b32 s{sVU+hn}, s{sVU+hn}, 3", f"s_lshl_b32 s{sVU+hn}, s{sVU+hn}, 7"]
        else: P += [f"s_mov_b32 s{sVU+hn}, {hn*128}"]
    for hf2 in range(2):
        P += [f"s_lshr_b32 s{sSO}, s{sW}, 1", f"s_add_u32 s{sSO}, s{sSO}, {2*hf2}"]
        if opt['urot']: P += [f"s_add_u32 s{sSO}, s{sSO}, s{sHH}"]
        P += [f"s_and_b32 s{sSO}, s{sSO}, 3", f"s_lshl_b32 s{sSO}, s{sSO}, 1", f"s_and_b32 s{sSO2}, s{sW}, 1", f"s_add_u32 s{sSO}, s{sSO}, s{sSO2}", f"s_mul_i32 s{sWOR+hf2}, s{sSO}, {32*896}"]
    P += [f"s_mul_i32 s{sWOM}, s{sW}, 7168"]
    P += [f"s_mul_i32 s{sSO}, s{sHH}, 224", f"s_mul_i32 s{sSO2}, s{sHQ}, {1024*896}", f"s_add_u32 s{sSO}, s{sSO}, s{sSO2}", f"s_mov_b32 s{sSO2}, {(1 << 32) // 14 + 1}"]
    for i in range(7):
        P += [f"v_add_u32 v{a}, {64*i}, v1", f"v_mul_hi_u32 v{b}, v{a}, s{sSO2}", f"v_mul_u32_u24 v{c}, 14, v{b}", f"v_sub_u32 v{c}, v{a}, v{c}",
              f"v_and_b32 v{a}, 19, v{b}", f"v_bfe_u32 v{d}, v{b}, 2, 1", f"v_lshl_or_b32 v{a}, v{d}, 3, v{a}", f"v_bfe_u32 v{d}, v{b}, 3, 1", f"v_lshl_or_b32 v{a}, v{d}, 2, v{a}",
              f"v_mul_u32_u24 v{a}, 896, v{a}", f"v_lshl_add_u32 v{a}, v{c}, 4, v{a}", f"v_add_u32 v{vWO+i}, s{sSO}, v{a}"]
        if i & 3: P += [f"v_subrev_u32 v{vWO+i}, {1024*(i & 3)}, v{vWO+i}"]
    P += [f"s_load_dword s{sTAG}, s[{sVH}:{sWH}], 0", f"s_add_u32 s{sTAG}, s{sTAG}, 1", f"s_bitset1_b32 s{sTAG}, 31",
          f"s_or_b32 s{sSO}, s2, s{sW}", f"s_cmp_lg_u32 s{sSO}, 0", "s_cbranch_scc1 Lnotag",
          f"v_mov_b32 v{a}, s{sTAG}", f"v_mov_b32 v{b}, 0", f"s_mov_b32 s{sSO}, {TAG_OFF}", "s_mov_b64 exec, 1",
          XI(f"buffer_store_dword v{a}, v{b}, s[{sWS}:{sWS+3}], s{sSO} offen sc1"), XI(f"buffer_store_dword v{a}, v{b}, s[{sDBG}:{sDBG+3}], 0 offen sc1"),
          "s_mov_b64 exec, -1", "s_nop 1", "Lnotag:"]
    return P

def XI(txt):
    i = I(txt); i.kind = 'xvm'; return i

def setup3(opt):
    a, b, c, d = vFR, vFR + 1, vFR + 2, vFR + 3
    P = [f"v_bfe_u32 v{a}, v1, 2, 3", f"v_lshrrev_b32 v{b}, 5, v1", f"v_lshl_add_u32 v{a}, v{b}, 4, v{a}", f"v_mul_u32_u24 v{a}, 224, v{a}",
         f"v_and_b32 v{b}, 3, v1", f"v_lshl_add_u32 v{vTW}, v{b}, 3, v{a}", f"v_add_u32 v{vTWH}, {2*SUP}, v{vTW}",
         f"s_mul_i32 s{sT0}, s{sHH}, 4608", f"v_subrev_u32 v{vP2A}, s{sT0}, v{vPA}", f"v_subrev_u32 v{vP2B}, s{sT0}, v{vPB}"]
    P += [f"s_lshl_b32 s{sT0}, s{sP}, 9", f"s_lshl_b32 s{sT1}, s{sB}, 4", f"s_add_u32 s{sT0}, s{sT0}, s{sT1}", f"s_lshl_b32 s{sT1}, s{sHQ}, 2", f"s_add_u32 s{sT0}, s{sT0}, s{sT1}",
          f"s_lshl_b32 s{sT0}, s{sT0}, 7", f"s_add_u32 s{sT0}, s{sT0}, {FLAG1_OFF}", f"v_lshlrev_b32 v{b}, 7, v{b}", f"v_add_u32 v{vF1A}, s{sT0}, v{b}"]
    P += [f"s_lshl_b32 s{sT0}, s{sP}, 3", f"s_add_u32 s{sT0}, s{sT0}, s{sBG}", f"s_lshl_b32 s{sT0}, s{sT0}, 2", f"s_add_u32 s{sT0}, s{sT0}, s{sHH}",
          f"s_lshl_b32 s{sT0}, s{sT0}, 2", f"s_add_u32 s{sT0}, s{sT0}, s{sW}",
          f"s_lshl_b32 s{sT1}, s{sT0}, 9", f"s_add_u32 s{sT1}, s{sT1}, {FLAG2_OFF}", f"v_add_u32 v{vF2A}, s{sT1}, v{b}"]
    P += [f"s_mul_i32 s{sT0}, s{sT0}, 98304", f"s_add_u32 s{sT0}, s{sT0}, {PART_OFF}",
          f"s_mul_i32 s{sT1}, s{sHQ}, 6144", f"s_add_u32 s{sT1}, s{sT1}, s{sT0}",
          f"v_lshrrev_b32 v{a}, 4, v1", f"v_mul_u32_u24 v{a}, 24576, v{a}", f"v_and_b32 v{c}, 15, v1", f"v_lshl_add_u32 v{a}, v{c}, 4, v{a}", f"v_add_u32 v{vST}, s{sT1}, v{a}",
          f"s_mul_i32 s{sT1}, s{sHQ}, 24576", f"s_add_u32 s{sT1}, s{sT1}, s{sT0}", f"v_lshlrev_b32 v{a}, 4, v1", f"v_add_u32 v{vLD}, s{sT1}, v{a}"]
    P += [f"s_mul_i32 s{sT0}, s{sB}, {48*1792}", f"s_mul_i32 s{sT1}, s{sP}, 896", f"s_add_u32 s{sT0}, s{sT0}, s{sT1}", f"s_mul_i32 s{sT1}, s{sHH}, 224", f"s_add_u32 s{sT0}, s{sT0}, s{sT1}",
          f"s_lshl_b32 s{sT1}, s{sHQ}, 3", f"s_add_u32 s{sT0}, s{sT0}, s{sT1}", f"v_mul_u32_u24 v{c}, 1792, v{c}", f"v_add_u32 v{c}, s{sT0}, v{c}"]
    for i in range(6):
        P += [f"v_lshrrev_b32 v{a}, 4, v1", f"v_add_u32 v{a}, {4*i}, v{a}", f"v_mul_u32_u24 v{b}, 43, v{a}", f"v_lshrrev_b32 v{b}, 7, v{b}", f"v_mul_u32_u24 v{d}, 3, v{b}", f"v_sub_u32 v{d}, v{a}, v{d}",
              f"v_mul_u32_u24 v{d}, {16*1792}, v{d}", f"v_lshl_add_u32 v{d}, v{b}, 5, v{d}", f"v_add_u32 v{vOUT+i}, v{c}, v{d}"]
        if i == 5: P += [f"v_cmp_lt_u32 vcc, 20, v{a}", f"v_mov_b32 v{b}, 0x7fffffff", f"v_cndmask_b32 v{vOUT+i}, v{vOUT+i}, v{b}, vcc"]
    return P

class Stager:
    def __init__(self, nsl): self.nsl = nsl; self.n = 0
    def tile(self, vdma, srd_, so_ins, pol, dst0, dst1):
        n = self.n; self.n += 1
        slot = n % self.nsl
        pre = [WaitTag(f"sr{n - self.nsl}")] if n >= self.nsl else []
        iss = [pre + [f"s_add_u32 m0, s{sSTG}, {slot*2048}"] + so_ins + [I(f"buffer_load_dwordx4 v{vdma}, s[{srd_}:{srd_+3}], s{sSO2} offen{pol} lds", tag=f"sd{n}")],
               [I(f"buffer_load_dwordx4 v{vdma+1}, s[{srd_}:{srd_+3}], s{sSO2} offen offset:1024{pol} lds", tag=f"sd{n}")]]
        rd = [WaitTag(f"sd{n}"), I(f"ds_read_b128 {dst0}, v{vSR} offset:{slot*2048}", tag=f"sr{n}"), I(f"ds_read_b128 {dst1}, v{vSR+1} offset:{slot*2048}", tag=f"sr{n}")]
        return iss, rd

def g_w(s, opt):
    slot = (s % RING) * SLAB
    return [([f"s_add_u32 m0, s{sM0B}, {slot}", "s_nop 0"] if i == 0 else []) +
            [I(f"buffer_load_dwordx4 v{vW+i}, s[{sWQ}:{sWQ+3}], s{sWQO+s} offen offset:{i*1024}{opt['wq_pol']} lds", tag=f"slab{s}")] for i in range(4)]
def g_wo(j, opt):
    hn, half = divmod(j, 2)
    out = []
    for i in range(7):
        pre = []
        if i in (0, 4): pre += [f"s_add_u32 m0, s{sWOM}, {(j % R2) * SUP + i * 1024}"]
        if i == 0: pre += [f"s_mul_i32 s{sWH}, s{sHB+hn}, {256*896}", f"s_add_u32 s{sWH}, s{sWH}, s{sWOR+half}"]
        if i == 4: pre += ["s_nop 0"]
        out.append(pre + [I(f"buffer_load_dwordx4 v{vWO+i}, s[{sWO}:{sWO+3}], s{sWH} offen offset:{(i & 3)*1024}{opt['wo_pol']} lds", tag=f"sup{j}")])
    return out
def g_p(hn, opt):
    out = []
    o = (hn & 1) * 6
    for mt in range(3):
        pre = [f"s_mul_i32 s{sSO}, s{sHB+hn}, 4608"] if mt == 0 else []
        out.append(pre + [f"buffer_load_dwordx4 {A(aP + mt*12 + o, 4)}, v{vP2A}, s[{sWS}:{sWS+3}], s{sSO} offen offset:{mt*1536} sc1"])
        out.append([f"buffer_load_dwordx2 {A(aP + mt*12 + o + 4, 2)}, v{vP2B}, s[{sWS}:{sWS+3}], s{sSO} offen offset:{mt*1536} sc1"])
    return out

def tr_reads(T):
    ks, t = divmod(T, 16)
    sp, tau = divmod(t, 2)
    ap, bp = divmod(sp, 4)
    slot = ks % RING
    base = (vTR if slot < 4 else vTRH) + bp * 2 + tau
    off = (slot % 4) * SLAB + ap * 256
    d = vFR + (T % NS) * 4
    return [f"ds_read_b64_tr_b16 {V(d, 2)}, v{base} offset:{off}", f"ds_read_b64_tr_b16 {V(d+2, 2)}, v{base} offset:{off + 2048}"]
def wo_reads(F):
    sig, nt = divmod(F, 7)
    j, sl = divmod(sig, 4)
    ss = j % R2
    base = vTW if ss < 2 else vTWH
    off = (ss % 2) * SUP + sl * 7168 + nt * 32
    d = vFR + (F % NS) * 4
    return [f"ds_read_b64_tr_b16 {V(d, 2)}, v{base} offset:{off}", f"ds_read_b64_tr_b16 {V(d+2, 2)}, v{base} offset:{off + 1792}"]

def softmax_block(sacc, m, t, pk):
    sv = lambda mt: [sacc(kt, mt) + r for kt in range(3) for r in range(4)]
    Q = []
    for mt in range(3):
        x = sv(mt)
        Q.append(f"v_max3_f32 v{m[mt]}, v{x[0]}, v{x[1]}, v{x[2]}")
    for j in range(4):
        for mt in range(3):
            x = sv(mt); Q.append(f"v_max3_f32 v{m[mt]}, v{m[mt]}, v{x[3+2*j]}, v{x[4+2*j]}")
    for mt in range(3): Q.append(f"v_max_f32 v{m[mt]}, v{m[mt]}, v{sv(mt)[11]}")
    def xred(op):
        o = []
        for pl in ('v_permlane32_swap_b32', 'v_permlane16_swap_b32'):
            o += [f"v_mov_b32 v{t[mt]}, v{m[mt]}" for mt in range(3)]
            o += [f"{pl} v{m[mt]}, v{t[mt]}" for mt in range(3)]
            o += [f"{op} v{m[mt]}, v{m[mt]}, v{t[mt]}" for mt in range(3)]
        return o
    Q += xred('v_max_f32')
    Q += [f"v_mul_f32 v{m[mt]}, s{sSC}, v{m[mt]}" for mt in range(3)]
    for j in range(12):
        Q += [f"v_fma_f32 v{sv(mt)[j]}, v{sv(mt)[j]}, s{sSC}, -v{m[mt]}" for mt in range(3)]
        Q += [f"v_exp_f32 v{sv(mt)[j]}, v{sv(mt)[j]}" for mt in range(3)]
    Q += [f"v_add_f32 v{m[mt]}, v{sv(mt)[0]}, v{sv(mt)[1]}" for mt in range(3)]
    for j in range(2, 12):
        Q += [f"v_add_f32 v{m[mt]}, v{m[mt]}, v{sv(mt)[j]}" for mt in range(3)]
    Q += xred('v_add_f32')
    Q += [f"v_rcp_f32 v{m[mt]}, v{m[mt]}" for mt in range(3)]
    for mt in range(3):
        x = sv(mt)
        for j in range(12): Q.append(f"v_mul_f32 v{x[j]}, v{x[j]}, v{m[mt]}")
        for j in range(6): Q.append(f"v_cvt_pk_bf16_f32 v{pk + mt*6 + j}, v{x[2*j]}, v{x[2*j+1]}")
        Q.append(I(f"buffer_store_dwordx4 {V(pk + mt*6, 4)}, v{vPA}, s[{sWS}:{sWS+3}], 0 offen offset:{mt*1536} sc1", tag="pst"))
        Q.append(I(f"buffer_store_dwordx2 {V(pk + mt*6 + 4, 2)}, v{vPB}, s[{sWS}:{sWS+3}], 0 offen offset:{mt*1536} sc1", tag="pst"))
    return Q

def spin(label, load, cmp_):
    return [f"{label}:", f"s_mov_b32 s{sCNT}, 0x40000", f"{label}_l:", "s_sleep 2", load, "s_waitcnt vmcnt(0)", cmp_, "s_nop 4", "s_cmp_eq_u64 vcc, 0", f"s_cbranch_scc1 {label}_r",
            f"s_sub_u32 s{sCNT}, s{sCNT}, 1", f"s_cmp_lg_u32 s{sCNT}, 0", f"s_cbranch_scc1 {label}_l", f"s_branch {label}_r"]

def build(opt):
    st = opt['st']
    sg = Stager(6)
    P = prologue(opt)
    tl = Timeline()
    LA = 4
    for ks in range(14):
        for t in range(16):
            T = ks * 16 + t
            af = vFR + (T % NS) * 4
            for mt in range(3):
                c = '0' if ks == 0 else V(acc(t, mt), 4)
                idx = tl.add(f"v_mfma_f32_16x16x32_bf16 {V(acc(t, mt), 4)}, {V(af, 4)}, {A(xreg(ks, mt), 4)}, {c}")
                if mt < 2 and T + LA < 224: tl.at(idx, tr_reads(T + LA)[mt])
        pre = ([WaitTag(f"slab{ks+1}")] if ks < 13 else []) + ["s_barrier"]
        if ks == 0: pre += (st() if 0 in opt['stk'] else []) + flat([tr_reads(T) for T in range(LA)])
        tl.at(ks * 48 - 1, *pre)
    b13 = 13 * 48
    cv = []
    for sp in range(8):
        for mt in range(3):
            t0, t1 = acc(2 * sp, mt), acc(2 * sp + 1, mt)
            cv += [f"v_cvt_pk_bf16_f32 v{t0}, v{t0}, v{t0+1}", f"v_cvt_pk_bf16_f32 v{t0+1}, v{t0+2}, v{t0+3}",
                   f"v_cvt_pk_bf16_f32 v{t0+2}, v{t1}, v{t1+1}", f"v_cvt_pk_bf16_f32 v{t0+3}, v{t1+2}, v{t1+3}"]
        sw = [f"s_mov_b64 exec, s[{sODD}:{sODD+1}]"]
        for mt in range(3):
            t0 = acc(2 * sp, mt)
            sw += [f"v_swap_b32 v{t0}, v{t0+2}", f"v_swap_b32 v{t0+1}, v{t0+3}"]
        sw.append("s_mov_b64 exec, -1")
        cv.append(sw)
    pos = b13 + 10; cnt = 0
    for c in cv:
        if isinstance(c, list): tl.at(pos, *c); pos += 3; cnt = 0
        else:
            tl.at(pos, c); cnt += 1
            if cnt == 2: cnt = 0; pos += 1
    sacc = lambda kt, mt: acc(2 * kt + 1, mt)
    for sp in range(8):
        for mt in range(3):
            for kt in range(3):
                c = '0' if sp == 0 else V(sacc(kt, mt), 4)
                tl.add(f"v_mfma_f32_16x16x32_bf16 {V(sacc(kt, mt), 4)}, {A(kreg(sp, kt), 4)}, {V(acc(2*sp, mt), 4)}, {c}")
    if 1 in opt['stk']: tl.at(b13 + 47, *st())
    s3 = setup3(opt)
    p0 = pos + 1
    for q in range(0, len(s3), 3): tl.at(min(p0 + q // 3, 743), *s3[q:q+3])
    tagld = f"buffer_load_dword v{vF}, off, s[{sDBG}:{sDBG+3}], 0 sc1"
    tl.at(640, tagld)
    f0 = acc(7, 0)
    sm = softmax_block(sacc, [f0, f0 + 1, f0 + 2], [f0 + 3, f0 + 4, f0 + 5], 208)
    sm_start = len(tl.main)
    for q in range(0, len(sm), 4):
        idx = tl.add(sm[q]); tl.at(idx, *sm[q+1:q+4])
    sm_end = len(tl.main)
    for _ in range(opt['gap']): tl.add(None)
    s2s = len(tl.main)
    oline = []
    tagchk = [f"v_cmp_eq_u32 vcc, 0, v{vF}", "s_cmp_eq_u64 vcc, 0", "s_cbranch_scc0 Ltag", "Ltag_r:", f"v_readfirstlane_b32 s{sTAG}, v{vF}"]
    oline += spin("Ltag", tagld, f"v_cmp_eq_u32 vcc, 0, v{vF}")
    tl.at(sm_start + 2, *tagchk)
    kstart = {}
    oinit = set()
    def pu(us):
        for nt in range(7):
            for u in us:
                ub = vUB + nt * 12 + u * 4
                for mt in range(3):
                    c = A(oacc(nt, mt), 4) if (nt, mt) in oinit else '0'
                    oinit.add((nt, mt))
                    tl.add(f"v_mfma_f32_16x16x32_bf16 {A(oacc(nt, mt), 4)}, {V(ub, 4)}, {A(aP + mt*12 + u*4, 4)}, {c}")
    pustart = {}
    for hn in range(4):
        for s in range(8):
            sig = hn * 8 + s
            kstart[sig] = len(tl.main)
            for nt in range(7):
                F = sig * 7 + nt
                bf = vFR + (F % NS) * 4
                for kt in range(3):
                    c = '0' if s == 0 else V(uacc(kt, nt), 4)
                    idx = tl.add(f"v_mfma_f32_16x16x32_bf16 {V(uacc(kt, nt), 4)}, {A(vfrag(sig, kt), 4)}, {V(bf, 4)}, {c}")
                    if kt < 2 and F + LA < 224: tl.at(idx, wo_reads(F + LA)[kt])
                if s == 7:
                    ub = vUB + nt * 12 + (hn % 2) * 6
                    for kt in range(3):
                        u = uacc(kt, nt)
                        tl.at(idx + 4 + kt, f"v_cvt_pk_bf16_f32 v{ub+2*kt}, v{u}, v{u+1}", f"v_cvt_pk_bf16_f32 v{ub+2*kt+1}, v{u+2}, v{u+3}")
        pustart[hn] = len(tl.main)
        if hn == 1: pu([0, 1, 2])
        elif hn == 2: pu([0])
        elif hn == 3: pu([1, 2])
    kstart[32] = len(tl.main)
    for j in range(7):
        base = kstart[4 * j]
        if j == 0: pre = [WaitTag("sup0", "sup1"), "s_barrier"] + (st() if 2 in opt['stk'] else []) + flat([wo_reads(F) for F in range(LA)])
        else: pre = [WaitTag(f"sup{j+1}"), "s_barrier"]
        tl.at(base - 1, *pre)
    tl.at(sm_end + opt['pubd'], WaitTag("pst"), f"v_mov_b32 v{vF}, s{sTAG}", f"s_lshl_b32 s{sT0}, s{sHH}, 7", "s_mov_b64 exec, 1",
          f"buffer_store_dword v{vF}, v{vF1A}, s[{sWS}:{sWS+3}], s{sT0} offen sc1", "s_mov_b64 exec, -1")
    pace = {'m': opt['mp'], 'h': opt['hp']}; lag = {'m': opt['ml'], 'h': opt['hl']}
    cur = opt['start']; rdpos = []; rep = []
    f1ld = f"buffer_load_dword v{vF}, v{vF1A}, s[{sWS}:{sWS+3}], 0 offen sc1"
    f1cmp = f"v_cmp_ne_u32 vcc, s{sTAG}, v{vF}"
    for n_, (kind, idx, cls) in enumerate(opt['sched']):
        if kind == 'W':
            if idx >= RING: cur = max(cur, 48 * (idx - RING + 1))
            for it in g_w(idx, opt): tl.at(cur, *it); cur += pace[cls]
            rep.append(f"W{idx}:{48*max(idx-1,0) - 1 - (cur - pace[cls])}")
        elif kind == 'O':
            e = {0: 48 * 9, 1: 48 * 11, 2: 48 * 13}.get(idx)
            if e is None: e = kstart[4 * (idx - 3)]
            cur = max(cur, e)
            for it in g_wo(idx, opt): tl.at(cur, *it); cur += pace[cls]
            rep.append(f"O{idx}:{kstart[4*max(idx-1,0)] - 1 - (cur - pace[cls])}")
        elif kind == 'F':
            cur = max(cur, idx + s2s)
            tl.at(cur, f1ld); cur += lag['h']
            tl.at(cur, f1cmp, "s_cmp_eq_u64 vcc, 0", "s_cbranch_scc0 Lf1", "Lf1_r:")
            oline += spin("Lf1", f1ld, f1cmp)
        elif kind == 'P':
            if idx >= 2: cur = max(cur, kstart[16])
            for it in g_p(idx, opt): tl.at(cur, *it); cur += pace[cls]
            rep.append(f"P{idx}:{pustart[max(idx,1)] - cur}")
        else:
            for q in range(3):
                if kind == 'X':
                    iss, rd = sg.tile(vXD, sX, [f"s_add_u32 s{sSO2}, s{sXO+idx}, {q*14336}"], opt['x_pol'], A(xreg(2*idx, q), 4), A(xreg(2*idx+1, q), 4))
                    dl = 96 * idx - 6; er = -9999
                elif kind == 'K':
                    iss, rd = sg.tile(vKD, sK, [f"s_mov_b32 s{sSO2}, {q*8192 + idx*128}"], opt['k_pol'], A(kreg(2*idx, q), 4), A(kreg(2*idx+1, q), 4))
                    dl = 672 + 18 * idx - 6; er = 48 if (idx == 3 and q >= 1) else -9999
                else:
                    hn, j = divmod(idx, 4)
                    so = ([f"s_mul_i32 s{sVH}, s{sHB+hn}, 24576", f"s_add_u32 s{sVH}, s{sVH}, s{sVU+j}"] if q == 0 else []) + [f"s_add_u32 s{sSO2}, s{sVH}, {q*8192}"]
                    iss, rd = sg.tile(vVD, sV, so, opt['v_pol'], A(vfrag(2*idx, q), 4), A(vfrag(2*idx+1, q), 4))
                    dl = kstart[2 * idx] - 6
                    er = -9999
                    for e in range(2):
                        f = (2 * idx + e) * 3 + q
                        if f >= NVF:
                            ps, pk_ = divmod(f - NVF, 3); er = max(er, kstart[ps + 1] if (ps + 1) % 8 else pustart[ps // 8])
                        else:
                            r = aV + f * 4; er = max(er, 48 * (r // 12 + 1) if (r % 12) <= 8 else 48 * (r // 12 + 2))
                n = len(rdpos)
                if n >= sg.nsl: cur = max(cur, rdpos[n - sg.nsl] + 4)
                cur = max(cur, er - lag[cls])
                tl.at(cur, *iss[0]); tl.at(cur, *iss[1]); last = cur; cur += 2 * pace[cls]
                rp = max(min(last + pace[cls] + lag[cls], dl), er, last)
                if rdpos: rp = max(rp, rdpos[-1])
                if rp == -1: rp = -2
                if rp > dl and dl >= 0: print("LATE", kind, idx, q, rp, dl)
                assert rp <= dl + 5 or dl < 0, (kind, idx, rp, dl)
                tl.at(rp, *rd); rdpos.append(rp)
                rep.append(f"{kind}{idx}.{q}:{rp - last}")
        if n_ == opt['s2at']: tl.at(cur - 1, *setup2(opt))
    for sp_ in opt.get('stp', ()): tl.at(sp_, *st())
    if opt.get('verbose'): print(" ".join(rep), "end", cur, "s2s", s2s, "total", len(tl.main))
    body = tl.flat()
    if opt.get('strip') == 1:
        txt = lambda x: x if isinstance(x, str) else getattr(x, 'txt', '')
        body = [x for x in body if not (txt(x).startswith('v_mfma') or txt(x).startswith('ds_read_b64_tr') or txt(x).startswith('v_cvt') or txt(x).startswith('v_exp') or txt(x).startswith('v_swap'))]
    if opt.get('strip') == 2:
        nb = []
        for x in body:
            t = x if isinstance(x, str) else getattr(x, 'txt', '')
            if t.startswith('buffer_load_dwordx4') and ' lds' in t:
                y = I("s_nop 0"); y.tag = x.tag; nb.append(y)
            else: nb.append(x)
        body = nb
    P += body + (st() if 3 in opt['stk'] else [])
    for nt in range(7):
        for mt in range(3):
            tile = nt * 3 + mt
            so = '0' if tile < 16 else f"s{sSO}"
            if tile == 16: P += [f"s_mov_b32 s{sSO}, 4096"]
            P += [f"buffer_store_dwordx4 {A(oacc(nt, mt), 4)}, v{vST}, s[{sWS}:{sWS+3}], {so} offen offset:{(tile % 16)*256} sc1"]
    f2ld = f"buffer_load_dword v{vF}, v{vF2A}, s[{sWS}:{sWS+3}], 0 offen sc1"
    P += [f"v_mov_b32 v{vF}, s{sTAG}", f"s_lshl_b32 s{sT0}, s{sHQ}, 7", Fence(), "s_mov_b64 exec, 1",
          f"buffer_store_dword v{vF}, v{vF2A}, s[{sWS}:{sWS+3}], s{sT0} offen sc1", "s_mov_b64 exec, -1", "s_nop 1",
          f2ld, f1cmp, "s_cmp_eq_u64 vcc, 0", "s_cbranch_scc0 Lf2", "Lf2_r:"]
    oline += spin("Lf2", f2ld, f1cmp)
    P += (st() if 4 in opt['stk'] else [])
    for i in range(6):
        for src in range(4):
            off = src * 6144 + i * 1024
            P += [f"s_mov_b32 s{sSO}, {off}", f"buffer_load_dwordx4 {V(64 + (i*4+src)*4, 4)}, v{vLD}, s[{sWS}:{sWS+3}], s{sSO} offen sc1"]
    for i in range(6):
        b = 64 + i * 16
        for r in range(4): P += [f"v_add_f32 v{b+r}, v{b+r}, v{b+4+r}", f"v_add_f32 v{b+8+r}, v{b+8+r}, v{b+12+r}"]
        for r in range(4): P += [f"v_add_f32 v{b+r}, v{b+r}, v{b+8+r}"]
        P += [f"v_cvt_pk_bf16_f32 v{b}, v{b}, v{b+1}", f"v_cvt_pk_bf16_f32 v{b+1}, v{b+2}, v{b+3}", f"buffer_store_dwordx2 {V(b, 2)}, v{vOUT+i}, s[{sOUT}:{sOUT+3}], 0 offen"]
    P += (st() if 5 in opt['stk'] else []) + st.dump() + ["Lend:", "s_endpgm"]
    lines, stats = finalize(P)
    print(stats, len(lines))
    lines += oline
    hdr = open('concat_heads__mha_block_cached__gqa_block_cached__near_ridge.s.ref').read().split('; Override')[0]
    txt = hdr + "; @launch grid=(256,1,1) block=(256,1,1) lds=163840\n" + '.amdgcn_target "amdgcn-amd-amdhsa--gfx950"\n.text\n'
    txt += f".globl {NAME}\n.p2align 8\n.type {NAME},@function\n{NAME}:\n" + "\n".join("  " + l if not l.endswith(':') else l for l in lines) + "\n"
    txt += (f'.section .rodata,"a"\n.p2align 6\n.amdhsa_kernel {NAME}\n  .amdhsa_next_free_vgpr 512\n  .amdhsa_next_free_sgpr 102\n  .amdhsa_accum_offset 256\n'
            "  .amdhsa_group_segment_fixed_size 0\n  .amdhsa_kernarg_size 104\n  .amdhsa_user_sgpr_count 2\n  .amdhsa_user_sgpr_kernarg_segment_ptr 1\n"
            "  .amdhsa_system_sgpr_workgroup_id_x 1\n.end_amdhsa_kernel\n")
    return txt

def parse_sched(s):
    out = []
    for t in s.split():
        k, rest = t[0], t[1:]
        cls = 'h'
        if rest.endswith('m'): cls = 'm'; rest = rest[:-1]
        out.append((k, int(rest), cls))
    return out
SCHED = ("X0m W0m W1m X1m W2m W3m X2m W4m W5m W6 X3 W7 W8 X4 W9 W10 X5 W11 X6 W12 W13 K0m K1m K2m K3m V0m O0m O1m V4m V1 V2 V3 O2m "
         "O3m V5 V6 F60 V7 P0 P1 V8m O4 V9 O5 V10 V11 V12m O6 P2 P3 V13 O7 V14 V15")

if __name__ == "__main__":
    opt = dict(wq_pol='', x_pol='', k_pol=' nt', v_pol='', wo_pol='', rot=1, nlock=2, hrot=1, urot=1, st=Stamps(False), stk=(0, 1, 2, 4, 5), mp=7, hp=3, ml=80, hl=36, gap=80,
               start=-160, verbose=1, s2at=2, pubd=30, sched=SCHED)
    for kv in sys.argv[2:]:
        k, v = kv.split('=')
        if k == 'st': opt['st'] = Stamps(True); opt['stk'] = tuple(int(x) for x in v.split(','))
        elif k == 'stp': opt['st'] = Stamps(True); opt['stk'] = (); opt['stp'] = tuple(int(x) for x in v.split(','))
        elif k == 'sched': opt[k] = v
        else: opt[k] = ((' ' + v) if v else '') if k.endswith('pol') else int(v)
    opt['sched'] = parse_sched(opt['sched'])
    open(sys.argv[1], "w").write(build(opt))
```

```python
import re

_REG = re.compile(r'(?<![\w.])([vas])(?:\[(\d+):(\d+)\]|(\d+))(?![\w])')
def regs_of(op):
    out = []
    for m in _REG.finditer(op):
        k = m.group(1)
        if m.group(2) is not None:
            out += [f"{k}{i}" for i in range(int(m.group(2)), int(m.group(3)) + 1)]
        else:
            out.append(f"{k}{m.group(4)}")
    for sp in ('vcc', 'exec', 'm0'):
        if re.search(r'(?<![\w])' + sp + r'(?![\w])', op): out.append(sp)
    return out

def R(k, base, n=1):
    return f"{k}{base}" if n == 1 else f"{k}[{base}:{base+n-1}]"
def V(b, n=1): return R('v', b, n)
def A(b, n=1): return R('a', b, n)
def S(b, n=1): return R('s', b, n)

TRANS = ('v_exp_f32', 'v_log_f32', 'v_rcp_f32', 'v_rsq_f32', 'v_sqrt_f32', 'v_sin_f32', 'v_cos_f32')

class I:
    __slots__ = ('txt', 'kind', 'rd', 'wr', 'tag', 'srcc', 'ab', 'states', 'wtags', 'size')
    def __init__(self, txt, tag=None):
        self.txt = txt; self.tag = tag; self.srcc = []; self.ab = []; self.states = 1; self.wtags = None
        parts = txt.split(None, 1)
        op = parts[0]; rest = parts[1] if len(parts) > 1 else ''
        ops = [o.strip() for o in re.split(r',(?![^\[]*\])', rest)] if rest else []
        rd, wr = [], []
        allr = lambda xs: [r for o in xs for r in regs_of(o)]
        if op.startswith('v_mfma'):
            k = 'mfma'; wr = regs_of(ops[0]); self.ab = allr(ops[1:3]); self.srcc = regs_of(ops[3]); rd = self.ab + self.srcc
        elif op.startswith('buffer_load') or op.startswith('global_load'):
            if re.search(r'\blds\b', txt) or '_lds_' in op:
                k = 'dma'; rd = allr(ops) + ['m0']
            else:
                k = 'vld'; wr = regs_of(ops[0]); rd = allr(ops[1:])
        elif op.startswith('buffer_store') or op.startswith('global_store'):
            k = 'vst'; rd = allr(ops)
        elif op.startswith('buffer_atomic') or op.startswith('global_atomic'):
            k = 'vst'; rd = allr(ops)
            if 'sc0' in txt: k = 'vld'; wr = regs_of(ops[0])
        elif op in ('buffer_wbl2', 'buffer_inv'):
            k = 'vst'
        elif op.startswith('ds_read') or op.startswith('ds_bpermute') or op.startswith('ds_swizzle'):
            k = 'dsr'; wr = regs_of(ops[0]); rd = allr(ops[1:])
        elif op.startswith('ds_write'):
            k = 'dsw'; rd = allr(ops)
        elif op.startswith('s_load') or op in ('s_memtime', 's_memrealtime'):
            k = 'smem'; wr = regs_of(ops[0]); rd = allr(ops[1:])
        elif op == 's_nop':
            k = 'nop'; self.states = int(ops[0], 0) + 1
        elif op == 's_barrier': k = 'bar'
        elif op == 's_waitcnt': k = 'wait'
        elif op.startswith('s_cbranch') or op == 's_branch' or op == 's_endpgm' or op == 's_setprio' or op == 's_sleep':
            k = 'ctl'
        elif op.startswith('s_cmp'):
            k = 'salu'; rd = allr(ops)
        elif op.startswith('s_'):
            k = 'salu'; wr = regs_of(ops[0]); rd = allr(ops[1:])
            if 'saveexec' in op: wr = wr + ['exec']; rd = rd + ['exec']
        elif op.startswith('v_permlane') or op == 'v_swap_b32':
            k = 'perm' if op.startswith('v_permlane') else 'valu'; rd = allr(ops); wr = list(rd)
        elif op.startswith('v_readfirstlane') or op.startswith('v_readlane'):
            k = 'rfl'; wr = regs_of(ops[0]); rd = allr(ops[1:])
        elif op.startswith('v_'):
            k = 'trans' if op.replace('_e32', '').replace('_e64', '') in TRANS else 'valu'
            wr = regs_of(ops[0]); rd = allr(ops[1:])
            if op.startswith('v_fmac') or op.startswith('v_pk_fmac') or op.startswith('v_dot2c'): rd = rd + wr
            if op.startswith('v_dot2'): k = 'dot'
            if '_co_' in op or op.startswith('v_div_scale'): wr = wr + regs_of(ops[1]); rd = allr(ops[2:])
            if 'dpp' in txt or 'row_' in txt: k = 'dpp'
        elif op.endswith(':') or op.startswith('.'):
            k = 'label'; self.states = 0
        else:
            raise ValueError("unknown op " + txt)
        self.kind = k; self.rd = rd; self.wr = wr

class WaitTag:
    def __init__(self, *tags): self.tags = set(tags)
class Fence:
    def __init__(self, vm=True, lgkm=True): self.vm = vm; self.lgkm = lgkm
class Raw:
    def __init__(self, txt): self.txt = txt

VALUISH = ('valu', 'trans', 'perm', 'rfl', 'dpp', 'dot')
VMEMISH = ('vld', 'vst', 'dma')

def finalize(prog, strict_max=True, log=None, quiet=False):
    out = []
    vm = []
    lg = []
    seen = set()
    written = {'s0', 's1', 's2', 'v0', 'exec'}
    stats = {'nops': 0, 'waits': 0, 'maxvm': 0, 'maxlg': 0}
    def emit(i): out.append(i)
    def do_wait(nvm, nlg):
        parts = []
        if nvm is not None:
            nvm = min(nvm, 63); parts.append(f"vmcnt({nvm})"); del vm[:max(0, len(vm) - nvm)]
        if nlg is not None:
            nlg = min(nlg, 15); parts.append(f"lgkmcnt({nlg})"); del lg[:max(0, len(lg) - nlg)]
        if parts:
            emit(I("s_waitcnt " + " ".join(parts))); stats['waits'] += 1
    def need(lst, pred):
        n = None
        for idx, e in enumerate(lst):
            if pred(e): n = len(lst) - 1 - idx
        return n
    def lg_need(pred):
        n = need(lg, pred)
        if n is not None and any(e.kind == 'smem' for e in lg): n = 0
        return n
    for it in prog:
        if isinstance(it, str): it = I(it)
        if isinstance(it, WaitTag):
            for tg in it.tags: assert tg in seen, f"WaitTag {tg} before its op was issued"
            do_wait(need(vm, lambda e: e.tag in it.tags), lg_need(lambda e: e.tag in it.tags)); continue
        if isinstance(it, Fence):
            do_wait(0 if it.vm and vm else None, 0 if it.lgkm and lg else None); continue
        if isinstance(it, Raw):
            emit(I("s_nop 7")); emit(I("s_nop 7"))
            for ln in it.txt.strip().split("\n"):
                r = I("s_nop 0"); r.txt = ln; r.kind = 'raw'; r.rd = []; r.wr = []; emit(r)
            emit(I("s_nop 7")); emit(I("s_nop 7"))
            continue
        touched = set(it.rd) | set(it.wr)
        unw = [r for r in it.rd if r not in written]
        if unw and not quiet: print('UNWRITTEN', unw, 'in', it.txt)
        written.update(it.wr); written.update(unw)
        if touched:
            a = need(vm, lambda e: e.wr and not touched.isdisjoint(e.wr))
            b = lg_need(lambda e: e.wr and not touched.isdisjoint(e.wr))
            do_wait(a, b)
        if it.kind in ('dsr', 'dsw', 'smem') and len(lg) >= 15: do_wait(None, 0 if any(e.kind == 'smem' for e in lg) else 14)
        req = 0; gap = 0
        rdS, wrS = set(it.rd), set(it.wr)
        for pv in reversed(out):
            if gap > 24: break
            n = 0
            pw = set(pv.wr)
            if pv.kind in VALUISH:
                vw = {r for r in pw if r[0] in 'va' and r not in ('vcc',)}
                sw = {r for r in pw if r[0] == 's' or r == 'vcc'}
                if it.kind == 'mfma' and vw & rdS: n = max(n, 2)
                if it.kind in ('perm', 'dpp') and vw & rdS: n = max(n, 2)
                if it.kind == 'rfl' and vw & rdS: n = max(n, 1)
                if pv.kind == 'trans' and it.kind in VALUISH and it.kind != 'trans' and vw & rdS: n = max(n, 1)
                if pv.kind == 'dot' and it.kind != 'dot' and vw & (rdS | wrS): n = max(n, 3)
                if it.kind in VMEMISH and sw & rdS: n = max(n, 5)
                if it.kind in VALUISH and sw & rdS: n = max(n, 4 if it.kind == 'rfl' else 2)
                if it.kind in ('salu', 'smem') and sw & rdS: n = max(n, 2)
                if 'exec' in pw: n = max(n, 5)
            elif pv.kind == 'mfma':
                if it.kind == 'mfma':
                    if pw & set(it.ab): n = max(n, 8)
                    ov = pw & set(it.srcc)
                    if ov and (it.srcc != pv.wr): n = max(n, 6)
                    if not ov and pw & wrS and it.wr != pv.wr: n = max(n, 8)
                elif (pw & (rdS | wrS)): n = max(n, 8)
                if it.kind in VALUISH and set(pv.srcc) & wrS: n = max(n, 3)
            elif pv.kind == 'salu':
                if 'm0' in pw and it.kind == 'dma': n = max(n, 1)
            elif pv.kind == 'vst':
                if ('x4' in pv.txt or 'x3' in pv.txt) and set(pv.rd) & wrS: n = max(n, 2)
            if n - gap > req: req = n - gap
            gap += pv.states
        if req > 0:
            emit(I(f"s_nop {req-1}")); stats['nops'] += req
            if log is not None: log.append((len(out), it.txt, req))
        emit(it)
        if it.tag: seen.add(it.tag)
        if it.kind in VMEMISH:
            vm.append(it); stats['maxvm'] = max(stats['maxvm'], len(vm))
            if strict_max: assert len(vm) <= 63, "too many vmem outstanding at " + it.txt
        elif it.kind in ('dsr', 'dsw', 'smem'):
            lg.append(it); stats['maxlg'] = max(stats['maxlg'], len(lg))
    return [o.txt for o in out], stats

class Timeline:
    def __init__(self): self.main = []; self.side = {}
    def add(self, ins): self.main.append(ins); return len(self.main) - 1
    def at(self, pos, *ins):
        self.side.setdefault(pos, []).extend(ins)
    def flat(self):
        out = []
        for p in sorted(k for k in self.side if k < 0): out += self.side[p]
        for i, m in enumerate(self.main):
            if m is not None: out.append(m)
            out += self.side.get(i, [])
        mx = max(self.side.keys(), default=-1)
        for p in range(len(self.main), mx + 1): out += self.side.get(p, [])
        return out
```

```python
import struct, sys
from fw import *

def fbits(x): return struct.unpack('<I', struct.pack('<f', x))[0]
SZ_X, SZ_KV, SZ_W, SZ_OUT, SZ_WS = 1376256, 12582912, 3670016, 2752512, 268435456
SCALE = 1.4426950408889634 / 16.0
PART_OFF = 8 << 20
FLAG1_OFF = 40 << 20
FLAG2_OFF = 41 << 20
TAG_OFF = 42 << 20
NAME = "concat_heads__mha_block_cached__gqa_block_cached__near_ridge_kernel"

sX, sWQ, sK, sWS, sV, sWO, sOUT = 4, 8, 12, 16, 64, 68, 72
sHQ, sP, sHH, sBG, sH, sW, sB = 20, 21, 22, 23, 24, 25, 26
sM0B, sODD, sSC, sT0, sT1 = 27, 28, 30, 31, 32
sSTG, sWOM, sSO2 = 33, 34, 35
sWQO = 36
sXO = 50
sTAG, sCNT, sSO = 57, 62, 63
sDBG = 76
sHB = 80
sVU = 84
sWOR = 88
sVH, sWH = 90, 91
STAMP_REGS = [92, 94, 96, 98, 100]

vTR, vTRH, vW, vXD, vKD, vSR, vVD, vWO, vPA, vPB, vF = 2, 10, 18, 22, 24, 26, 28, 30, 37, 38, 39
vFR, NS = 40, 6
vACC = 64
vT = 64
def acc(t, mt): return vACC + (t * 3 + mt) * 4
def xreg(j, mt): return (j * 3 + mt) * 4
def kreg(s, kt):
    f = s * 3 + kt
    return 168 + 4 * f if f < 22 else 4 * (f - 22)
vTW, vTWH, vP2A, vP2B, vST, vF1A, vF2A, vLD, vOUT, vLW, vLR = 2, 3, 4, 5, 6, 7, 8, 9, 10, 16, 17
vU = 64
vUB = 148
def uacc(kt, nt): return vU + (nt * 3 + kt) * 4
def oacc(nt, mt): return 168 + (nt * 3 + mt) * 4
aV, NVF = 8, 31
aP = 132
def vfrag(sig, kt): return aV + ((sig * 3 + kt) % NVF) * 4
RING, SLAB = 7, 16384
SUP, R2 = 28672, 4
STG = 114688

flat = lambda gs: [x for g in gs for x in g]
def srd(d, lo, size):
    return [f"s_mov_b32 s{d}, s{lo}", f"s_mov_b32 s{d+1}, s{lo+1}", f"s_mov_b32 s{d+2}, {size}", f"s_mov_b32 s{d+3}, 0x20000"]

class Stamps:
    def __init__(self, on): self.on = on; self.n = 0; self.pend = []
    def __call__(self):
        if not self.on: return []
        r = STAMP_REGS[self.n % len(STAMP_REGS)]
        out = []
        if self.n >= len(STAMP_REGS): raise RuntimeError("too many stamps")
        self.n += 1
        if getattr(self, 'rt', False) and self.n in (2, 4): return [f"s_memrealtime s[{r}:{r+1}]"]
        return [f"s_memtime s[{r}:{r+1}]"]
    def dump(self):
        if not self.on: return []
        P = [Fence(), f"s_lshl_b32 s{sT0}, s2, 2", f"s_add_u32 s{sT0}, s{sT0}, s{sW}", f"s_lshl_b32 s{sT0}, s{sT0}, 7", f"s_add_u32 s{sT0}, s{sT0}, {64 << 20}", "v_mov_b32 v3, 0"]
        for i in range(self.n):
            P += [f"v_mov_b32 v2, s{STAMP_REGS[i]}", f"buffer_store_dword v2, v3, s[{sWS}:{sWS+3}], s{sT0} offen offset:{4*i}"]
        return P

def prologue(opt):
    P = ["s_cmp_ge_u32 s2, 256", "s_cbranch_scc1 Lend",
         "s_load_dwordx16 s[36:51], s[0:1], 0", "s_load_dwordx8 s[52:59], s[0:1], 64", "s_load_dwordx2 s[60:61], s[0:1], 96"] + opt['st']() + [
         f"s_and_b32 s{sHQ}, s2, 3", f"s_bfe_u32 s{sP}, s2, 0x10002", f"s_bfe_u32 s{sHH}, s2, 0x20003", f"s_lshr_b32 s{sBG}, s2, 5",
         f"s_lshl_b32 s{sH}, s{sHQ}, 2", f"s_add_u32 s{sH}, s{sH}, s{sHH}",
         "v_lshrrev_b32 v1, 6, v0", f"v_readfirstlane_b32 s{sW}, v1", "v_and_b32 v1, 63, v0",
         f"s_lshl_b32 s{sB}, s{sBG}, 2", f"s_add_u32 s{sB}, s{sB}, s{sW}"]
    a, b, c, d = vT, vT + 1, vT + 2, vT + 3
    P += [f"s_mul_i32 s{sSTG}, s{sW}, 12288", f"s_add_u32 s{sSTG}, s{sSTG}, {STG}", f"s_mul_i32 s{sT0}, s{sB}, 43008"]
    P += stage_dma_voff(vXD, 896, sT0)
    P += [f"s_lshl_b32 s{sM0B}, s{sW}, 12", f"s_and_b32 s{sT0}, s{sW}, 1", f"s_lshl_b32 s{sT0}, s{sT0}, 3",
          f"s_lshl_b32 s{sT1}, s{sW}, 16", f"s_lshl_b32 s{sSO}, s{sH}, 9", f"s_add_u32 s{sT1}, s{sT1}, s{sSO}",
          f"v_lshrrev_b32 v{a}, 5, v1", f"v_and_b32 v{b}, 31, v1", f"v_or_b32 v{c}, s{sT0}, v{a}", f"v_xor_b32 v{b}, v{b}, v{c}",
          f"v_lshlrev_b32 v{b}, 4, v{b}", f"v_lshl_add_u32 v{b}, v{a}, 13, v{b}", f"v_add_u32 v{vW}, s{sT1}, v{b}",
          f"v_xor_b32 v{c}, 64, v{vW}", f"v_add_u32 v{vW+1}, {16384-1024}, v{c}", f"v_add_u32 v{vW+2}, {2*(16384-1024)}, v{vW}", f"v_add_u32 v{vW+3}, {3*(16384-1024)}, v{c}"]
    P += [f"v_and_b32 v{a}, 15, v1", f"v_lshrrev_b32 v{b}, 4, v1", f"v_lshrrev_b32 v{c}, 1, v{a}", f"v_xor_b32 v{c}, v{c}, v{b}", f"v_lshlrev_b32 v{c}, 4, v{c}",
          f"v_lshl_add_u32 v{c}, v{a}, 7, v{c}", f"v_add_u32 v{vSR}, s{sSTG}, v{c}", f"v_xor_b32 v{c}, 64, v{c}", f"v_add_u32 v{vSR+1}, s{sSTG}, v{c}"]
    P += [f"s_mov_b32 s{sX+2}, {SZ_X}", f"s_mov_b32 s{sX+3}, 0x20000", f"s_mov_b32 s{sWQ+2}, {SZ_W}", f"s_mov_b32 s{sWQ+3}, 0x20000",
          f"s_mov_b32 s{sT0}, 0", f"s_mov_b32 s{sT1}, {1 << 18}", f"s_cmp_eq_u32 s{sP}, 0",
          f"s_cselect_b64 s[{sX}:{sX+1}], s[36:37], s[46:47]", f"s_cselect_b64 s[{sWQ}:{sWQ+1}], s[42:43], s[52:53]"]
    return P

def setup1(opt):
    P = [f"s_cmp_eq_u32 s{sP}, 0"]
    for i, d_ in ((1, sK), (2, sV), (4, sWO)):
        P.append(f"s_cselect_b64 s[{d_}:{d_+1}], s[{36+2*i}:{37+2*i}], s[{46+2*i}:{47+2*i}]")
    for d_, sz in ((sK, SZ_KV), (sV, SZ_KV), (sWO, SZ_W)):
        P += [f"s_mov_b32 s{d_+2}, {sz}", f"s_mov_b32 s{d_+3}, 0x20000"]
    P += srd(sOUT, 56, SZ_OUT) + srd(sWS, 60, SZ_WS) + srd(sDBG, 58, 256)
    P += [f"s_add_u32 s{sVH}, s60, {TAG_OFF}", f"s_addc_u32 s{sWH}, s61, 0", f"s_load_dword s{sTAG}, s[{sVH}:{sWH}], 0"]
    P += [f"s_mov_b32 s{sXO+1}, 128", f"s_mov_b32 s{sWQO+2}, {2 << 18}", f"s_mov_b32 s{sWQO+3}, {3 << 18}"]
    return P

def stage_dma_voff(vd, rowstride, sbase):
    a, b, c = vT, vT + 1, vT + 2
    return [f"v_lshrrev_b32 v{a}, 3, v1", f"v_and_b32 v{b}, 7, v1", f"v_lshrrev_b32 v{c}, 4, v1", f"v_xor_b32 v{b}, v{b}, v{c}", f"v_lshlrev_b32 v{b}, 4, v{b}",
            f"v_mul_u32_u24 v{a}, {rowstride}, v{a}", f"v_add3_u32 v{vd}, v{a}, v{b}, s{sbase}", f"v_xor_b32 v{b}, 64, v{b}", f"v_add3_u32 v{vd+1}, v{a}, v{b}, s{sbase}",
            f"v_add_u32 v{vd+1}, {8*rowstride - 1024}, v{vd+1}"]

def setup2(opt):
    P = []
    a, b, c, d, e = vT, vT + 1, vT + 2, vT + 3, vT + 4
    nl = opt['nlock']; nr = 7 - nl
    if opt['rot']:
        P += [f"s_lshl_b32 s{sCNT}, s{sHH}, 1", f"s_add_u32 s{sCNT}, s{sCNT}, s{sBG}"]
        for _ in range(3): P += [f"s_cmp_ge_u32 s{sCNT}, {nr}", f"s_cselect_b32 s{sSO}, {nr}, 0", f"s_sub_u32 s{sCNT}, s{sCNT}, s{sSO}"]
    else: P += [f"s_mov_b32 s{sCNT}, 0"]
    P += [f"s_add_u32 s{sCNT}, s{sCNT}, {nl}"]
    for j in range(2, nl):
        P += [f"s_mov_b32 s{sXO+j}, {j*128}", f"s_mov_b32 s{sWQO+2*j}, {j << 19}", f"s_mov_b32 s{sWQO+2*j+1}, {(j << 19) + (1 << 18)}"]
    for j in range(nl, 7):
        P += [f"s_lshl_b32 s{sXO+j}, s{sCNT}, 7", f"s_lshl_b32 s{sWQO+2*j}, s{sCNT}, 19", f"s_add_u32 s{sWQO+2*j+1}, s{sWQO+2*j}, {1 << 18}"]
        if j < 6: P += [f"s_add_u32 s{sCNT}, s{sCNT}, 1", f"s_cmp_eq_u32 s{sCNT}, 7", f"s_cselect_b32 s{sCNT}, {nl}, s{sCNT}"]
    P += [f"v_lshrrev_b32 v{a}, 4, v1", f"v_bfe_u32 v{b}, v1, 2, 2", f"v_and_b32 v{c}, 3, v1",
          f"v_lshl_add_u32 v{d}, v{a}, 3, v{b}", f"v_lshlrev_b32 v{d}, 9, v{d}",
          f"v_and_b32 v{a}, 1, v{a}", f"v_lshlrev_b32 v{a}, 3, v{a}",
          f"v_lshrrev_b32 v{e}, 1, v{b}", f"v_lshl_or_b32 v{a}, v{e}, 2, v{a}",
          f"v_and_b32 v{b}, 1, v{b}", f"v_or_b32 v{a}, v{a}, v{b}",
          f"v_xor_b32 v{a}, v{a}, v{c}", f"v_lshl_add_u32 v{d}, v{a}, 4, v{d}",
          f"v_and_b32 v{c}, 1, v{c}", f"v_lshl_add_u32 v{d}, v{c}, 3, v{d}"]
    for bb in range(4):
        for tau in range(2):
            P.append(f"v_xor_b32 v{vTR + bb*2 + tau}, {(bb << 6) | (tau << 3)}, v{d}")
            P.append(f"v_xor_b32 v{vTRH + bb*2 + tau}, {0x10000 | (bb << 6) | (tau << 3)}, v{d}")
    P += [f"s_lshl_b32 s{sSO}, s{sB}, 4", f"s_add_u32 s{sCNT}, s{sSO}, s{sH}", f"s_mul_i32 s{sSO2}, s{sCNT}, 24576"]
    P += stage_dma_voff(vKD, 512, sSO2)
    P += [f"s_mul_i32 s{sSO2}, s{sHH}, 24576", f"v_subrev_u32 v{vVD}, s{sSO2}, v{vKD}", f"v_subrev_u32 v{vVD+1}, s{sSO2}, v{vKD+1}"]
    P += [f"s_lshl_b32 s{sSO}, s{sP}, 9", f"s_add_u32 s{sSO}, s{sSO}, s{sCNT}", f"s_mul_i32 s{sSO}, s{sSO}, 4608",
          f"v_lshlrev_b32 v{a}, 4, v1", f"v_add_u32 v{vPA}, s{sSO}, v{a}", f"v_lshlrev_b32 v{a}, 3, v1", f"s_add_u32 s{sSO}, s{sSO}, 1024", f"v_add_u32 v{vPB}, s{sSO}, v{a}"]
    P += [f"s_mov_b32 s{sODD}, 0xffff0000", f"s_mov_b32 s{sODD+1}, 0xffff0000", f"s_mov_b32 s{sSC}, {fbits(SCALE)}"]
    for hn in range(4):
        src = sBG if opt['hrot'] else None
        if src is not None: P += [f"s_add_u32 s{sHB+hn}, s{src}, {hn}", f"s_and_b32 s{sHB+hn}, s{sHB+hn}, 3"]
        else: P += [f"s_mov_b32 s{sHB+hn}, {hn}"]
        if opt['urot']: P += [f"s_add_u32 s{sVU+hn}, s{sHH}, {hn}", f"s_and_b32 s{sVU+hn}, s{sVU+hn}, 3", f"s_lshl_b32 s{sVU+hn}, s{sVU+hn}, 7"]
        else: P += [f"s_mov_b32 s{sVU+hn}, {hn*128}"]
    for hf2 in range(2):
        P += [f"s_lshr_b32 s{sSO}, s{sW}, 1", f"s_add_u32 s{sSO}, s{sSO}, {2*hf2}"]
        if opt['urot']: P += [f"s_add_u32 s{sSO}, s{sSO}, s{sHH}"]
        P += [f"s_and_b32 s{sSO}, s{sSO}, 3", f"s_lshl_b32 s{sSO}, s{sSO}, 1", f"s_and_b32 s{sSO2}, s{sW}, 1", f"s_add_u32 s{sSO}, s{sSO}, s{sSO2}", f"s_mul_i32 s{sWOR+hf2}, s{sSO}, {32*896}"]
    P += [f"s_mul_i32 s{sWOM}, s{sW}, 7168"]
    P += [f"s_mul_i32 s{sSO}, s{sHH}, 224", f"s_mul_i32 s{sSO2}, s{sHQ}, {1024*896}", f"s_add_u32 s{sSO}, s{sSO}, s{sSO2}", f"s_mov_b32 s{sSO2}, {(1 << 32) // 14 + 1}"]
    for i in range(7):
        P += [f"v_add_u32 v{a}, {64*i}, v1", f"v_mul_hi_u32 v{b}, v{a}, s{sSO2}", f"v_mul_u32_u24 v{c}, 14, v{b}", f"v_sub_u32 v{c}, v{a}, v{c}",
              f"v_and_b32 v{a}, 19, v{b}", f"v_bfe_u32 v{d}, v{b}, 2, 1", f"v_lshl_or_b32 v{a}, v{d}, 3, v{a}", f"v_bfe_u32 v{d}, v{b}, 3, 1", f"v_lshl_or_b32 v{a}, v{d}, 2, v{a}",
              f"v_mul_u32_u24 v{a}, 896, v{a}", f"v_lshl_add_u32 v{a}, v{c}, 4, v{a}", f"v_add_u32 v{vWO+i}, s{sSO}, v{a}"]
        if i & 3: P += [f"v_subrev_u32 v{vWO+i}, {1024*(i & 3)}, v{vWO+i}"]
    P += [f"s_add_u32 s{sTAG}, s{sTAG}, 1", f"s_bitset1_b32 s{sTAG}, 31",
          f"s_or_b32 s{sSO}, s2, s{sW}", f"s_cmp_lg_u32 s{sSO}, 0", "s_cbranch_scc1 Lnotag",
          f"v_mov_b32 v{a}, s{sTAG}", f"v_mov_b32 v{b}, 0", f"s_mov_b32 s{sSO}, {TAG_OFF}", "s_mov_b64 exec, 1",
          XI(f"buffer_store_dword v{a}, v{b}, s[{sWS}:{sWS+3}], s{sSO} offen sc1"), XI(f"buffer_store_dword v{a}, v{b}, s[{sDBG}:{sDBG+3}], 0 offen sc1"),
          "s_mov_b64 exec, -1", "s_nop 1", "Lnotag:"]
    return P

def XI(txt):
    i = I(txt); i.kind = 'xvm'; return i

def setup3(opt):
    a, b, c, d = vFR, vFR + 1, vFR + 2, vFR + 3
    P = [f"v_bfe_u32 v{a}, v1, 2, 3", f"v_lshrrev_b32 v{b}, 5, v1", f"v_lshl_add_u32 v{a}, v{b}, 4, v{a}", f"v_mul_u32_u24 v{a}, 224, v{a}",
         f"v_and_b32 v{b}, 3, v1", f"v_lshl_add_u32 v{vTW}, v{b}, 3, v{a}", f"v_add_u32 v{vTWH}, {2*SUP}, v{vTW}",
         f"s_mul_i32 s{sT0}, s{sHH}, 4608", f"v_subrev_u32 v{vP2A}, s{sT0}, v{vPA}", f"v_subrev_u32 v{vP2B}, s{sT0}, v{vPB}"]
    P += [f"s_lshl_b32 s{sT0}, s{sP}, 9", f"s_lshl_b32 s{sT1}, s{sB}, 4", f"s_add_u32 s{sT0}, s{sT0}, s{sT1}", f"s_lshl_b32 s{sT1}, s{sHQ}, 2", f"s_add_u32 s{sT0}, s{sT0}, s{sT1}",
          f"s_lshl_b32 s{sT0}, s{sT0}, 7", f"s_add_u32 s{sT0}, s{sT0}, {FLAG1_OFF}", f"v_lshlrev_b32 v{b}, 7, v{b}", f"v_add_u32 v{vF1A}, s{sT0}, v{b}"]
    P += [f"s_lshl_b32 s{sT0}, s{sP}, 3", f"s_add_u32 s{sT0}, s{sT0}, s{sBG}", f"s_lshl_b32 s{sT0}, s{sT0}, 2", f"s_add_u32 s{sT0}, s{sT0}, s{sHH}",
          f"s_lshl_b32 s{sT0}, s{sT0}, 2", f"s_add_u32 s{sT0}, s{sT0}, s{sW}",
          f"s_lshl_b32 s{sT1}, s{sT0}, 9", f"s_add_u32 s{sT1}, s{sT1}, {FLAG2_OFF}", f"v_add_u32 v{vF2A}, s{sT1}, v{b}"]
    P += [f"s_mul_i32 s{sT0}, s{sT0}, 49152", f"s_add_u32 s{sT0}, s{sT0}, {PART_OFF}",
          f"s_mul_i32 s{sT1}, s{sHQ}, 3072", f"s_add_u32 s{sT1}, s{sT1}, s{sT0}",
          f"v_lshrrev_b32 v{a}, 4, v1", f"v_cmp_eq_u32 vcc, s{sHQ}, v{a}", f"v_mul_u32_u24 v{d}, 12288, v{a}", f"v_and_b32 v{c}, 15, v1", f"v_lshl_add_u32 v{d}, v{c}, 4, v{d}", f"v_add_u32 v{vST}, s{sT1}, v{d}",
          f"v_mov_b32 v{b}, 0x7ff00000", f"v_cndmask_b32 v{vST}, v{vST}, v{b}, vcc",
          f"s_mul_i32 s{sT1}, s{sHQ}, 12288", f"s_add_u32 s{sT1}, s{sT1}, s{sT0}", f"v_lshlrev_b32 v{d}, 4, v1", f"v_add_u32 v{vLD}, s{sT1}, v{d}",
          f"v_add_u32 v{vLW}, s{sSTG}, v{d}",
          f"s_lshl_b32 s{sT1}, s{sHQ}, 8", f"s_add_u32 s{sT1}, s{sT1}, s{sSTG}", f"v_lshlrev_b32 v{d}, 10, v{a}", f"v_lshl_add_u32 v{d}, v{c}, 4, v{d}", f"v_add_u32 v{vLR}, s{sT1}, v{d}"]
    P += [f"s_mul_i32 s{sT0}, s{sB}, {48*1792}", f"s_mul_i32 s{sT1}, s{sP}, 896", f"s_add_u32 s{sT0}, s{sT0}, s{sT1}", f"s_mul_i32 s{sT1}, s{sHH}, 224", f"s_add_u32 s{sT0}, s{sT0}, s{sT1}",
          f"s_lshl_b32 s{sT1}, s{sHQ}, 3", f"s_add_u32 s{sT0}, s{sT0}, s{sT1}", f"v_mul_u32_u24 v{c}, 1792, v{c}", f"v_add_u32 v{c}, s{sT0}, v{c}"]
    e_ = vFR + 4
    for i in range(6):
        P += [f"v_lshl_add_u32 v{e_}, v{a}, 1, {8*(i//2) + (i & 1)}", f"v_mul_u32_u24 v{b}, 43, v{e_}", f"v_lshrrev_b32 v{b}, 7, v{b}", f"v_mul_u32_u24 v{d}, 3, v{b}", f"v_sub_u32 v{d}, v{e_}, v{d}",
              f"v_mul_u32_u24 v{d}, {16*1792}, v{d}", f"v_lshl_add_u32 v{d}, v{b}, 5, v{d}", f"v_add_u32 v{vOUT+i}, v{c}, v{d}"]
        if i >= 4: P += [f"v_cmp_lt_u32 vcc, 20, v{e_}", f"v_mov_b32 v{b}, 0x7ff00000", f"v_cndmask_b32 v{vOUT+i}, v{vOUT+i}, v{b}, vcc"]
    return P

class Stager:
    def __init__(self, nsl): self.nsl = nsl; self.n = 0
    def tile(self, vdma, srd_, so_ins, pol, dst0, dst1):
        n = self.n; self.n += 1
        slot = n % self.nsl
        pre = [WaitTag(f"sr{n - self.nsl}")] if n >= self.nsl else []
        iss = [pre + [f"s_add_u32 m0, s{sSTG}, {slot*2048}"] + so_ins + [I(f"buffer_load_dwordx4 v{vdma}, s[{srd_}:{srd_+3}], s{sSO2} offen{pol} lds", tag=f"sd{n}")],
               [I(f"buffer_load_dwordx4 v{vdma+1}, s[{srd_}:{srd_+3}], s{sSO2} offen offset:1024{pol} lds", tag=f"sd{n}")]]
        rd = [WaitTag(f"sd{n}"), I(f"ds_read_b128 {dst0}, v{vSR} offset:{slot*2048}", tag=f"sr{n}"), I(f"ds_read_b128 {dst1}, v{vSR+1} offset:{slot*2048}", tag=f"sr{n}")]
        return iss, rd

def g_w(s, opt):
    slot = (s % RING) * SLAB
    return [([f"s_add_u32 m0, s{sM0B}, {slot}", "s_nop 0"] if i == 0 else []) +
            [I(f"buffer_load_dwordx4 v{vW+i}, s[{sWQ}:{sWQ+3}], s{(sT0, sT1)[s] if s < 2 else sWQO+s} offen offset:{i*1024}{opt['wq_pol']} lds", tag=f"slab{s}")] for i in range(4)]
def g_wo(j, opt):
    hn, half = divmod(j, 2)
    out = []
    for i in range(7):
        pre = []
        if i in (0, 4): pre += [f"s_add_u32 m0, s{sWOM}, {(j % R2) * SUP + i * 1024}"]
        if i == 0: pre += [f"s_mul_i32 s{sWH}, s{sHB+hn}, {256*896}", f"s_add_u32 s{sWH}, s{sWH}, s{sWOR+half}"]
        if i == 4: pre += ["s_nop 0"]
        out.append(pre + [I(f"buffer_load_dwordx4 v{vWO+i}, s[{sWO}:{sWO+3}], s{sWH} offen offset:{(i & 3)*1024}{opt['wo_pol']} lds", tag=f"sup{j}")])
    return out
def g_p(hn, opt):
    out = []
    o = (hn & 1) * 6
    for mt in range(3):
        pre = [f"s_mul_i32 s{sSO}, s{sHB+hn}, 4608"] if mt == 0 else []
        out.append(pre + [f"buffer_load_dwordx4 {A(aP + mt*12 + o, 4)}, v{vP2A}, s[{sWS}:{sWS+3}], s{sSO} offen offset:{mt*1536} sc1"])
        out.append([f"buffer_load_dwordx2 {A(aP + mt*12 + o + 4, 2)}, v{vP2B}, s[{sWS}:{sWS+3}], s{sSO} offen offset:{mt*1536} sc1"])
    return out

def tr_reads(T):
    ks, t = divmod(T, 16)
    sp, tau = divmod(t, 2)
    ap, bp = divmod(sp, 4)
    slot = ks % RING
    base = (vTR if slot < 4 else vTRH) + bp * 2 + tau
    off = (slot % 4) * SLAB + ap * 256
    d = vFR + (T % NS) * 4
    return [f"ds_read_b64_tr_b16 {V(d, 2)}, v{base} offset:{off}", f"ds_read_b64_tr_b16 {V(d+2, 2)}, v{base} offset:{off + 2048}"]
def wo_reads(F):
    sig, nt = divmod(F, 7)
    j, sl = divmod(sig, 4)
    ss = j % R2
    base = vTW if ss < 2 else vTWH
    off = (ss % 2) * SUP + sl * 7168 + nt * 32
    d = vFR + (F % NS) * 4
    return [f"ds_read_b64_tr_b16 {V(d, 2)}, v{base} offset:{off}", f"ds_read_b64_tr_b16 {V(d+2, 2)}, v{base} offset:{off + 1792}"]

def softmax_block(sacc, m, t, pk):
    sv = lambda mt: [sacc(kt, mt) + r for kt in range(3) for r in range(4)]
    Q = []
    for mt in range(3):
        x = sv(mt)
        Q.append(f"v_max3_f32 v{m[mt]}, v{x[0]}, v{x[1]}, v{x[2]}")
    for j in range(4):
        for mt in range(3):
            x = sv(mt); Q.append(f"v_max3_f32 v{m[mt]}, v{m[mt]}, v{x[3+2*j]}, v{x[4+2*j]}")
    for mt in range(3): Q.append(f"v_max_f32 v{m[mt]}, v{m[mt]}, v{sv(mt)[11]}")
    def xred(op):
        o = []
        for pl in ('v_permlane32_swap_b32', 'v_permlane16_swap_b32'):
            o += [f"v_mov_b32 v{t[mt]}, v{m[mt]}" for mt in range(3)]
            o += [f"{pl} v{m[mt]}, v{t[mt]}" for mt in range(3)]
            o += [f"{op} v{m[mt]}, v{m[mt]}, v{t[mt]}" for mt in range(3)]
        return o
    Q += xred('v_max_f32')
    Q += [f"v_mul_f32 v{m[mt]}, s{sSC}, v{m[mt]}" for mt in range(3)]
    for j in range(12):
        Q += [f"v_fma_f32 v{sv(mt)[j]}, v{sv(mt)[j]}, s{sSC}, -v{m[mt]}" for mt in range(3)]
        Q += [f"v_exp_f32 v{sv(mt)[j]}, v{sv(mt)[j]}" for mt in range(3)]
    Q += [f"v_add_f32 v{m[mt]}, v{sv(mt)[0]}, v{sv(mt)[1]}" for mt in range(3)]
    for j in range(2, 12):
        Q += [f"v_add_f32 v{m[mt]}, v{m[mt]}, v{sv(mt)[j]}" for mt in range(3)]
    Q += xred('v_add_f32')
    Q += [f"v_rcp_f32 v{m[mt]}, v{m[mt]}" for mt in range(3)]
    for mt in range(3):
        x = sv(mt)
        for j in range(12): Q.append(f"v_mul_f32 v{x[j]}, v{x[j]}, v{m[mt]}")
        for j in range(6): Q.append(f"v_cvt_pk_bf16_f32 v{pk + mt*6 + j}, v{x[2*j]}, v{x[2*j+1]}")
        Q.append(I(f"buffer_store_dwordx4 {V(pk + mt*6, 4)}, v{vPA}, s[{sWS}:{sWS+3}], 0 offen offset:{mt*1536} sc1", tag="pst"))
        Q.append(I(f"buffer_store_dwordx2 {V(pk + mt*6 + 4, 2)}, v{vPB}, s[{sWS}:{sWS+3}], 0 offen offset:{mt*1536} sc1", tag="pst"))
    return Q

def spin(label, load, cmp_):
    return [f"{label}:", f"s_mov_b32 s{sCNT}, 0x40000", f"{label}_l:", "s_sleep 2", load, "s_waitcnt vmcnt(0)", cmp_, "s_nop 4", "s_cmp_eq_u64 vcc, 0", f"s_cbranch_scc1 {label}_r",
            f"s_sub_u32 s{sCNT}, s{sCNT}, 1", f"s_cmp_lg_u32 s{sCNT}, 0", f"s_cbranch_scc1 {label}_l", f"s_branch {label}_r"]

def build_body(opt):
    st = opt['st']; st.n = 0
    sg = Stager(6)
    P = prologue(opt)
    tl = Timeline()
    LA = 4
    for ks in range(14):
        for t in range(16):
            T = ks * 16 + t
            af = vFR + (T % NS) * 4
            for mt in range(3):
                c = '0' if ks == 0 else V(acc(t, mt), 4)
                idx = tl.add(f"v_mfma_f32_16x16x32_bf16 {V(acc(t, mt), 4)}, {V(af, 4)}, {A(xreg(ks, mt), 4)}, {c}")
                if mt < 2 and T + LA < 224: tl.at(idx, tr_reads(T + LA)[mt])
        pre = ([WaitTag(f"slab{ks+1}")] if ks < 13 else []) + ["s_barrier"]
        if ks == 0: pre += (st() if 0 in opt['stk'] else []) + flat([tr_reads(T) for T in range(LA)])
        tl.at(ks * 48 - 1, *pre)
    b13 = 13 * 48
    cv = []
    for sp in range(8):
        for mt in range(3):
            t0, t1 = acc(2 * sp, mt), acc(2 * sp + 1, mt)
            cv += [f"v_cvt_pk_bf16_f32 v{t0}, v{t0}, v{t0+1}", f"v_cvt_pk_bf16_f32 v{t0+1}, v{t0+2}, v{t0+3}",
                   f"v_cvt_pk_bf16_f32 v{t0+2}, v{t1}, v{t1+1}", f"v_cvt_pk_bf16_f32 v{t0+3}, v{t1+2}, v{t1+3}"]
        sw = [f"s_mov_b64 exec, s[{sODD}:{sODD+1}]"]
        for mt in range(3):
            t0 = acc(2 * sp, mt)
            sw += [f"v_swap_b32 v{t0}, v{t0+2}", f"v_swap_b32 v{t0+1}, v{t0+3}"]
        sw.append("s_mov_b64 exec, -1")
        cv.append(sw)
    pos = b13 + 10; cnt = 0
    for c in cv:
        if isinstance(c, list): tl.at(pos, *c); pos += 3; cnt = 0
        else:
            tl.at(pos, c); cnt += 1
            if cnt == 2: cnt = 0; pos += 1
    sacc = lambda kt, mt: acc(2 * kt + 1, mt)
    for sp in range(8):
        for mt in range(3):
            for kt in range(3):
                c = '0' if sp == 0 else V(sacc(kt, mt), 4)
                tl.add(f"v_mfma_f32_16x16x32_bf16 {V(sacc(kt, mt), 4)}, {A(kreg(sp, kt), 4)}, {V(acc(2*sp, mt), 4)}, {c}")
    if 1 in opt['stk']: tl.at(b13 + 47, *st())
    s3 = setup3(opt)
    p0 = pos + 1
    for q in range(0, len(s3), 3): tl.at(min(p0 + q // 3, 743), *s3[q:q+3])
    tagld = f"buffer_load_dword v{vF}, off, s[{sDBG}:{sDBG+3}], 0 sc1"
    tl.at(640, tagld)
    f0 = acc(7, 0)
    sm = softmax_block(sacc, [f0, f0 + 1, f0 + 2], [f0 + 3, f0 + 4, f0 + 5], 208)
    sm_start = len(tl.main)
    for q in range(0, len(sm), 4):
        idx = tl.add(sm[q]); tl.at(idx, *sm[q+1:q+4])
    sm_end = len(tl.main)
    for _ in range(opt['gap']): tl.add(None)
    s2s = len(tl.main)
    oline = []
    tagchk = [f"v_cmp_eq_u32 vcc, 0, v{vF}", "s_cmp_eq_u64 vcc, 0", "s_cbranch_scc0 Ltag", "Ltag_r:", f"v_readfirstlane_b32 s{sTAG}, v{vF}"]
    oline += spin("Ltag", tagld, f"v_cmp_eq_u32 vcc, 0, v{vF}")
    tl.at(sm_start + 2, *tagchk)
    kstart = {}
    oinit = set()
    def pu(us):
        for nt in range(7):
            for u in us:
                ub = vUB + nt * 12 + u * 4
                for mt in range(3):
                    c = A(oacc(nt, mt), 4) if (nt, mt) in oinit else '0'
                    oinit.add((nt, mt))
                    tl.add(f"v_mfma_f32_16x16x32_bf16 {A(oacc(nt, mt), 4)}, {V(ub, 4)}, {A(aP + mt*12 + u*4, 4)}, {c}")
    pustart = {}
    for hn in range(4):
        for s in range(8):
            sig = hn * 8 + s
            kstart[sig] = len(tl.main)
            for nt in range(7):
                F = sig * 7 + nt
                bf = vFR + (F % NS) * 4
                for kt in range(3):
                    c = '0' if s == 0 else V(uacc(kt, nt), 4)
                    idx = tl.add(f"v_mfma_f32_16x16x32_bf16 {V(uacc(kt, nt), 4)}, {A(vfrag(sig, kt), 4)}, {V(bf, 4)}, {c}")
                    if kt < 2 and F + LA < 224: tl.at(idx, wo_reads(F + LA)[kt])
                if s == 7:
                    ub = vUB + nt * 12 + (hn % 2) * 6
                    for kt in range(3):
                        u = uacc(kt, nt)
                        tl.at(idx + 4 + kt, f"v_cvt_pk_bf16_f32 v{ub+2*kt}, v{u}, v{u+1}", f"v_cvt_pk_bf16_f32 v{ub+2*kt+1}, v{u+2}, v{u+3}")
        pustart[hn] = len(tl.main)
        if hn == 1: pu([0, 1, 2])
        elif hn == 2: pu([0])
        elif hn == 3: pu([1, 2])
    kstart[32] = len(tl.main)
    PK, TMP = 64, 108
    for nt in range(7):
        seq = []
        for mt in range(3):
            tile = nt * 3 + mt
            t4 = TMP + (tile % 6) * 4
            seq += [f"v_accvgpr_read_b32 v{t4+r}, a{oacc(nt, mt)+r}" for r in range(4)]
            seq += [f"v_cvt_pk_bf16_f32 v{PK+2*tile}, v{t4}, v{t4+1}", f"v_cvt_pk_bf16_f32 v{PK+2*tile+1}, v{t4+2}, v{t4+3}"]
            if tile % 2 == 1 or tile == 20:
                pr = tile // 2
                seq += [I(f"buffer_store_dwordx4 {V(PK+4*pr, 4)}, v{vST}, s[{sWS}:{sWS+3}], 0 offen offset:{pr*256} sc1", tag="part"),
                        I(f"ds_write_b128 v{vLW}, {V(PK+4*pr, 4)} offset:{pr*1024}", tag="ownw")]
        p0_ = pustart[3] + nt * 6 + 5 + 3
        for q in range(0, len(seq), 4): tl.at(p0_ + q // 4, *seq[q:q+4])
    for j in range(7):
        base = kstart[4 * j]
        if j == 0: pre = [WaitTag("sup0", "sup1"), "s_barrier"] + (st() if 2 in opt['stk'] else []) + flat([wo_reads(F) for F in range(LA)])
        else: pre = [WaitTag(f"sup{j+1}"), "s_barrier"]
        tl.at(base - 1, *pre)
    tl.at(sm_end + opt['pubd'], WaitTag("pst"), f"v_mov_b32 v{vF}, s{sTAG}", f"s_lshl_b32 s{sT0}, s{sHH}, 7", "s_mov_b64 exec, 1",
          f"buffer_store_dword v{vF}, v{vF1A}, s[{sWS}:{sWS+3}], s{sT0} offen sc1", "s_mov_b64 exec, -1")
    pace = {'m': opt['mp'], 'h': opt['hp']}; lag = {'m': opt['ml'], 'h': opt['hl']}
    cur = opt['start']; rdpos = []; rep = []
    f1ld = f"buffer_load_dword v{vF}, v{vF1A}, s[{sWS}:{sWS+3}], 0 offen sc1"
    f1cmp = f"v_cmp_ne_u32 vcc, s{sTAG}, v{vF}"
    posl = []
    base_pol = {k: opt[k] for k in ('wq_pol', 'x_pol', 'v_pol', 'wo_pol')}
    for n_, (kind, idx, cls) in enumerate(opt['sched']):
        posl.append(f'{kind}{idx}@{cur}')
        for k_ in base_pol: opt[k_] = ' nt' if (cls == 'm' and k_[0] in opt.get('mnt', '') or (k_ == 'wo_pol' and cls == 'm' and 'o' in opt.get('mnt', ''))) and not (k_ == 'wo_pol' and 'o' not in opt.get('mnt', '')) else base_pol[k_]
        if kind == 'W':
            if idx >= RING: cur = max(cur, 48 * (idx - RING + 1))
            for it in g_w(idx, opt): tl.at(cur, *it); cur += pace[cls]
            rep.append(f"W{idx}:{48*max(idx-1,0) - 1 - (cur - pace[cls])}")
        elif kind == 'O':
            e = {0: 48 * 9, 1: 48 * 11, 2: 48 * 13}.get(idx)
            if e is None: e = kstart[4 * (idx - 3)]
            cur = max(cur, e)
            for it in g_wo(idx, opt): tl.at(cur, *it); cur += pace[cls]
            rep.append(f"O{idx}:{kstart[4*max(idx-1,0)] - 1 - (cur - pace[cls])}")
        elif kind == 'F':
            cur = max(cur, idx + s2s)
            tl.at(cur, f1ld); cur += lag['h']
            tl.at(cur, f1cmp, "s_cmp_eq_u64 vcc, 0", "s_cbranch_scc0 Lf1", "Lf1_r:")
            oline += spin("Lf1", f1ld, f1cmp)
        elif kind == 'P':
            if idx >= 2: cur = max(cur, kstart[16])
            for it in g_p(idx, opt): tl.at(cur, *it); cur += pace[cls]
            rep.append(f"P{idx}:{pustart[max(idx,1)] - cur}")
        else:
            for q in range(3):
                if kind == 'X':
                    iss, rd = sg.tile(vXD, sX, [f"s_add_u32 s{sSO2}, s{sXO+idx}, {q*14336}" if idx else f"s_mov_b32 s{sSO2}, {q*14336}"], opt['x_pol'], A(xreg(2*idx, q), 4), A(xreg(2*idx+1, q), 4))
                    dl = 96 * idx - 6; er = -9999
                elif kind == 'K':
                    iss, rd = sg.tile(vKD, sK, [f"s_mov_b32 s{sSO2}, {q*8192 + idx*128}"], opt['k_pol'], A(kreg(2*idx, q), 4), A(kreg(2*idx+1, q), 4))
                    dl = 672 + 18 * idx - 6; er = 48 if (idx == 3 and q >= 1) else -9999
                else:
                    hn, j = divmod(idx, 4)
                    so = ([f"s_mul_i32 s{sVH}, s{sHB+hn}, 24576", f"s_add_u32 s{sVH}, s{sVH}, s{sVU+j}"] if q == 0 else []) + [f"s_add_u32 s{sSO2}, s{sVH}, {q*8192}"]
                    iss, rd = sg.tile(vVD, sV, so, opt['v_pol'], A(vfrag(2*idx, q), 4), A(vfrag(2*idx+1, q), 4))
                    dl = kstart[2 * idx] - 6
                    er = -9999
                    for e in range(2):
                        f = (2 * idx + e) * 3 + q
                        if f >= NVF:
                            ps, pk_ = divmod(f - NVF, 3); er = max(er, kstart[ps + 1] if (ps + 1) % 8 else pustart[ps // 8])
                        else:
                            r = aV + f * 4; er = max(er, 48 * (r // 12 + 1) if (r % 12) <= 8 else 48 * (r // 12 + 2))
                n = len(rdpos)
                if n >= sg.nsl: cur = max(cur, rdpos[n - sg.nsl] + 4)
                cur = max(cur, er - lag[cls])
                tl.at(cur, *iss[0]); tl.at(cur, *iss[1]); last = cur; cur += 2 * pace[cls]
                rp = max(min(last + pace[cls] + lag[cls], dl), er, last)
                if rdpos: rp = max(rp, rdpos[-1])
                if rp == -1: rp = -2
                if rp > dl and dl >= 0: print("LATE", kind, idx, q, rp, dl)
                assert rp <= dl + 5 or dl < 0, (kind, idx, rp, dl)
                tl.at(rp, *rd); rdpos.append(rp)
                rep.append(f"{kind}{idx}.{q}:{rp - last}")
        if n_ == 2: tl.at(cur - 1, *setup1(opt))
        if n_ == opt['s2at']: assert cur - 1 < -2; tl.at(cur - 1, *setup2(opt))
    for sp_ in opt.get('stp', ()): tl.at(sp_, *st())
    if opt.get('verbose') == 2: print(' '.join(posl))
    if opt.get('verbose') == 1: print(" ".join(rep), "end", cur, "s2s", s2s, "total", len(tl.main))
    body = tl.flat()
    if opt.get('strip') == 1:
        txt = lambda x: x if isinstance(x, str) else getattr(x, 'txt', '')
        body = [x for x in body if not (txt(x).startswith('v_mfma') or txt(x).startswith('ds_read_b64_tr') or txt(x).startswith('v_cvt') or txt(x).startswith('v_exp') or txt(x).startswith('v_swap'))]
    if opt.get('strip') == 2:
        nb = []
        for x in body:
            t = x if isinstance(x, str) else getattr(x, 'txt', '')
            if t.startswith('buffer_load_dwordx4') and ' lds' in t:
                y = I("s_nop 0"); y.tag = x.tag; nb.append(y)
            else: nb.append(x)
        body = nb
    P += body + (st() if 3 in opt['stk'] else [])
    f2ld = f"buffer_load_dword v{vF}, v{vF2A}, s[{sWS}:{sWS+3}], 0 offen sc1"
    P += [f"v_mov_b32 v{vF}, s{sTAG}", f"s_lshl_b32 s{sT0}, s{sHQ}, 7", WaitTag("part"), "s_mov_b64 exec, 1",
          f"buffer_store_dword v{vF}, v{vF2A}, s[{sWS}:{sWS+3}], s{sT0} offen sc1", "s_mov_b64 exec, -1", "s_nop 1", f2ld]
    OWN, ACC, RX = 108, 120, 148
    P += [WaitTag("ownw")] + [f"ds_read_b128 {V(OWN + 4*i, 4)}, v{vLR} offset:{i*4096}" for i in range(3)]
    for k in range(3): P += [f"s_add_u32 s{sHB+k}, s{sHQ}, {k+1}", f"s_and_b32 s{sHB+k}, s{sHB+k}, 3", f"s_mul_i32 s{sHB+k}, s{sHB+k}, 3072"]
    P += [f"s_mov_b32 s{sVU}, 0x3f80", f"s_mov_b32 s{sVU+1}, 0x3f800000"]
    for r in range(12): P += [f"v_lshlrev_b32 v{ACC+2*r}, 16, v{OWN+r}", f"v_and_b32 v{ACC+2*r+1}, 0xffff0000, v{OWN+r}"]
    P += [f1cmp, "s_cmp_eq_u64 vcc, 0", "s_cbranch_scc0 Lf2", "Lf2_r:"]
    oline += spin("Lf2", f2ld, f1cmp)
    P += (st() if 4 in opt['stk'] else [])
    for i in range(3):
        for k in range(3):
            P += [f"buffer_load_dwordx4 {V(RX + (i*3+k)*4, 4)}, v{vLD}, s[{sWS}:{sWS+3}], s{sHB+k} offen offset:{i*1024} sc1"]
    for i in range(3):
        for k in range(3):
            for r in range(4):
                x = RX + (i*3+k)*4 + r
                P += [f"v_dot2c_f32_bf16 v{ACC+8*i+2*r}, s{sVU}, v{x}", f"v_dot2c_f32_bf16 v{ACC+8*i+2*r+1}, s{sVU+1}, v{x}"]
        for r in range(4): P += [f"v_cvt_pk_bf16_f32 v{OWN+4*i+r}, v{ACC+8*i+2*r}, v{ACC+8*i+2*r+1}"]
        for e in range(2): P += [f"buffer_store_dwordx2 {V(OWN+4*i+2*e, 2)}, v{vOUT+2*i+e}, s[{sOUT}:{sOUT+3}], 0 offen"]
    P += (st() if 5 in opt['stk'] else []) + st.dump() + ["Lend:", "s_endpgm"]
    lines, stats = finalize(P, quiet=bool(opt.get('strip')))
    print(stats, len(lines))
    lines += oline
    return lines

def build(opt):
    import re as _re
    scheds = opt['sched']
    nvar = len(scheds)
    lines = []
    if nvar > 1:
        sh, w = opt['vsel']
        lines += ["s_cmp_ge_u32 s2, 256", "s_cbranch_scc0 Lgo", "s_endpgm", "Lgo:", f"s_bfe_u32 s3, s2, {hex((w << 16) | sh)}"]
        for v in range(1, nvar):
            lines += [f"s_cmp_eq_u32 s3, {v}", f"s_cbranch_scc0 Lsk{v}", f"s_getpc_b64 s[4:5]", f"Lpc{v}:", f"s_add_u32 s4, s4, Lvar{v}-Lpc{v}", "s_addc_u32 s5, s5, 0", "s_setpc_b64 s[4:5]", f"Lsk{v}:"]
    for v in range(nvar):
        o = dict(opt); o['sched'] = scheds[v]
        body = build_body(o)
        if nvar > 1:
            body = [_re.sub(r'\b(L(?:end|notag|tag|f1|f2)(?:_[lr])?)\b', lambda m: m.group(1) + f"_v{v}", l) for l in body]
            lines += [".p2align 6", f"Lvar{v}:"] if v else []
        lines += body
    hdr = open('concat_heads__mha_block_cached__gqa_block_cached__near_ridge.s.ref').read().split('; Override')[0]
    txt = hdr + "; @launch grid=(256,1,1) block=(256,1,1) lds=163840\n" + '.amdgcn_target "amdgcn-amd-amdhsa--gfx950"\n.text\n'
    txt += f".globl {NAME}\n.p2align 8\n.type {NAME},@function\n{NAME}:\n" + "\n".join("  " + l if not l.endswith(':') else l for l in lines) + "\n"
    txt += (f'.section .rodata,"a"\n.p2align 6\n.amdhsa_kernel {NAME}\n  .amdhsa_next_free_vgpr 512\n  .amdhsa_next_free_sgpr 102\n  .amdhsa_accum_offset 256\n'
            "  .amdhsa_group_segment_fixed_size 0\n  .amdhsa_kernarg_size 104\n  .amdhsa_user_sgpr_count 2\n  .amdhsa_user_sgpr_kernarg_segment_ptr 1\n"
            "  .amdhsa_system_sgpr_workgroup_id_x 1\n.end_amdhsa_kernel\n")
    return txt

def parse_sched(s):
    out = []
    for t in s.split():
        k, rest = t[0], t[1:]
        cls = 'h'
        if rest.endswith('m'): cls = 'm'; rest = rest[:-1]
        out.append((k, int(rest), cls))
    return out
SCHED = ("X0m W0m W1m X1m W2m W3m X2m W4m W5m W6 X3 W7 W8 X4 W9 W10 X5 W11 X6 W12 W13 K0m K1m K2m K3m V0m O0m O1m V4m V1 V2 V3 O2m "
         "O3m V5 V6 F60 V7 P0 P1 V8m O4 V9 O5 V10 V11 V12m O6 P2 P3 V13 O7 V14 V15")

if __name__ == "__main__":
    opt = dict(wq_pol='', x_pol='', k_pol=' nt', v_pol='', wo_pol='', rot=1, nlock=2, hrot=1, urot=1, st=Stamps(False), stk=(0, 1, 2, 4, 5), mp=7, hp=3, ml=80, hl=36, gap=80,
               start=-160, verbose=1, s2at=3, pubd=30, sched=SCHED)
    for kv in sys.argv[2:]:
        k, v = kv.split('=')
        if k == 'st': opt['st'] = Stamps(True); opt['stk'] = tuple(int(x) for x in v.split(','))
        elif k == 'stp': opt['st'] = Stamps(True); opt['stk'] = (); opt['stp'] = tuple(int(x) for x in v.split(','))
        elif k in ('sched', 'mnt'): opt[k] = v
        else: opt[k] = ((' ' + v) if v else '') if k.endswith('pol') else int(v)
    if opt.get('rt'): opt['st'].rt = True
    opt['sched'] = [parse_sched(x) for x in opt['sched'].split('|')]
    opt['vsel'] = (opt.get('vsh', 3), 1 if len(opt['sched']) == 2 else 2)
    open(sys.argv[1], "w").write(build(opt))
```

```python
import struct, sys
from fw import *

def fbits(x): return struct.unpack('<I', struct.pack('<f', x))[0]
SZ_X, SZ_KV, SZ_W, SZ_OUT, SZ_WS = 1376256, 12582912, 3670016, 2752512, 268435456
SCALE = 1.4426950408889634 / 16.0
PART_OFF = 8 << 20
FLAG1_OFF = 40 << 20
FLAG2_OFF = 41 << 20
TAG_OFF = 42 << 20
NAME = "concat_heads__mha_block_cached__gqa_block_cached__near_ridge_kernel"

sX, sWQ, sK, sWS, sV, sWO, sOUT = 4, 8, 12, 16, 64, 68, 72
sHQ, sP, sHH, sBG, sH, sW, sB = 20, 21, 22, 23, 24, 25, 26
sM0B, sODD, sSC, sT0, sT1 = 27, 28, 30, 31, 32
sSTG, sWOM, sSO2 = 33, 34, 35
sWQO = 36
sXO = 50
sTAG, sCNT, sSO = 57, 62, 63
sDBG = 76
sHB = 80
sVU = 84
sWOR = 88
sVH, sWH = 90, 91
STAMP_REGS = [92, 94, 96, 98, 100]

vTR, vTRH, vW, vXD, vKD, vSR, vVD, vWO, vPA, vPB, vF = 2, 10, 18, 22, 24, 26, 28, 30, 37, 38, 39
vFR, NS = 40, 6
vACC = 64
vT = 64
def acc(t, mt): return vACC + (t * 3 + mt) * 4
def xreg(j, mt): return (j * 3 + mt) * 4
def kreg(s, kt):
    f = s * 3 + kt
    return 168 + 4 * f if f < 22 else 4 * (f - 22)
vTW, vTWH, vP2A, vP2B, vST, vF1A, vF2A, vLD, vOUT, vLW, vLR = 2, 3, 4, 5, 6, 7, 8, 9, 10, 16, 17
vU = 64
vUB = 148
def uacc(kt, nt): return vU + (nt * 3 + kt) * 4
def oacc(nt, mt): return 168 + (nt * 3 + mt) * 4
aV, NVF = 8, 31
aP = 132
def vfrag(sig, kt): return aV + ((sig * 3 + kt) % NVF) * 4
RING, SLAB = 7, 16384
SUP, R2 = 28672, 4
STG = 114688

flat = lambda gs: [x for g in gs for x in g]
def srd(d, lo, size):
    return [f"s_mov_b32 s{d}, s{lo}", f"s_mov_b32 s{d+1}, s{lo+1}", f"s_mov_b32 s{d+2}, {size}", f"s_mov_b32 s{d+3}, 0x20000"]

class Stamps:
    def __init__(self, on): self.on = on; self.n = 0; self.pend = []
    def __call__(self):
        if not self.on: return []
        r = STAMP_REGS[self.n % len(STAMP_REGS)]
        out = []
        if self.n >= len(STAMP_REGS): raise RuntimeError("too many stamps")
        self.n += 1
        if getattr(self, 'rt', False) and self.n in (2, 4): return [f"s_memrealtime s[{r}:{r+1}]"]
        return [f"s_memtime s[{r}:{r+1}]"]
    def dump(self):
        if not self.on: return []
        P = [Fence(), f"s_lshl_b32 s{sT0}, s2, 2", f"s_add_u32 s{sT0}, s{sT0}, s{sW}", f"s_lshl_b32 s{sT0}, s{sT0}, 7", f"s_add_u32 s{sT0}, s{sT0}, {64 << 20}", "v_mov_b32 v3, 0"]
        for i in range(self.n):
            P += [f"v_mov_b32 v2, s{STAMP_REGS[i]}", f"buffer_store_dword v2, v3, s[{sWS}:{sWS+3}], s{sT0} offen offset:{4*i}"]
        return P

def prologue(opt):
    P = ["s_cmp_ge_u32 s2, 256", "s_cbranch_scc1 Lend",
         "s_load_dwordx16 s[36:51], s[0:1], 0", "s_load_dwordx8 s[52:59], s[0:1], 64", "s_load_dwordx2 s[60:61], s[0:1], 96"] + opt['st']() + [
         f"s_and_b32 s{sHQ}, s2, 3", f"s_bfe_u32 s{sP}, s2, 0x10002", f"s_bfe_u32 s{sHH}, s2, 0x20003", f"s_lshr_b32 s{sBG}, s2, 5",
         f"s_lshl_b32 s{sH}, s{sHQ}, 2", f"s_add_u32 s{sH}, s{sH}, s{sHH}",
         "v_lshrrev_b32 v1, 6, v0", f"v_readfirstlane_b32 s{sW}, v1", "v_and_b32 v1, 63, v0",
         f"s_lshl_b32 s{sB}, s{sBG}, 2", f"s_add_u32 s{sB}, s{sB}, s{sW}"]
    a, b, c, d = vT, vT + 1, vT + 2, vT + 3
    if opt.get('cpf'):
        P += ["s_getpc_b64 s[88:89]", "Lpcf:", f"s_lshr_b32 s{sT0}, s2, 3", f"s_lshl_b32 s{sT0}, s{sT0}, 2", f"s_add_u32 s{sT0}, s{sT0}, s{sW}", f"s_lshl_b32 s{sT0}, s{sT0}, 9",
              f"v_and_b32 v{a}, 3, v1", f"v_lshlrev_b32 v{a}, 7, v{a}", f"v_add_u32 v{a}, s{sT0}, v{a}", f"v_min_u32 v{a}, Lcodeend-Lpcf-4, v{a}", XI(f"global_load_dword v{vF}, v{a}, s[88:89]")]
    P += [f"s_mul_i32 s{sSTG}, s{sW}, 12288", f"s_add_u32 s{sSTG}, s{sSTG}, {STG}", f"s_mul_i32 s{sT0}, s{sB}, 43008"]
    P += stage_dma_voff(vXD, 896, sT0)
    P += [f"s_lshl_b32 s{sM0B}, s{sW}, 12", f"s_and_b32 s{sT0}, s{sW}, 1", f"s_lshl_b32 s{sT0}, s{sT0}, 3",
          f"s_lshl_b32 s{sT1}, s{sW}, 16", f"s_lshl_b32 s{sSO}, s{sH}, 9", f"s_add_u32 s{sT1}, s{sT1}, s{sSO}",
          f"v_lshrrev_b32 v{a}, 5, v1", f"v_and_b32 v{b}, 31, v1", f"v_or_b32 v{c}, s{sT0}, v{a}", f"v_xor_b32 v{b}, v{b}, v{c}",
          f"v_lshlrev_b32 v{b}, 4, v{b}", f"v_lshl_add_u32 v{b}, v{a}, 13, v{b}", f"v_add_u32 v{vW}, s{sT1}, v{b}",
          f"v_xor_b32 v{c}, 64, v{vW}", f"v_add_u32 v{vW+1}, {16384-1024}, v{c}", f"v_add_u32 v{vW+2}, {2*(16384-1024)}, v{vW}", f"v_add_u32 v{vW+3}, {3*(16384-1024)}, v{c}"]
    P += [f"v_and_b32 v{a}, 15, v1", f"v_lshrrev_b32 v{b}, 4, v1", f"v_lshrrev_b32 v{c}, 1, v{a}", f"v_xor_b32 v{c}, v{c}, v{b}", f"v_lshlrev_b32 v{c}, 4, v{c}",
          f"v_lshl_add_u32 v{c}, v{a}, 7, v{c}", f"v_add_u32 v{vSR}, s{sSTG}, v{c}", f"v_xor_b32 v{c}, 64, v{c}", f"v_add_u32 v{vSR+1}, s{sSTG}, v{c}"]
    P += [f"s_mov_b32 s{sX+2}, {SZ_X}", f"s_mov_b32 s{sX+3}, 0x20000", f"s_mov_b32 s{sWQ+2}, {SZ_W}", f"s_mov_b32 s{sWQ+3}, 0x20000",
          f"s_mov_b32 s{sT0}, 0", f"s_mov_b32 s{sT1}, {1 << 18}", f"s_cmp_eq_u32 s{sP}, 0",
          f"s_cselect_b64 s[{sX}:{sX+1}], s[36:37], s[46:47]", f"s_cselect_b64 s[{sWQ}:{sWQ+1}], s[42:43], s[52:53]"]
    return P

def setup1(opt):
    P = [f"s_cmp_eq_u32 s{sP}, 0"]
    for i, d_ in ((1, sK), (2, sV), (4, sWO)):
        P.append(f"s_cselect_b64 s[{d_}:{d_+1}], s[{36+2*i}:{37+2*i}], s[{46+2*i}:{47+2*i}]")
    for d_, sz in ((sK, SZ_KV), (sV, SZ_KV), (sWO, SZ_W)):
        P += [f"s_mov_b32 s{d_+2}, {sz}", f"s_mov_b32 s{d_+3}, 0x20000"]
    P += srd(sOUT, 56, SZ_OUT) + srd(sWS, 60, SZ_WS) + srd(sDBG, 58, 256)
    P += [f"s_add_u32 s{sVH}, s60, {TAG_OFF}", f"s_addc_u32 s{sWH}, s61, 0", f"s_load_dword s{sTAG}, s[{sVH}:{sWH}], 0"]
    P += [f"s_mov_b32 s{sXO+1}, 128", f"s_mov_b32 s{sWQO+2}, {2 << 18}", f"s_mov_b32 s{sWQO+3}, {3 << 18}"]
    return P

def stage_dma_voff(vd, rowstride, sbase):
    a, b, c = vT, vT + 1, vT + 2
    return [f"v_lshrrev_b32 v{a}, 3, v1", f"v_and_b32 v{b}, 7, v1", f"v_lshrrev_b32 v{c}, 4, v1", f"v_xor_b32 v{b}, v{b}, v{c}", f"v_lshlrev_b32 v{b}, 4, v{b}",
            f"v_mul_u32_u24 v{a}, {rowstride}, v{a}", f"v_add3_u32 v{vd}, v{a}, v{b}, s{sbase}", f"v_xor_b32 v{b}, 64, v{b}", f"v_add3_u32 v{vd+1}, v{a}, v{b}, s{sbase}",
            f"v_add_u32 v{vd+1}, {8*rowstride - 1024}, v{vd+1}"]

def setup2(opt):
    P = []
    a, b, c, d, e = vT, vT + 1, vT + 2, vT + 3, vT + 4
    nl = opt['nlock']; nr = 7 - nl
    if opt['rot']:
        P += [f"s_lshl_b32 s{sCNT}, s{sHH}, 1", f"s_add_u32 s{sCNT}, s{sCNT}, s{sBG}"]
        for _ in range(3): P += [f"s_cmp_ge_u32 s{sCNT}, {nr}", f"s_cselect_b32 s{sSO}, {nr}, 0", f"s_sub_u32 s{sCNT}, s{sCNT}, s{sSO}"]
    else: P += [f"s_mov_b32 s{sCNT}, 0"]
    P += [f"s_add_u32 s{sCNT}, s{sCNT}, {nl}"]
    for j in range(2, nl):
        P += [f"s_mov_b32 s{sXO+j}, {j*128}", f"s_mov_b32 s{sWQO+2*j}, {j << 19}", f"s_mov_b32 s{sWQO+2*j+1}, {(j << 19) + (1 << 18)}"]
    for j in range(nl, 7):
        P += [f"s_lshl_b32 s{sXO+j}, s{sCNT}, 7", f"s_lshl_b32 s{sWQO+2*j}, s{sCNT}, 19", f"s_add_u32 s{sWQO+2*j+1}, s{sWQO+2*j}, {1 << 18}"]
        if j < 6: P += [f"s_add_u32 s{sCNT}, s{sCNT}, 1", f"s_cmp_eq_u32 s{sCNT}, 7", f"s_cselect_b32 s{sCNT}, {nl}, s{sCNT}"]
    P += [f"v_lshrrev_b32 v{a}, 4, v1", f"v_bfe_u32 v{b}, v1, 2, 2", f"v_and_b32 v{c}, 3, v1",
          f"v_lshl_add_u32 v{d}, v{a}, 3, v{b}", f"v_lshlrev_b32 v{d}, 9, v{d}",
          f"v_and_b32 v{a}, 1, v{a}", f"v_lshlrev_b32 v{a}, 3, v{a}",
          f"v_lshrrev_b32 v{e}, 1, v{b}", f"v_lshl_or_b32 v{a}, v{e}, 2, v{a}",
          f"v_and_b32 v{b}, 1, v{b}", f"v_or_b32 v{a}, v{a}, v{b}",
          f"v_xor_b32 v{a}, v{a}, v{c}", f"v_lshl_add_u32 v{d}, v{a}, 4, v{d}",
          f"v_and_b32 v{c}, 1, v{c}", f"v_lshl_add_u32 v{d}, v{c}, 3, v{d}"]
    for bb in range(4):
        for tau in range(2):
            P.append(f"v_xor_b32 v{vTR + bb*2 + tau}, {(bb << 6) | (tau << 3)}, v{d}")
            P.append(f"v_xor_b32 v{vTRH + bb*2 + tau}, {0x10000 | (bb << 6) | (tau << 3)}, v{d}")
    P += [f"s_lshl_b32 s{sSO}, s{sB}, 4", f"s_add_u32 s{sCNT}, s{sSO}, s{sH}", f"s_mul_i32 s{sSO2}, s{sCNT}, 24576"]
    P += stage_dma_voff(vKD, 512, sSO2)
    P += [f"s_mul_i32 s{sSO2}, s{sHH}, 24576", f"v_subrev_u32 v{vVD}, s{sSO2}, v{vKD}", f"v_subrev_u32 v{vVD+1}, s{sSO2}, v{vKD+1}"]
    P += [f"s_lshl_b32 s{sSO}, s{sP}, 9", f"s_add_u32 s{sSO}, s{sSO}, s{sCNT}", f"s_mul_i32 s{sSO}, s{sSO}, 4608",
          f"v_lshlrev_b32 v{a}, 4, v1", f"v_add_u32 v{vPA}, s{sSO}, v{a}", f"v_lshlrev_b32 v{a}, 3, v1", f"s_add_u32 s{sSO}, s{sSO}, 1024", f"v_add_u32 v{vPB}, s{sSO}, v{a}"]
    P += [f"s_mov_b32 s{sODD}, 0xffff0000", f"s_mov_b32 s{sODD+1}, 0xffff0000", f"s_mov_b32 s{sSC}, {fbits(SCALE)}"]
    for hn in range(4):
        src = sBG if opt['hrot'] else None
        if src is not None: P += [f"s_add_u32 s{sHB+hn}, s{src}, {hn}", f"s_and_b32 s{sHB+hn}, s{sHB+hn}, 3"]
        else: P += [f"s_mov_b32 s{sHB+hn}, {hn}"]
        if opt['urot']: P += [f"s_add_u32 s{sVU+hn}, s{sHH}, {hn}", f"s_and_b32 s{sVU+hn}, s{sVU+hn}, 3", f"s_lshl_b32 s{sVU+hn}, s{sVU+hn}, 7"]
        else: P += [f"s_mov_b32 s{sVU+hn}, {hn*128}"]
    for hf2 in range(2):
        P += [f"s_lshr_b32 s{sSO}, s{sW}, 1", f"s_add_u32 s{sSO}, s{sSO}, {2*hf2}"]
        if opt['urot']: P += [f"s_add_u32 s{sSO}, s{sSO}, s{sHH}"]
        P += [f"s_and_b32 s{sSO}, s{sSO}, 3", f"s_lshl_b32 s{sSO}, s{sSO}, 1", f"s_and_b32 s{sSO2}, s{sW}, 1", f"s_add_u32 s{sSO}, s{sSO}, s{sSO2}", f"s_mul_i32 s{sWOR+hf2}, s{sSO}, {32*896}"]
    P += [f"s_mul_i32 s{sWOM}, s{sW}, 7168"]
    P += [f"s_mul_i32 s{sSO}, s{sHH}, 224", f"s_mul_i32 s{sSO2}, s{sHQ}, {1024*896}", f"s_add_u32 s{sSO}, s{sSO}, s{sSO2}", f"s_mov_b32 s{sSO2}, {(1 << 32) // 14 + 1}"]
    for i in range(7):
        P += [f"v_add_u32 v{a}, {64*i}, v1", f"v_mul_hi_u32 v{b}, v{a}, s{sSO2}", f"v_mul_u32_u24 v{c}, 14, v{b}", f"v_sub_u32 v{c}, v{a}, v{c}",
              f"v_and_b32 v{a}, 19, v{b}", f"v_bfe_u32 v{d}, v{b}, 2, 1", f"v_lshl_or_b32 v{a}, v{d}, 3, v{a}", f"v_bfe_u32 v{d}, v{b}, 3, 1", f"v_lshl_or_b32 v{a}, v{d}, 2, v{a}",
              f"v_mul_u32_u24 v{a}, 896, v{a}", f"v_lshl_add_u32 v{a}, v{c}, 4, v{a}", f"v_add_u32 v{vWO+i}, s{sSO}, v{a}"]
        if i & 3: P += [f"v_subrev_u32 v{vWO+i}, {1024*(i & 3)}, v{vWO+i}"]
    P += [f"s_add_u32 s{sTAG}, s{sTAG}, 1", f"s_bitset1_b32 s{sTAG}, 31",
          f"s_or_b32 s{sSO}, s2, s{sW}", f"s_cmp_lg_u32 s{sSO}, 0", "s_cbranch_scc1 Lnotag",
          f"v_mov_b32 v{a}, s{sTAG}", f"v_mov_b32 v{b}, 0", f"s_mov_b32 s{sSO}, {TAG_OFF}", "s_mov_b64 exec, 1",
          XI(f"buffer_store_dword v{a}, v{b}, s[{sWS}:{sWS+3}], s{sSO} offen sc1"), XI(f"buffer_store_dword v{a}, v{b}, s[{sDBG}:{sDBG+3}], 0 offen sc1"),
          "s_mov_b64 exec, -1", "s_nop 1", "Lnotag:"]
    return P

def XI(txt):
    i = I(txt); i.kind = 'xvm'; return i

def setup3(opt):
    a, b, c, d = vFR, vFR + 1, vFR + 2, vFR + 3
    P = [f"v_bfe_u32 v{a}, v1, 2, 3", f"v_lshrrev_b32 v{b}, 5, v1", f"v_lshl_add_u32 v{a}, v{b}, 4, v{a}", f"v_mul_u32_u24 v{a}, 224, v{a}",
         f"v_and_b32 v{b}, 3, v1", f"v_lshl_add_u32 v{vTW}, v{b}, 3, v{a}", f"v_add_u32 v{vTWH}, {2*SUP}, v{vTW}",
         f"s_mul_i32 s{sT0}, s{sHH}, 4608", f"v_subrev_u32 v{vP2A}, s{sT0}, v{vPA}", f"v_subrev_u32 v{vP2B}, s{sT0}, v{vPB}"]
    P += [f"s_lshl_b32 s{sT0}, s{sP}, 9", f"s_lshl_b32 s{sT1}, s{sB}, 4", f"s_add_u32 s{sT0}, s{sT0}, s{sT1}", f"s_lshl_b32 s{sT1}, s{sHQ}, 2", f"s_add_u32 s{sT0}, s{sT0}, s{sT1}",
          f"s_lshl_b32 s{sT0}, s{sT0}, 7", f"s_add_u32 s{sT0}, s{sT0}, {FLAG1_OFF}", f"v_lshlrev_b32 v{b}, 7, v{b}", f"v_add_u32 v{vF1A}, s{sT0}, v{b}"]
    P += [f"s_lshl_b32 s{sT0}, s{sP}, 3", f"s_add_u32 s{sT0}, s{sT0}, s{sBG}", f"s_lshl_b32 s{sT0}, s{sT0}, 2", f"s_add_u32 s{sT0}, s{sT0}, s{sHH}",
          f"s_lshl_b32 s{sT0}, s{sT0}, 2", f"s_add_u32 s{sT0}, s{sT0}, s{sW}",
          f"s_lshl_b32 s{sT1}, s{sT0}, 9", f"s_add_u32 s{sT1}, s{sT1}, {FLAG2_OFF}", f"v_add_u32 v{vF2A}, s{sT1}, v{b}"]
    P += [f"s_mul_i32 s{sT0}, s{sT0}, 49152", f"s_add_u32 s{sT0}, s{sT0}, {PART_OFF}",
          f"s_mul_i32 s{sT1}, s{sHQ}, 3072", f"s_add_u32 s{sT1}, s{sT1}, s{sT0}",
          f"v_lshrrev_b32 v{a}, 4, v1", f"v_cmp_eq_u32 vcc, s{sHQ}, v{a}", f"v_mul_u32_u24 v{d}, 12288, v{a}", f"v_and_b32 v{c}, 15, v1", f"v_lshl_add_u32 v{d}, v{c}, 4, v{d}", f"v_add_u32 v{vST}, s{sT1}, v{d}",
          f"v_mov_b32 v{b}, 0x7ff00000", f"v_cndmask_b32 v{vST}, v{vST}, v{b}, vcc",
          f"s_mul_i32 s{sT1}, s{sHQ}, 12288", f"s_add_u32 s{sT1}, s{sT1}, s{sT0}", f"v_lshlrev_b32 v{d}, 4, v1", f"v_add_u32 v{vLD}, s{sT1}, v{d}",
          f"v_add_u32 v{vLW}, s{sSTG}, v{d}",
          f"s_lshl_b32 s{sT1}, s{sHQ}, 8", f"s_add_u32 s{sT1}, s{sT1}, s{sSTG}", f"v_lshlrev_b32 v{d}, 10, v{a}", f"v_lshl_add_u32 v{d}, v{c}, 4, v{d}", f"v_add_u32 v{vLR}, s{sT1}, v{d}"]
    P += [f"s_mul_i32 s{sT0}, s{sB}, {48*1792}", f"s_mul_i32 s{sT1}, s{sP}, 896", f"s_add_u32 s{sT0}, s{sT0}, s{sT1}", f"s_mul_i32 s{sT1}, s{sHH}, 224", f"s_add_u32 s{sT0}, s{sT0}, s{sT1}",
          f"s_lshl_b32 s{sT1}, s{sHQ}, 3", f"s_add_u32 s{sT0}, s{sT0}, s{sT1}", f"v_mul_u32_u24 v{c}, 1792, v{c}", f"v_add_u32 v{c}, s{sT0}, v{c}"]
    e_ = vFR + 4
    for i in range(6):
        P += [f"v_lshl_add_u32 v{e_}, v{a}, 1, {8*(i//2) + (i & 1)}", f"v_mul_u32_u24 v{b}, 43, v{e_}", f"v_lshrrev_b32 v{b}, 7, v{b}", f"v_mul_u32_u24 v{d}, 3, v{b}", f"v_sub_u32 v{d}, v{e_}, v{d}",
              f"v_mul_u32_u24 v{d}, {16*1792}, v{d}", f"v_lshl_add_u32 v{d}, v{b}, 5, v{d}", f"v_add_u32 v{vOUT+i}, v{c}, v{d}"]
        if i >= 4: P += [f"v_cmp_lt_u32 vcc, 20, v{e_}", f"v_mov_b32 v{b}, 0x7ff00000", f"v_cndmask_b32 v{vOUT+i}, v{vOUT+i}, v{b}, vcc"]
    return P

class Stager:
    def __init__(self, nsl): self.nsl = nsl; self.n = 0
    def tile(self, vdma, srd_, so_ins, pol, dst0, dst1):
        n = self.n; self.n += 1
        slot = n % self.nsl
        pre = [WaitTag(f"sr{n - self.nsl}")] if n >= self.nsl else []
        iss = [pre + [f"s_add_u32 m0, s{sSTG}, {slot*2048}"] + so_ins + [I(f"buffer_load_dwordx4 v{vdma}, s[{srd_}:{srd_+3}], s{sSO2} offen{pol} lds", tag=f"sd{n}")],
               [I(f"buffer_load_dwordx4 v{vdma+1}, s[{srd_}:{srd_+3}], s{sSO2} offen offset:1024{pol} lds", tag=f"sd{n}")]]
        rd = [WaitTag(f"sd{n}"), I(f"ds_read_b128 {dst0}, v{vSR} offset:{slot*2048}", tag=f"sr{n}"), I(f"ds_read_b128 {dst1}, v{vSR+1} offset:{slot*2048}", tag=f"sr{n}")]
        return iss, rd

def g_w(s, opt):
    slot = (s % RING) * SLAB
    return [([f"s_add_u32 m0, s{sM0B}, {slot}", "s_nop 0"] if i == 0 else []) +
            [I(f"buffer_load_dwordx4 v{vW+i}, s[{sWQ}:{sWQ+3}], s{(sT0, sT1)[s] if s < 2 else sWQO+s} offen offset:{i*1024}{opt['wq_pol']} lds", tag=f"slab{s}")] for i in range(4)]
def g_wo(j, opt):
    hn, half = divmod(j, 2)
    out = []
    for i in range(7):
        pre = []
        if i in (0, 4): pre += [f"s_add_u32 m0, s{sWOM}, {(j % R2) * SUP + i * 1024}"]
        if i == 0: pre += [f"s_mul_i32 s{sWH}, s{sHB+hn}, {256*896}", f"s_add_u32 s{sWH}, s{sWH}, s{sWOR+half}"]
        if i == 4: pre += ["s_nop 0"]
        out.append(pre + [I(f"buffer_load_dwordx4 v{vWO+i}, s[{sWO}:{sWO+3}], s{sWH} offen offset:{(i & 3)*1024}{opt['wo_pol']} lds", tag=f"sup{j}")])
    return out
def g_p(hn, opt):
    out = []
    o = (hn & 1) * 6
    for mt in range(3):
        pre = [f"s_mul_i32 s{sSO}, s{sHB+hn}, 4608"] if mt == 0 else []
        out.append(pre + [f"buffer_load_dwordx4 {A(aP + mt*12 + o, 4)}, v{vP2A}, s[{sWS}:{sWS+3}], s{sSO} offen offset:{mt*1536} sc1"])
        out.append([f"buffer_load_dwordx2 {A(aP + mt*12 + o + 4, 2)}, v{vP2B}, s[{sWS}:{sWS+3}], s{sSO} offen offset:{mt*1536} sc1"])
    return out

def tr_reads(T):
    ks, t = divmod(T, 16)
    sp, tau = divmod(t, 2)
    ap, bp = divmod(sp, 4)
    slot = ks % RING
    base = (vTR if slot < 4 else vTRH) + bp * 2 + tau
    off = (slot % 4) * SLAB + ap * 256
    d = vFR + (T % NS) * 4
    return [f"ds_read_b64_tr_b16 {V(d, 2)}, v{base} offset:{off}", f"ds_read_b64_tr_b16 {V(d+2, 2)}, v{base} offset:{off + 2048}"]
def wo_reads(F):
    sig, nt = divmod(F, 7)
    j, sl = divmod(sig, 4)
    ss = j % R2
    base = vTW if ss < 2 else vTWH
    off = (ss % 2) * SUP + sl * 7168 + nt * 32
    d = vFR + (F % NS) * 4
    return [f"ds_read_b64_tr_b16 {V(d, 2)}, v{base} offset:{off}", f"ds_read_b64_tr_b16 {V(d+2, 2)}, v{base} offset:{off + 1792}"]

def softmax_block(sacc, m, t, pk):
    sv = lambda mt: [sacc(kt, mt) + r for kt in range(3) for r in range(4)]
    Q = []
    for mt in range(3):
        x = sv(mt)
        Q.append(f"v_max3_f32 v{m[mt]}, v{x[0]}, v{x[1]}, v{x[2]}")
    for j in range(4):
        for mt in range(3):
            x = sv(mt); Q.append(f"v_max3_f32 v{m[mt]}, v{m[mt]}, v{x[3+2*j]}, v{x[4+2*j]}")
    for mt in range(3): Q.append(f"v_max_f32 v{m[mt]}, v{m[mt]}, v{sv(mt)[11]}")
    def xred(op):
        o = []
        for pl in ('v_permlane32_swap_b32', 'v_permlane16_swap_b32'):
            o += [f"v_mov_b32 v{t[mt]}, v{m[mt]}" for mt in range(3)]
            o += [f"{pl} v{m[mt]}, v{t[mt]}" for mt in range(3)]
            o += [f"{op} v{m[mt]}, v{m[mt]}, v{t[mt]}" for mt in range(3)]
        return o
    Q += xred('v_max_f32')
    Q += [f"v_mul_f32 v{m[mt]}, s{sSC}, v{m[mt]}" for mt in range(3)]
    for j in range(12):
        Q += [f"v_fma_f32 v{sv(mt)[j]}, v{sv(mt)[j]}, s{sSC}, -v{m[mt]}" for mt in range(3)]
        Q += [f"v_exp_f32 v{sv(mt)[j]}, v{sv(mt)[j]}" for mt in range(3)]
    Q += [f"v_add_f32 v{m[mt]}, v{sv(mt)[0]}, v{sv(mt)[1]}" for mt in range(3)]
    for j in range(2, 12):
        Q += [f"v_add_f32 v{m[mt]}, v{m[mt]}, v{sv(mt)[j]}" for mt in range(3)]
    Q += xred('v_add_f32')
    Q += [f"v_rcp_f32 v{m[mt]}, v{m[mt]}" for mt in range(3)]
    for mt in range(3):
        x = sv(mt)
        for j in range(12): Q.append(f"v_mul_f32 v{x[j]}, v{x[j]}, v{m[mt]}")
        for j in range(6): Q.append(f"v_cvt_pk_bf16_f32 v{pk + mt*6 + j}, v{x[2*j]}, v{x[2*j+1]}")
        Q.append(I(f"buffer_store_dwordx4 {V(pk + mt*6, 4)}, v{vPA}, s[{sWS}:{sWS+3}], 0 offen offset:{mt*1536} sc1", tag="pst"))
        Q.append(I(f"buffer_store_dwordx2 {V(pk + mt*6 + 4, 2)}, v{vPB}, s[{sWS}:{sWS+3}], 0 offen offset:{mt*1536} sc1", tag="pst"))
    return Q

def spin(label, load, cmp_):
    return [f"{label}:", f"s_mov_b32 s{sCNT}, 0x40000", f"{label}_l:", "s_sleep 2", load, "s_waitcnt vmcnt(0)", cmp_, "s_nop 4", "s_cmp_eq_u64 vcc, 0", f"s_cbranch_scc1 {label}_r",
            f"s_sub_u32 s{sCNT}, s{sCNT}, 1", f"s_cmp_lg_u32 s{sCNT}, 0", f"s_cbranch_scc1 {label}_l", f"s_branch {label}_r"]

def build_body(opt):
    st = opt['st']; st.n = 0
    sg = Stager(6)
    P = prologue(opt)
    tl = Timeline()
    LA = 4
    for ks in range(14):
        for t in range(16):
            T = ks * 16 + t
            af = vFR + (T % NS) * 4
            for mt in range(3):
                c = '0' if ks == 0 else V(acc(t, mt), 4)
                idx = tl.add(f"v_mfma_f32_16x16x32_bf16 {V(acc(t, mt), 4)}, {V(af, 4)}, {A(xreg(ks, mt), 4)}, {c}")
                if mt < 2 and T + LA < 224: tl.at(idx, tr_reads(T + LA)[mt])
        pre = ([WaitTag(f"slab{ks+1}")] if ks < 13 else []) + ["s_barrier"]
        if ks == 0: pre += (st() if 0 in opt['stk'] else []) + flat([tr_reads(T) for T in range(LA)])
        tl.at(ks * 48 - 1, *pre)
    b13 = 13 * 48
    cv = []
    for sp in range(8):
        for mt in range(3):
            t0, t1 = acc(2 * sp, mt), acc(2 * sp + 1, mt)
            cv += [f"v_cvt_pk_bf16_f32 v{t0}, v{t0}, v{t0+1}", f"v_cvt_pk_bf16_f32 v{t0+1}, v{t0+2}, v{t0+3}",
                   f"v_cvt_pk_bf16_f32 v{t0+2}, v{t1}, v{t1+1}", f"v_cvt_pk_bf16_f32 v{t0+3}, v{t1+2}, v{t1+3}"]
        sw = [f"s_mov_b64 exec, s[{sODD}:{sODD+1}]"]
        for mt in range(3):
            t0 = acc(2 * sp, mt)
            sw += [f"v_swap_b32 v{t0}, v{t0+2}", f"v_swap_b32 v{t0+1}, v{t0+3}"]
        sw.append("s_mov_b64 exec, -1")
        cv.append(sw)
    pos = b13 + 10; cnt = 0
    for c in cv:
        if isinstance(c, list): tl.at(pos, *c); pos += 3; cnt = 0
        else:
            tl.at(pos, c); cnt += 1
            if cnt == 2: cnt = 0; pos += 1
    sacc = lambda kt, mt: acc(2 * kt + 1, mt)
    for sp in range(8):
        for mt in range(3):
            for kt in range(3):
                c = '0' if sp == 0 else V(sacc(kt, mt), 4)
                tl.add(f"v_mfma_f32_16x16x32_bf16 {V(sacc(kt, mt), 4)}, {A(kreg(sp, kt), 4)}, {V(acc(2*sp, mt), 4)}, {c}")
    if 1 in opt['stk']: tl.at(b13 + 47, *st())
    s3 = setup3(opt)
    p0 = pos + 1
    for q in range(0, len(s3), 3): tl.at(min(p0 + q // 3, 743), *s3[q:q+3])
    tagld = f"buffer_load_dword v{vF}, off, s[{sDBG}:{sDBG+3}], 0 sc1"
    tl.at(640, tagld)
    f0 = acc(7, 0)
    sm = softmax_block(sacc, [f0, f0 + 1, f0 + 2], [f0 + 3, f0 + 4, f0 + 5], 208)
    sm_start = len(tl.main)
    for q in range(0, len(sm), 4):
        idx = tl.add(sm[q]); tl.at(idx, *sm[q+1:q+4])
    sm_end = len(tl.main)
    for _ in range(opt['gap']): tl.add(None)
    s2s = len(tl.main)
    oline = []
    tagchk = [f"v_cmp_eq_u32 vcc, 0, v{vF}", "s_cmp_eq_u64 vcc, 0", "s_cbranch_scc0 Ltag", "Ltag_r:", f"v_readfirstlane_b32 s{sTAG}, v{vF}"]
    oline += spin("Ltag", tagld, f"v_cmp_eq_u32 vcc, 0, v{vF}")
    tl.at(sm_start + 2, *tagchk)
    kstart = {}
    oinit = set()
    def pu(us):
        for nt in range(7):
            for u in us:
                ub = vUB + nt * 12 + u * 4
                for mt in range(3):
                    c = A(oacc(nt, mt), 4) if (nt, mt) in oinit else '0'
                    oinit.add((nt, mt))
                    tl.add(f"v_mfma_f32_16x16x32_bf16 {A(oacc(nt, mt), 4)}, {V(ub, 4)}, {A(aP + mt*12 + u*4, 4)}, {c}")
    pustart = {}
    for hn in range(4):
        for s in range(8):
            sig = hn * 8 + s
            kstart[sig] = len(tl.main)
            for nt in range(7):
                F = sig * 7 + nt
                bf = vFR + (F % NS) * 4
                for kt in range(3):
                    c = '0' if s == 0 else V(uacc(kt, nt), 4)
                    idx = tl.add(f"v_mfma_f32_16x16x32_bf16 {V(uacc(kt, nt), 4)}, {A(vfrag(sig, kt), 4)}, {V(bf, 4)}, {c}")
                    if kt < 2 and F + LA < 224: tl.at(idx, wo_reads(F + LA)[kt])
                if s == 7:
                    ub = vUB + nt * 12 + (hn % 2) * 6
                    for kt in range(3):
                        u = uacc(kt, nt)
                        tl.at(idx + 4 + kt, f"v_cvt_pk_bf16_f32 v{ub+2*kt}, v{u}, v{u+1}", f"v_cvt_pk_bf16_f32 v{ub+2*kt+1}, v{u+2}, v{u+3}")
        pustart[hn] = len(tl.main)
        if hn == 1: pu([0, 1, 2])
        elif hn == 2: pu([0])
        elif hn == 3: pu([1, 2])
    kstart[32] = len(tl.main)
    PK, TMP = 64, 108
    for nt in range(7):
        seq = []
        for mt in range(3):
            tile = nt * 3 + mt
            t4 = TMP + (tile % 6) * 4
            seq += [f"v_accvgpr_read_b32 v{t4+r}, a{oacc(nt, mt)+r}" for r in range(4)]
            seq += [f"v_cvt_pk_bf16_f32 v{PK+2*tile}, v{t4}, v{t4+1}", f"v_cvt_pk_bf16_f32 v{PK+2*tile+1}, v{t4+2}, v{t4+3}"]
            if tile % 2 == 1 or tile == 20:
                pr = tile // 2
                seq += [I(f"buffer_store_dwordx4 {V(PK+4*pr, 4)}, v{vST}, s[{sWS}:{sWS+3}], 0 offen offset:{pr*256} sc1", tag="part"),
                        I(f"ds_write_b128 v{vLW}, {V(PK+4*pr, 4)} offset:{pr*1024}", tag="ownw")]
        p0_ = pustart[3] + nt * 6 + 5 + 3
        for q in range(0, len(seq), 4): tl.at(p0_ + q // 4, *seq[q:q+4])
    for j in range(7):
        base = kstart[4 * j]
        if j == 0: pre = [WaitTag("sup0", "sup1"), "s_barrier"] + (st() if 2 in opt['stk'] else []) + flat([wo_reads(F) for F in range(LA)])
        else: pre = [WaitTag(f"sup{j+1}"), "s_barrier"]
        tl.at(base - 1, *pre)
    tl.at(sm_end + opt['pubd'], WaitTag("pst"), f"v_mov_b32 v{vF}, s{sTAG}", f"s_lshl_b32 s{sT0}, s{sHH}, 7", "s_mov_b64 exec, 1",
          f"buffer_store_dword v{vF}, v{vF1A}, s[{sWS}:{sWS+3}], s{sT0} offen sc1", "s_mov_b64 exec, -1")
    pace = {'m': opt['mp'], 'h': opt['hp']}; lag = {'m': opt['ml'], 'h': opt['hl']}
    cur = opt['start']; rdpos = []; rep = []
    f1ld = f"buffer_load_dword v{vF}, v{vF1A}, s[{sWS}:{sWS+3}], 0 offen sc1"
    f1cmp = f"v_cmp_ne_u32 vcc, s{sTAG}, v{vF}"
    posl = []
    base_pol = {k: opt[k] for k in ('wq_pol', 'x_pol', 'v_pol', 'wo_pol')}
    for n_, (kind, idx, cls) in enumerate(opt['sched']):
        posl.append(f'{kind}{idx}@{cur}')
        for k_ in base_pol: opt[k_] = ' nt' if (cls == 'm' and k_[0] in opt.get('mnt', '') or (k_ == 'wo_pol' and cls == 'm' and 'o' in opt.get('mnt', ''))) and not (k_ == 'wo_pol' and 'o' not in opt.get('mnt', '')) else base_pol[k_]
        if kind == 'W':
            if idx >= RING: cur = max(cur, 48 * (idx - RING + 1))
            for it in g_w(idx, opt): tl.at(cur, *it); cur += pace[cls]
            rep.append(f"W{idx}:{48*max(idx-1,0) - 1 - (cur - pace[cls])}")
        elif kind == 'O':
            e = {0: 48 * 9, 1: 48 * 11, 2: 48 * 13}.get(idx)
            if e is None: e = kstart[4 * (idx - 3)]
            cur = max(cur, e)
            for it in g_wo(idx, opt): tl.at(cur, *it); cur += pace[cls]
            rep.append(f"O{idx}:{kstart[4*max(idx-1,0)] - 1 - (cur - pace[cls])}")
        elif kind == 'F':
            cur = max(cur, idx + s2s)
            tl.at(cur, f1ld); cur += lag['h']
            tl.at(cur, f1cmp, "s_cmp_eq_u64 vcc, 0", "s_cbranch_scc0 Lf1", "Lf1_r:")
            oline += spin("Lf1", f1ld, f1cmp)
        elif kind == 'P':
            if idx >= 2: cur = max(cur, kstart[16])
            for it in g_p(idx, opt): tl.at(cur, *it); cur += pace[cls]
            rep.append(f"P{idx}:{pustart[max(idx,1)] - cur}")
        else:
            for q in range(3):
                if kind == 'X':
                    iss, rd = sg.tile(vXD, sX, [f"s_add_u32 s{sSO2}, s{sXO+idx}, {q*14336}" if idx else f"s_mov_b32 s{sSO2}, {q*14336}"], opt['x_pol'], A(xreg(2*idx, q), 4), A(xreg(2*idx+1, q), 4))
                    dl = 96 * idx - 6; er = -9999
                elif kind == 'K':
                    iss, rd = sg.tile(vKD, sK, [f"s_mov_b32 s{sSO2}, {q*8192 + idx*128}"], opt['k_pol'], A(kreg(2*idx, q), 4), A(kreg(2*idx+1, q), 4))
                    dl = 672 + 18 * idx - 6; er = 48 if (idx == 3 and q >= 1) else -9999
                else:
                    hn, j = divmod(idx, 4)
                    so = ([f"s_mul_i32 s{sVH}, s{sHB+hn}, 24576", f"s_add_u32 s{sVH}, s{sVH}, s{sVU+j}"] if q == 0 else []) + [f"s_add_u32 s{sSO2}, s{sVH}, {q*8192}"]
                    iss, rd = sg.tile(vVD, sV, so, opt['v_pol'], A(vfrag(2*idx, q), 4), A(vfrag(2*idx+1, q), 4))
                    dl = kstart[2 * idx] - 6
                    er = -9999
                    for e in range(2):
                        f = (2 * idx + e) * 3 + q
                        if f >= NVF:
                            ps, pk_ = divmod(f - NVF, 3); er = max(er, kstart[ps + 1] if (ps + 1) % 8 else pustart[ps // 8])
                        else:
                            r = aV + f * 4; er = max(er, 48 * (r // 12 + 1) if (r % 12) <= 8 else 48 * (r // 12 + 2))
                n = len(rdpos)
                if n >= sg.nsl: cur = max(cur, rdpos[n - sg.nsl] + 4)
                cur = max(cur, er - lag[cls])
                tl.at(cur, *iss[0]); tl.at(cur, *iss[1]); last = cur; cur += 2 * pace[cls]
                rp = max(min(last + pace[cls] + lag[cls], dl), er, last)
                if rdpos: rp = max(rp, rdpos[-1])
                if rp == -1: rp = -2
                if rp > dl and dl >= 0: print("LATE", kind, idx, q, rp, dl)
                assert rp <= dl + 5 or dl < 0, (kind, idx, rp, dl)
                tl.at(rp, *rd); rdpos.append(rp)
                rep.append(f"{kind}{idx}.{q}:{rp - last}")
        if n_ == 2: tl.at(cur - 1, *setup1(opt))
        if n_ == opt['s2at']: assert cur - 1 < -2; tl.at(cur - 1, *setup2(opt))
    for sp_ in opt.get('stp', ()): tl.at(sp_, *st())
    if opt.get('verbose') == 2: print(' '.join(posl))
    if opt.get('verbose') == 1: print(" ".join(rep), "end", cur, "s2s", s2s, "total", len(tl.main))
    body = tl.flat()
    if opt.get('strip') == 1:
        txt = lambda x: x if isinstance(x, str) else getattr(x, 'txt', '')
        body = [x for x in body if not (txt(x).startswith('v_mfma') or txt(x).startswith('ds_read_b64_tr') or txt(x).startswith('v_cvt') or txt(x).startswith('v_exp') or txt(x).startswith('v_swap'))]
    if opt.get('strip') == 2:
        nb = []
        for x in body:
            t = x if isinstance(x, str) else getattr(x, 'txt', '')
            if t.startswith('buffer_load_dwordx4') and ' lds' in t:
                y = I("s_nop 0"); y.tag = x.tag; nb.append(y)
            else: nb.append(x)
        body = nb
    P += body + (st() if 3 in opt['stk'] else [])
    f2ld = f"buffer_load_dword v{vF}, v{vF2A}, s[{sWS}:{sWS+3}], 0 offen sc1"
    P += [f"v_mov_b32 v{vF}, s{sTAG}", f"s_lshl_b32 s{sT0}, s{sHQ}, 7", WaitTag("part"), "s_mov_b64 exec, 1",
          f"buffer_store_dword v{vF}, v{vF2A}, s[{sWS}:{sWS+3}], s{sT0} offen sc1", "s_mov_b64 exec, -1", "s_nop 1", f2ld]
    OWN, ACC, RX = 108, 120, 148
    P += [WaitTag("ownw")] + [f"ds_read_b128 {V(OWN + 4*i, 4)}, v{vLR} offset:{i*4096}" for i in range(3)]
    for k in range(3): P += [f"s_add_u32 s{sHB+k}, s{sHQ}, {k+1}", f"s_and_b32 s{sHB+k}, s{sHB+k}, 3", f"s_mul_i32 s{sHB+k}, s{sHB+k}, 3072"]
    P += [f"s_mov_b32 s{sVU}, 0x3f80", f"s_mov_b32 s{sVU+1}, 0x3f800000"]
    for r in range(12): P += [f"v_lshlrev_b32 v{ACC+2*r}, 16, v{OWN+r}", f"v_and_b32 v{ACC+2*r+1}, 0xffff0000, v{OWN+r}"]
    P += [f1cmp, "s_cmp_eq_u64 vcc, 0", "s_cbranch_scc0 Lf2", "Lf2_r:"]
    oline += spin("Lf2", f2ld, f1cmp)
    P += (st() if 4 in opt['stk'] else [])
    for i in range(3):
        for k in range(3):
            P += [f"buffer_load_dwordx4 {V(RX + (i*3+k)*4, 4)}, v{vLD}, s[{sWS}:{sWS+3}], s{sHB+k} offen offset:{i*1024} sc1"]
    for i in range(3):
        for k in range(3):
            for r in range(4):
                x = RX + (i*3+k)*4 + r
                P += [f"v_dot2c_f32_bf16 v{ACC+8*i+2*r}, s{sVU}, v{x}", f"v_dot2c_f32_bf16 v{ACC+8*i+2*r+1}, s{sVU+1}, v{x}"]
        for r in range(4): P += [f"v_cvt_pk_bf16_f32 v{OWN+4*i+r}, v{ACC+8*i+2*r}, v{ACC+8*i+2*r+1}"]
        for e in range(2): P += [f"buffer_store_dwordx2 {V(OWN+4*i+2*e, 2)}, v{vOUT+2*i+e}, s[{sOUT}:{sOUT+3}], 0 offen"]
    P += (st() if 5 in opt['stk'] else []) + st.dump() + ["Lend:", "s_endpgm"]
    lines, stats = finalize(P, quiet=bool(opt.get('strip')))
    print(stats, len(lines))
    lines += oline + ['Lcodeend:']
    return lines

def build(opt):
    import re as _re
    scheds = opt['sched']
    nvar = len(scheds)
    lines = []
    if nvar > 1:
        sh, w = opt['vsel']
        lines += ["s_cmp_ge_u32 s2, 256", "s_cbranch_scc0 Lgo", "s_endpgm", "Lgo:", f"s_bfe_u32 s3, s2, {hex((w << 16) | sh)}"]
        for v in range(1, nvar):
            lines += [f"s_cmp_eq_u32 s3, {v}", f"s_cbranch_scc0 Lsk{v}", f"s_getpc_b64 s[4:5]", f"Lpc{v}:", f"s_add_u32 s4, s4, Lvar{v}-Lpc{v}", "s_addc_u32 s5, s5, 0", "s_setpc_b64 s[4:5]", f"Lsk{v}:"]
    for v in range(nvar):
        o = dict(opt); o['sched'] = scheds[v]
        body = build_body(o)
        if nvar > 1:
            body = [_re.sub(r'\b(L(?:end|notag|tag|f1|f2|pcf|codeend)(?:_[lr])?)\b', lambda m: m.group(1) + f"_v{v}", l) for l in body]
            lines += [".p2align 6", f"Lvar{v}:"] if v else []
        lines += body
    hdr = open('concat_heads__mha_block_cached__gqa_block_cached__near_ridge.s.ref').read().split('; Override')[0]
    txt = hdr + "; @launch grid=(256,1,1) block=(256,1,1) lds=163840\n" + '.amdgcn_target "amdgcn-amd-amdhsa--gfx950"\n.text\n'
    txt += f".globl {NAME}\n.p2align 8\n.type {NAME},@function\n{NAME}:\n" + "\n".join("  " + l if not l.endswith(':') else l for l in lines) + "\n"
    txt += (f'.section .rodata,"a"\n.p2align 6\n.amdhsa_kernel {NAME}\n  .amdhsa_next_free_vgpr 512\n  .amdhsa_next_free_sgpr 102\n  .amdhsa_accum_offset 256\n'
            "  .amdhsa_group_segment_fixed_size 0\n  .amdhsa_kernarg_size 104\n  .amdhsa_user_sgpr_count 2\n  .amdhsa_user_sgpr_kernarg_segment_ptr 1\n"
            "  .amdhsa_system_sgpr_workgroup_id_x 1\n.end_amdhsa_kernel\n")
    return txt

def parse_sched(s):
    out = []
    for t in s.split():
        k, rest = t[0], t[1:]
        cls = 'h'
        if rest.endswith('m'): cls = 'm'; rest = rest[:-1]
        out.append((k, int(rest), cls))
    return out
SCHED = ("X0m W0m W1m X1m W2m W3m X2m W4m W5m W6 X3 W7 W8 X4 W9 W10 X5 W11 X6 W12 W13 K0m K1m K2m K3m V0m O0m O1m V4m V1 V2 V3 O2m "
         "O3m V5 V6 F60 V7 P0 P1 V8m O4 V9 O5 V10 V11 V12m O6 P2 P3 V13 O7 V14 V15")

if __name__ == "__main__":
    opt = dict(wq_pol='', x_pol='', k_pol=' nt', v_pol='', wo_pol='', rot=1, nlock=2, hrot=1, urot=1, st=Stamps(False), stk=(0, 1, 2, 4, 5), mp=7, hp=3, ml=80, hl=36, gap=80,
               start=-160, verbose=1, s2at=3, pubd=30, sched=SCHED)
    for kv in sys.argv[2:]:
        k, v = kv.split('=')
        if k == 'st': opt['st'] = Stamps(True); opt['stk'] = tuple(int(x) for x in v.split(','))
        elif k == 'stp': opt['st'] = Stamps(True); opt['stk'] = (); opt['stp'] = tuple(int(x) for x in v.split(','))
        elif k in ('sched', 'mnt'): opt[k] = v
        else: opt[k] = ((' ' + v) if v else '') if k.endswith('pol') else int(v)
    if opt.get('rt'): opt['st'].rt = True
    opt['sched'] = [parse_sched(x) for x in opt['sched'].split('|')]
    opt['vsel'] = (opt.get('vsh', 3), 1 if len(opt['sched']) == 2 else 2)
    open(sys.argv[1], "w").write(build(opt))
```

```python
import struct, sys
from fw import *

def fbits(x): return struct.unpack('<I', struct.pack('<f', x))[0]
SZ_X, SZ_KV, SZ_W, SZ_OUT, SZ_WS = 1376256, 12582912, 3670016, 2752512, 268435456
SCALE = 1.4426950408889634 / 16.0
PART_OFF = 8 << 20
FLAG1_OFF = 40 << 20
FLAG2_OFF = 41 << 20
TAG_OFF = 42 << 20
NAME = "concat_heads__mha_block_cached__gqa_block_cached__near_ridge_kernel"

sX, sWQ, sK, sWS, sV, sWO, sOUT = 4, 8, 12, 16, 64, 68, 72
sHQ, sP, sHH, sBG, sH, sW, sB = 20, 21, 22, 23, 24, 25, 26
sM0B, sODD, sSC, sT0, sT1 = 27, 28, 30, 31, 32
sSTG, sWOM, sSO2 = 33, 34, 35
sWQO = 36
sXO = 50
sTAG, sCNT, sSO = 57, 62, 63
sDBG = 76
sHB = 80
sVU = 84
sWOR = 88
sVH, sWH = 90, 91
STAMP_REGS = [92, 94, 96, 98, 100]

vTR, vTRH, vW, vXD, vKD, vSR, vVD, vWO, vPA, vPB, vF = 2, 10, 18, 22, 24, 26, 28, 30, 37, 38, 39
vFR, NS = 40, 6
vACC = 64
vT = 64
def acc(t, mt): return vACC + (t * 3 + mt) * 4
def xreg(j, mt): return (j * 3 + mt) * 4
def kreg(s, kt):
    f = s * 3 + kt
    return 168 + 4 * f if f < 22 else 4 * (f - 22)
vTW, vTWH, vP2A, vP2B, vST, vF1A, vF2A, vLD, vOUT, vLW, vLR = 2, 3, 4, 5, 6, 7, 8, 9, 10, 16, 17
vU = 64
vUB = 148
def uacc(kt, nt): return vU + (nt * 3 + kt) * 4
def oacc(nt, mt): return 168 + (nt * 3 + mt) * 4
aV, NVF = 8, 31
aP = 132
def vfrag(sig, kt): return aV + ((sig * 3 + kt) % NVF) * 4
RING, SLAB = 7, 16384
SUP, R2 = 28672, 4
STG = 114688

flat = lambda gs: [x for g in gs for x in g]
def srd(d, lo, size):
    return [f"s_mov_b32 s{d}, s{lo}", f"s_mov_b32 s{d+1}, s{lo+1}", f"s_mov_b32 s{d+2}, {size}", f"s_mov_b32 s{d+3}, 0x20000"]

class Stamps:
    def __init__(self, on): self.on = on; self.n = 0; self.pend = []
    def __call__(self):
        if not self.on: return []
        r = STAMP_REGS[self.n % len(STAMP_REGS)]
        out = []
        if self.n >= len(STAMP_REGS): raise RuntimeError("too many stamps")
        self.n += 1
        if getattr(self, 'rt', 0) == 2 or (getattr(self, 'rt', 0) == 1 and self.n in (2, 4)): return [f"s_memrealtime s[{r}:{r+1}]"]
        return [f"s_memtime s[{r}:{r+1}]"]
    def dump(self):
        if not self.on: return []
        if getattr(self, 'dbg', 0):
            R = STAMP_REGS
            P = [Fence(), "s_mov_b64 exec, 1", "v_mov_b32 v3, 0", f"s_not_b32 s{sT0}, s{R[0]}", f"v_mov_b32 v2, s{sT0}", f"buffer_atomic_umax v2, v3, s[{sDBG}:{sDBG+3}], 0 offen offset:8",
                 f"v_mov_b32 v4, s{R[self.n-1]}", f"buffer_atomic_umax v4, v3, s[{sDBG}:{sDBG+3}], 0 offen offset:12"]
            for i in range(1, self.n):
                P += [f"s_sub_u32 s{sT0}, s{R[i]}, s{R[0]}", f"v_mov_b32 v{4+i}, s{sT0}", f"buffer_atomic_umax v{4+i}, v3, s[{sDBG}:{sDBG+3}], 0 offen offset:{12+4*i}",
                      f"buffer_atomic_add v{4+i}, v3, s[{sDBG}:{sDBG+3}], 0 offen offset:{32+4*i}"]
            return P
        P = [Fence(), f"s_lshl_b32 s{sT0}, s2, 2", f"s_add_u32 s{sT0}, s{sT0}, s{sW}", f"s_lshl_b32 s{sT0}, s{sT0}, 7", f"s_add_u32 s{sT0}, s{sT0}, {64 << 20}", "v_mov_b32 v3, 0"]
        for i in range(self.n):
            P += [f"v_mov_b32 v2, s{STAMP_REGS[i]}", f"buffer_store_dword v2, v3, s[{sWS}:{sWS+3}], s{sT0} offen offset:{4*i}"]
        return P

def prologue(opt):
    P = ["s_cmp_ge_u32 s2, 256", "s_cbranch_scc1 Lend",
         "s_load_dwordx16 s[36:51], s[0:1], 0", "s_load_dwordx8 s[52:59], s[0:1], 64", "s_load_dwordx2 s[60:61], s[0:1], 96"] + opt['st']() + [
         f"s_and_b32 s{sHQ}, s2, 3", f"s_bfe_u32 s{sP}, s2, 0x10002", f"s_bfe_u32 s{sHH}, s2, 0x20003", f"s_lshr_b32 s{sBG}, s2, 5",
         f"s_lshl_b32 s{sH}, s{sHQ}, 2", f"s_add_u32 s{sH}, s{sH}, s{sHH}",
         "v_lshrrev_b32 v1, 6, v0", f"v_readfirstlane_b32 s{sW}, v1", "v_and_b32 v1, 63, v0",
         f"s_lshl_b32 s{sB}, s{sBG}, 2", f"s_add_u32 s{sB}, s{sB}, s{sW}"]
    a, b, c, d = vT, vT + 1, vT + 2, vT + 3
    if opt.get('cpf'):
        P += ["s_getpc_b64 s[88:89]", "Lpcf:", f"s_lshr_b32 s{sT0}, s2, 3", f"s_lshl_b32 s{sT0}, s{sT0}, 2", f"s_add_u32 s{sT0}, s{sT0}, s{sW}", f"s_lshl_b32 s{sT0}, s{sT0}, 9",
              f"v_and_b32 v{a}, 3, v1", f"v_lshlrev_b32 v{a}, 7, v{a}", f"v_add_u32 v{a}, s{sT0}, v{a}", f"v_min_u32 v{a}, Lcodeend-Lpcf-4, v{a}", XI(f"global_load_dword v{vF}, v{a}, s[88:89]")]
    P += [f"s_mul_i32 s{sSTG}, s{sW}, 12288", f"s_add_u32 s{sSTG}, s{sSTG}, {STG}", f"s_mul_i32 s{sT0}, s{sB}, 43008"]
    P += stage_dma_voff(vXD, 896, sT0)
    P += [f"s_lshl_b32 s{sM0B}, s{sW}, 12", f"s_and_b32 s{sT0}, s{sW}, 1", f"s_lshl_b32 s{sT0}, s{sT0}, 3",
          f"s_lshl_b32 s{sT1}, s{sW}, 16", f"s_lshl_b32 s{sSO}, s{sH}, 9", f"s_add_u32 s{sT1}, s{sT1}, s{sSO}",
          f"v_lshrrev_b32 v{a}, 5, v1", f"v_and_b32 v{b}, 31, v1", f"v_or_b32 v{c}, s{sT0}, v{a}", f"v_xor_b32 v{b}, v{b}, v{c}",
          f"v_lshlrev_b32 v{b}, 4, v{b}", f"v_lshl_add_u32 v{b}, v{a}, 13, v{b}", f"v_add_u32 v{vW}, s{sT1}, v{b}",
          f"v_xor_b32 v{c}, 64, v{vW}", f"v_add_u32 v{vW+1}, {16384-1024}, v{c}", f"v_add_u32 v{vW+2}, {2*(16384-1024)}, v{vW}", f"v_add_u32 v{vW+3}, {3*(16384-1024)}, v{c}"]
    P += [f"v_and_b32 v{a}, 15, v1", f"v_lshrrev_b32 v{b}, 4, v1", f"v_lshrrev_b32 v{c}, 1, v{a}", f"v_xor_b32 v{c}, v{c}, v{b}", f"v_lshlrev_b32 v{c}, 4, v{c}",
          f"v_lshl_add_u32 v{c}, v{a}, 7, v{c}", f"v_add_u32 v{vSR}, s{sSTG}, v{c}", f"v_xor_b32 v{c}, 64, v{c}", f"v_add_u32 v{vSR+1}, s{sSTG}, v{c}"]
    P += [f"s_mov_b32 s{sX+2}, {SZ_X}", f"s_mov_b32 s{sX+3}, 0x20000", f"s_mov_b32 s{sWQ+2}, {SZ_W}", f"s_mov_b32 s{sWQ+3}, 0x20000",
          f"s_mov_b32 s{sT0}, 0", f"s_mov_b32 s{sT1}, {1 << 18}", f"s_cmp_eq_u32 s{sP}, 0",
          f"s_cselect_b64 s[{sX}:{sX+1}], s[36:37], s[46:47]", f"s_cselect_b64 s[{sWQ}:{sWQ+1}], s[42:43], s[52:53]"]
    return P

def setup1(opt):
    P = [f"s_cmp_eq_u32 s{sP}, 0"]
    for i, d_ in ((1, sK), (2, sV), (4, sWO)):
        P.append(f"s_cselect_b64 s[{d_}:{d_+1}], s[{36+2*i}:{37+2*i}], s[{46+2*i}:{47+2*i}]")
    for d_, sz in ((sK, SZ_KV), (sV, SZ_KV), (sWO, SZ_W)):
        P += [f"s_mov_b32 s{d_+2}, {sz}", f"s_mov_b32 s{d_+3}, 0x20000"]
    P += srd(sOUT, 56, SZ_OUT) + srd(sWS, 60, SZ_WS) + srd(sDBG, 58, 256)
    P += [f"s_add_u32 s{sVH}, s60, {TAG_OFF}", f"s_addc_u32 s{sWH}, s61, 0", f"s_load_dword s{sTAG}, s[{sVH}:{sWH}], 0"]
    P += [f"s_mov_b32 s{sXO+1}, 128", f"s_mov_b32 s{sWQO+2}, {2 << 18}", f"s_mov_b32 s{sWQO+3}, {3 << 18}"]
    return P

def stage_dma_voff(vd, rowstride, sbase):
    a, b, c = vT, vT + 1, vT + 2
    return [f"v_lshrrev_b32 v{a}, 3, v1", f"v_and_b32 v{b}, 7, v1", f"v_lshrrev_b32 v{c}, 4, v1", f"v_xor_b32 v{b}, v{b}, v{c}", f"v_lshlrev_b32 v{b}, 4, v{b}",
            f"v_mul_u32_u24 v{a}, {rowstride}, v{a}", f"v_add3_u32 v{vd}, v{a}, v{b}, s{sbase}", f"v_xor_b32 v{b}, 64, v{b}", f"v_add3_u32 v{vd+1}, v{a}, v{b}, s{sbase}",
            f"v_add_u32 v{vd+1}, {8*rowstride - 1024}, v{vd+1}"]

def setup2(opt):
    P = []
    a, b, c, d, e = vT, vT + 1, vT + 2, vT + 3, vT + 4
    nl = opt['nlock']; nr = 7 - nl
    if opt['rot']:
        P += [f"s_lshl_b32 s{sCNT}, s{sHH}, 1", f"s_add_u32 s{sCNT}, s{sCNT}, s{sBG}"]
        for _ in range(3): P += [f"s_cmp_ge_u32 s{sCNT}, {nr}", f"s_cselect_b32 s{sSO}, {nr}, 0", f"s_sub_u32 s{sCNT}, s{sCNT}, s{sSO}"]
    else: P += [f"s_mov_b32 s{sCNT}, 0"]
    P += [f"s_add_u32 s{sCNT}, s{sCNT}, {nl}"]
    for j in range(2, nl):
        P += [f"s_mov_b32 s{sXO+j}, {j*128}", f"s_mov_b32 s{sWQO+2*j}, {j << 19}", f"s_mov_b32 s{sWQO+2*j+1}, {(j << 19) + (1 << 18)}"]
    for j in range(nl, 7):
        P += [f"s_lshl_b32 s{sXO+j}, s{sCNT}, 7", f"s_lshl_b32 s{sWQO+2*j}, s{sCNT}, 19", f"s_add_u32 s{sWQO+2*j+1}, s{sWQO+2*j}, {1 << 18}"]
        if j < 6: P += [f"s_add_u32 s{sCNT}, s{sCNT}, 1", f"s_cmp_eq_u32 s{sCNT}, 7", f"s_cselect_b32 s{sCNT}, {nl}, s{sCNT}"]
    P += [f"v_lshrrev_b32 v{a}, 4, v1", f"v_bfe_u32 v{b}, v1, 2, 2", f"v_and_b32 v{c}, 3, v1",
          f"v_lshl_add_u32 v{d}, v{a}, 3, v{b}", f"v_lshlrev_b32 v{d}, 9, v{d}",
          f"v_and_b32 v{a}, 1, v{a}", f"v_lshlrev_b32 v{a}, 3, v{a}",
          f"v_lshrrev_b32 v{e}, 1, v{b}", f"v_lshl_or_b32 v{a}, v{e}, 2, v{a}",
          f"v_and_b32 v{b}, 1, v{b}", f"v_or_b32 v{a}, v{a}, v{b}",
          f"v_xor_b32 v{a}, v{a}, v{c}", f"v_lshl_add_u32 v{d}, v{a}, 4, v{d}",
          f"v_and_b32 v{c}, 1, v{c}", f"v_lshl_add_u32 v{d}, v{c}, 3, v{d}"]
    for bb in range(4):
        for tau in range(2):
            P.append(f"v_xor_b32 v{vTR + bb*2 + tau}, {(bb << 6) | (tau << 3)}, v{d}")
            P.append(f"v_xor_b32 v{vTRH + bb*2 + tau}, {0x10000 | (bb << 6) | (tau << 3)}, v{d}")
    P += [f"s_lshl_b32 s{sSO}, s{sB}, 4", f"s_add_u32 s{sCNT}, s{sSO}, s{sH}", f"s_mul_i32 s{sSO2}, s{sCNT}, 24576"]
    P += stage_dma_voff(vKD, 512, sSO2)
    P += [f"s_mul_i32 s{sSO2}, s{sHH}, 24576", f"v_subrev_u32 v{vVD}, s{sSO2}, v{vKD}", f"v_subrev_u32 v{vVD+1}, s{sSO2}, v{vKD+1}"]
    P += [f"s_lshl_b32 s{sSO}, s{sP}, 9", f"s_add_u32 s{sSO}, s{sSO}, s{sCNT}", f"s_mul_i32 s{sSO}, s{sSO}, 4608",
          f"v_lshlrev_b32 v{a}, 4, v1", f"v_add_u32 v{vPA}, s{sSO}, v{a}", f"v_lshlrev_b32 v{a}, 3, v1", f"s_add_u32 s{sSO}, s{sSO}, 1024", f"v_add_u32 v{vPB}, s{sSO}, v{a}"]
    P += [f"s_mov_b32 s{sODD}, 0xffff0000", f"s_mov_b32 s{sODD+1}, 0xffff0000", f"s_mov_b32 s{sSC}, {fbits(SCALE)}"]
    for hn in range(4):
        src = sBG if opt['hrot'] else None
        if src is not None: P += [f"s_add_u32 s{sHB+hn}, s{src}, {hn}", f"s_and_b32 s{sHB+hn}, s{sHB+hn}, 3"]
        else: P += [f"s_mov_b32 s{sHB+hn}, {hn}"]
        if opt['urot']: P += [f"s_add_u32 s{sVU+hn}, s{sHH}, {hn}", f"s_and_b32 s{sVU+hn}, s{sVU+hn}, 3", f"s_lshl_b32 s{sVU+hn}, s{sVU+hn}, 7"]
        else: P += [f"s_mov_b32 s{sVU+hn}, {hn*128}"]
    for hf2 in range(2):
        P += [f"s_lshr_b32 s{sSO}, s{sW}, 1", f"s_add_u32 s{sSO}, s{sSO}, {2*hf2}"]
        if opt['urot']: P += [f"s_add_u32 s{sSO}, s{sSO}, s{sHH}"]
        P += [f"s_and_b32 s{sSO}, s{sSO}, 3", f"s_lshl_b32 s{sSO}, s{sSO}, 1", f"s_and_b32 s{sSO2}, s{sW}, 1", f"s_add_u32 s{sSO}, s{sSO}, s{sSO2}", f"s_mul_i32 s{sWOR+hf2}, s{sSO}, {32*896}"]
    P += [f"s_mul_i32 s{sWOM}, s{sW}, 7168"]
    P += [f"s_mul_i32 s{sSO}, s{sHH}, 224", f"s_mul_i32 s{sSO2}, s{sHQ}, {1024*896}", f"s_add_u32 s{sSO}, s{sSO}, s{sSO2}", f"s_mov_b32 s{sSO2}, {(1 << 32) // 14 + 1}"]
    for i in range(7):
        P += [f"v_add_u32 v{a}, {64*i}, v1", f"v_mul_hi_u32 v{b}, v{a}, s{sSO2}", f"v_mul_u32_u24 v{c}, 14, v{b}", f"v_sub_u32 v{c}, v{a}, v{c}",
              f"v_and_b32 v{a}, 19, v{b}", f"v_bfe_u32 v{d}, v{b}, 2, 1", f"v_lshl_or_b32 v{a}, v{d}, 3, v{a}", f"v_bfe_u32 v{d}, v{b}, 3, 1", f"v_lshl_or_b32 v{a}, v{d}, 2, v{a}",
              f"v_mul_u32_u24 v{a}, 896, v{a}", f"v_lshl_add_u32 v{a}, v{c}, 4, v{a}", f"v_add_u32 v{vWO+i}, s{sSO}, v{a}"]
        if i & 3: P += [f"v_subrev_u32 v{vWO+i}, {1024*(i & 3)}, v{vWO+i}"]
    P += [f"s_add_u32 s{sTAG}, s{sTAG}, 1", f"s_bitset1_b32 s{sTAG}, 31",
          f"s_or_b32 s{sSO}, s2, s{sW}", f"s_cmp_lg_u32 s{sSO}, 0", "s_cbranch_scc1 Lnotag",
          f"v_mov_b32 v{a}, s{sTAG}", f"v_mov_b32 v{b}, 0", f"s_mov_b32 s{sSO}, {TAG_OFF}", "s_mov_b64 exec, 1",
          XI(f"buffer_store_dword v{a}, v{b}, s[{sWS}:{sWS+3}], s{sSO} offen sc1"), XI(f"buffer_store_dword v{a}, v{b}, s[{sDBG}:{sDBG+3}], 0 offen sc1"),
          "s_mov_b64 exec, -1", "s_nop 1", "Lnotag:"]
    return P

def XI(txt):
    i = I(txt); i.kind = 'xvm'; return i

def setup3(opt):
    a, b, c, d = vFR, vFR + 1, vFR + 2, vFR + 3
    P = [f"v_bfe_u32 v{a}, v1, 2, 3", f"v_lshrrev_b32 v{b}, 5, v1", f"v_lshl_add_u32 v{a}, v{b}, 4, v{a}", f"v_mul_u32_u24 v{a}, 224, v{a}",
         f"v_and_b32 v{b}, 3, v1", f"v_lshl_add_u32 v{vTW}, v{b}, 3, v{a}", f"v_add_u32 v{vTWH}, {2*SUP}, v{vTW}",
         f"s_mul_i32 s{sT0}, s{sHH}, 4608", f"v_subrev_u32 v{vP2A}, s{sT0}, v{vPA}", f"v_subrev_u32 v{vP2B}, s{sT0}, v{vPB}"]
    P += [f"s_lshl_b32 s{sT0}, s{sP}, 9", f"s_lshl_b32 s{sT1}, s{sB}, 4", f"s_add_u32 s{sT0}, s{sT0}, s{sT1}", f"s_lshl_b32 s{sT1}, s{sHQ}, 2", f"s_add_u32 s{sT0}, s{sT0}, s{sT1}",
          f"s_lshl_b32 s{sT0}, s{sT0}, 7", f"s_add_u32 s{sT0}, s{sT0}, {FLAG1_OFF}", f"v_lshlrev_b32 v{b}, 7, v{b}", f"v_add_u32 v{vF1A}, s{sT0}, v{b}"]
    P += [f"s_lshl_b32 s{sT0}, s{sP}, 3", f"s_add_u32 s{sT0}, s{sT0}, s{sBG}", f"s_lshl_b32 s{sT0}, s{sT0}, 2", f"s_add_u32 s{sT0}, s{sT0}, s{sHH}",
          f"s_lshl_b32 s{sT0}, s{sT0}, 2", f"s_add_u32 s{sT0}, s{sT0}, s{sW}",
          f"s_lshl_b32 s{sT1}, s{sT0}, 9", f"s_add_u32 s{sT1}, s{sT1}, {FLAG2_OFF}", f"v_add_u32 v{vF2A}, s{sT1}, v{b}"]
    P += [f"s_mul_i32 s{sT0}, s{sT0}, 49152", f"s_add_u32 s{sT0}, s{sT0}, {PART_OFF}",
          f"s_mul_i32 s{sT1}, s{sHQ}, 3072", f"s_add_u32 s{sT1}, s{sT1}, s{sT0}",
          f"v_lshrrev_b32 v{a}, 4, v1", f"v_cmp_eq_u32 vcc, s{sHQ}, v{a}", f"v_mul_u32_u24 v{d}, 12288, v{a}", f"v_and_b32 v{c}, 15, v1", f"v_lshl_add_u32 v{d}, v{c}, 4, v{d}", f"v_add_u32 v{vST}, s{sT1}, v{d}",
          f"v_mov_b32 v{b}, 0x7ff00000", f"v_cndmask_b32 v{vST}, v{vST}, v{b}, vcc",
          f"s_mul_i32 s{sT1}, s{sHQ}, 12288", f"s_add_u32 s{sT1}, s{sT1}, s{sT0}", f"v_lshlrev_b32 v{d}, 4, v1", f"v_add_u32 v{vLD}, s{sT1}, v{d}",
          f"v_add_u32 v{vLW}, s{sSTG}, v{d}",
          f"s_lshl_b32 s{sT1}, s{sHQ}, 8", f"s_add_u32 s{sT1}, s{sT1}, s{sSTG}", f"v_lshlrev_b32 v{d}, 10, v{a}", f"v_lshl_add_u32 v{d}, v{c}, 4, v{d}", f"v_add_u32 v{vLR}, s{sT1}, v{d}"]
    P += [f"s_mul_i32 s{sT0}, s{sB}, {48*1792}", f"s_mul_i32 s{sT1}, s{sP}, 896", f"s_add_u32 s{sT0}, s{sT0}, s{sT1}", f"s_mul_i32 s{sT1}, s{sHH}, 224", f"s_add_u32 s{sT0}, s{sT0}, s{sT1}",
          f"s_lshl_b32 s{sT1}, s{sHQ}, 3", f"s_add_u32 s{sT0}, s{sT0}, s{sT1}", f"v_mul_u32_u24 v{c}, 1792, v{c}", f"v_add_u32 v{c}, s{sT0}, v{c}"]
    e_ = vFR + 4
    for i in range(6):
        P += [f"v_lshl_add_u32 v{e_}, v{a}, 1, {8*(i//2) + (i & 1)}", f"v_mul_u32_u24 v{b}, 43, v{e_}", f"v_lshrrev_b32 v{b}, 7, v{b}", f"v_mul_u32_u24 v{d}, 3, v{b}", f"v_sub_u32 v{d}, v{e_}, v{d}",
              f"v_mul_u32_u24 v{d}, {16*1792}, v{d}", f"v_lshl_add_u32 v{d}, v{b}, 5, v{d}", f"v_add_u32 v{vOUT+i}, v{c}, v{d}"]
        if i >= 4: P += [f"v_cmp_lt_u32 vcc, 20, v{e_}", f"v_mov_b32 v{b}, 0x7ff00000", f"v_cndmask_b32 v{vOUT+i}, v{vOUT+i}, v{b}, vcc"]
    return P

class Stager:
    def __init__(self, nsl): self.nsl = nsl; self.n = 0
    def tile(self, vdma, srd_, so_ins, pol, dst0, dst1):
        n = self.n; self.n += 1
        slot = n % self.nsl
        pre = [WaitTag(f"sr{n - self.nsl}")] if n >= self.nsl else []
        iss = [pre + [f"s_add_u32 m0, s{sSTG}, {slot*2048}"] + so_ins + [I(f"buffer_load_dwordx4 v{vdma}, s[{srd_}:{srd_+3}], s{sSO2} offen{pol} lds", tag=f"sd{n}")],
               [I(f"buffer_load_dwordx4 v{vdma+1}, s[{srd_}:{srd_+3}], s{sSO2} offen offset:1024{pol} lds", tag=f"sd{n}")]]
        rd = [WaitTag(f"sd{n}"), I(f"ds_read_b128 {dst0}, v{vSR} offset:{slot*2048}", tag=f"sr{n}"), I(f"ds_read_b128 {dst1}, v{vSR+1} offset:{slot*2048}", tag=f"sr{n}")]
        return iss, rd

def g_w(s, opt):
    slot = (s % RING) * SLAB
    return [([f"s_add_u32 m0, s{sM0B}, {slot}", "s_nop 0"] if i == 0 else []) +
            [I(f"buffer_load_dwordx4 v{vW+i}, s[{sWQ}:{sWQ+3}], s{(sT0, sT1)[s] if s < 2 else sWQO+s} offen offset:{i*1024}{opt['wq_pol']} lds", tag=f"slab{s}")] for i in range(4)]
def g_wo(j, opt):
    hn, half = divmod(j, 2)
    out = []
    for i in range(7):
        pre = []
        if i in (0, 4): pre += [f"s_add_u32 m0, s{sWOM}, {(j % R2) * SUP + i * 1024}"]
        if i == 0: pre += [f"s_mul_i32 s{sWH}, s{sHB+hn}, {256*896}", f"s_add_u32 s{sWH}, s{sWH}, s{sWOR+half}"]
        if i == 4: pre += ["s_nop 0"]
        out.append(pre + [I(f"buffer_load_dwordx4 v{vWO+i}, s[{sWO}:{sWO+3}], s{sWH} offen offset:{(i & 3)*1024}{opt['wo_pol']} lds", tag=f"sup{j}")])
    return out
def g_p(hn, opt):
    out = []
    o = (hn & 1) * 6
    for mt in range(3):
        pre = [f"s_mul_i32 s{sSO}, s{sHB+hn}, 4608"] if mt == 0 else []
        out.append(pre + [f"buffer_load_dwordx4 {A(aP + mt*12 + o, 4)}, v{vP2A}, s[{sWS}:{sWS+3}], s{sSO} offen offset:{mt*1536} sc1"])
        out.append([f"buffer_load_dwordx2 {A(aP + mt*12 + o + 4, 2)}, v{vP2B}, s[{sWS}:{sWS+3}], s{sSO} offen offset:{mt*1536} sc1"])
    return out

def tr_reads(T):
    ks, t = divmod(T, 16)
    sp, tau = divmod(t, 2)
    ap, bp = divmod(sp, 4)
    slot = ks % RING
    base = (vTR if slot < 4 else vTRH) + bp * 2 + tau
    off = (slot % 4) * SLAB + ap * 256
    d = vFR + (T % NS) * 4
    return [f"ds_read_b64_tr_b16 {V(d, 2)}, v{base} offset:{off}", f"ds_read_b64_tr_b16 {V(d+2, 2)}, v{base} offset:{off + 2048}"]
def wo_reads(F):
    sig, nt = divmod(F, 7)
    j, sl = divmod(sig, 4)
    ss = j % R2
    base = vTW if ss < 2 else vTWH
    off = (ss % 2) * SUP + sl * 7168 + nt * 32
    d = vFR + (F % NS) * 4
    return [f"ds_read_b64_tr_b16 {V(d, 2)}, v{base} offset:{off}", f"ds_read_b64_tr_b16 {V(d+2, 2)}, v{base} offset:{off + 1792}"]

def softmax_block(sacc, m, t, pk):
    sv = lambda mt: [sacc(kt, mt) + r for kt in range(3) for r in range(4)]
    Q = []
    for mt in range(3):
        x = sv(mt)
        Q.append(f"v_max3_f32 v{m[mt]}, v{x[0]}, v{x[1]}, v{x[2]}")
    for j in range(4):
        for mt in range(3):
            x = sv(mt); Q.append(f"v_max3_f32 v{m[mt]}, v{m[mt]}, v{x[3+2*j]}, v{x[4+2*j]}")
    for mt in range(3): Q.append(f"v_max_f32 v{m[mt]}, v{m[mt]}, v{sv(mt)[11]}")
    def xred(op):
        o = []
        for pl in ('v_permlane32_swap_b32', 'v_permlane16_swap_b32'):
            o += [f"v_mov_b32 v{t[mt]}, v{m[mt]}" for mt in range(3)]
            o += [f"{pl} v{m[mt]}, v{t[mt]}" for mt in range(3)]
            o += [f"{op} v{m[mt]}, v{m[mt]}, v{t[mt]}" for mt in range(3)]
        return o
    Q += xred('v_max_f32')
    Q += [f"v_mul_f32 v{m[mt]}, s{sSC}, v{m[mt]}" for mt in range(3)]
    for j in range(12):
        Q += [f"v_fma_f32 v{sv(mt)[j]}, v{sv(mt)[j]}, s{sSC}, -v{m[mt]}" for mt in range(3)]
        Q += [f"v_exp_f32 v{sv(mt)[j]}, v{sv(mt)[j]}" for mt in range(3)]
    Q += [f"v_add_f32 v{m[mt]}, v{sv(mt)[0]}, v{sv(mt)[1]}" for mt in range(3)]
    for j in range(2, 12):
        Q += [f"v_add_f32 v{m[mt]}, v{m[mt]}, v{sv(mt)[j]}" for mt in range(3)]
    Q += xred('v_add_f32')
    Q += [f"v_rcp_f32 v{m[mt]}, v{m[mt]}" for mt in range(3)]
    for mt in range(3):
        x = sv(mt)
        for j in range(12): Q.append(f"v_mul_f32 v{x[j]}, v{x[j]}, v{m[mt]}")
        for j in range(6): Q.append(f"v_cvt_pk_bf16_f32 v{pk + mt*6 + j}, v{x[2*j]}, v{x[2*j+1]}")
        Q.append(I(f"buffer_store_dwordx4 {V(pk + mt*6, 4)}, v{vPA}, s[{sWS}:{sWS+3}], 0 offen offset:{mt*1536} sc1", tag="pst"))
        Q.append(I(f"buffer_store_dwordx2 {V(pk + mt*6 + 4, 2)}, v{vPB}, s[{sWS}:{sWS+3}], 0 offen offset:{mt*1536} sc1", tag="pst"))
    return Q

def spin(label, load, cmp_):
    return [f"{label}:", f"s_mov_b32 s{sCNT}, 0x40000", f"{label}_l:", "s_sleep 2", load, "s_waitcnt vmcnt(0)", cmp_, "s_nop 4", "s_cmp_eq_u64 vcc, 0", f"s_cbranch_scc1 {label}_r",
            f"s_sub_u32 s{sCNT}, s{sCNT}, 1", f"s_cmp_lg_u32 s{sCNT}, 0", f"s_cbranch_scc1 {label}_l", f"s_branch {label}_r"]

def build_body(opt):
    st = opt['st']; st.n = 0
    sg = Stager(6)
    P = prologue(opt)
    tl = Timeline()
    LA = 4
    for ks in range(14):
        for t in range(16):
            T = ks * 16 + t
            af = vFR + (T % NS) * 4
            for mt in range(3):
                c = '0' if ks == 0 else V(acc(t, mt), 4)
                idx = tl.add(f"v_mfma_f32_16x16x32_bf16 {V(acc(t, mt), 4)}, {V(af, 4)}, {A(xreg(ks, mt), 4)}, {c}")
                if mt < 2 and T + LA < 224: tl.at(idx, tr_reads(T + LA)[mt])
        pre = ([WaitTag(f"slab{ks+1}")] if ks < 13 else []) + ["s_barrier"]
        if ks == 0: pre += (st() if 0 in opt['stk'] else []) + flat([tr_reads(T) for T in range(LA)])
        tl.at(ks * 48 - 1, *pre)
    b13 = 13 * 48
    cv = []
    for sp in range(8):
        for mt in range(3):
            t0, t1 = acc(2 * sp, mt), acc(2 * sp + 1, mt)
            cv += [f"v_cvt_pk_bf16_f32 v{t0}, v{t0}, v{t0+1}", f"v_cvt_pk_bf16_f32 v{t0+1}, v{t0+2}, v{t0+3}",
                   f"v_cvt_pk_bf16_f32 v{t0+2}, v{t1}, v{t1+1}", f"v_cvt_pk_bf16_f32 v{t0+3}, v{t1+2}, v{t1+3}"]
        sw = [f"s_mov_b64 exec, s[{sODD}:{sODD+1}]"]
        for mt in range(3):
            t0 = acc(2 * sp, mt)
            sw += [f"v_swap_b32 v{t0}, v{t0+2}", f"v_swap_b32 v{t0+1}, v{t0+3}"]
        sw.append("s_mov_b64 exec, -1")
        cv.append(sw)
    pos = b13 + 10; cnt = 0
    for c in cv:
        if isinstance(c, list): tl.at(pos, *c); pos += 3; cnt = 0
        else:
            tl.at(pos, c); cnt += 1
            if cnt == 2: cnt = 0; pos += 1
    sacc = lambda kt, mt: acc(2 * kt + 1, mt)
    for sp in range(8):
        for mt in range(3):
            for kt in range(3):
                c = '0' if sp == 0 else V(sacc(kt, mt), 4)
                tl.add(f"v_mfma_f32_16x16x32_bf16 {V(sacc(kt, mt), 4)}, {A(kreg(sp, kt), 4)}, {V(acc(2*sp, mt), 4)}, {c}")
    if 1 in opt['stk']: tl.at(b13 + 47, *st())
    s3 = setup3(opt)
    p0 = pos + 1
    for q in range(0, len(s3), 3): tl.at(min(p0 + q // 3, 743), *s3[q:q+3])
    tagld = f"buffer_load_dword v{vF}, off, s[{sDBG}:{sDBG+3}], 0 sc1"
    tl.at(640, tagld)
    f0 = acc(7, 0)
    sm = softmax_block(sacc, [f0, f0 + 1, f0 + 2], [f0 + 3, f0 + 4, f0 + 5], 208)
    sm_start = len(tl.main)
    for q in range(0, len(sm), 4):
        idx = tl.add(sm[q]); tl.at(idx, *sm[q+1:q+4])
    sm_end = len(tl.main)
    for _ in range(opt['gap']): tl.add(None)
    s2s = len(tl.main)
    oline = []
    tagchk = [f"v_cmp_eq_u32 vcc, 0, v{vF}", "s_cmp_eq_u64 vcc, 0", "s_cbranch_scc0 Ltag", "Ltag_r:", f"v_readfirstlane_b32 s{sTAG}, v{vF}"]
    oline += spin("Ltag", tagld, f"v_cmp_eq_u32 vcc, 0, v{vF}")
    tl.at(sm_start + 2, *tagchk)
    kstart = {}
    oinit = set()
    def pu(us):
        for nt in range(7):
            for u in us:
                ub = vUB + nt * 12 + u * 4
                for mt in range(3):
                    c = A(oacc(nt, mt), 4) if (nt, mt) in oinit else '0'
                    oinit.add((nt, mt))
                    tl.add(f"v_mfma_f32_16x16x32_bf16 {A(oacc(nt, mt), 4)}, {V(ub, 4)}, {A(aP + mt*12 + u*4, 4)}, {c}")
    pustart = {}
    for hn in range(4):
        for s in range(8):
            sig = hn * 8 + s
            kstart[sig] = len(tl.main)
            for nt in range(7):
                F = sig * 7 + nt
                bf = vFR + (F % NS) * 4
                for kt in range(3):
                    c = '0' if s == 0 else V(uacc(kt, nt), 4)
                    idx = tl.add(f"v_mfma_f32_16x16x32_bf16 {V(uacc(kt, nt), 4)}, {A(vfrag(sig, kt), 4)}, {V(bf, 4)}, {c}")
                    if kt < 2 and F + LA < 224: tl.at(idx, wo_reads(F + LA)[kt])
                if s == 7:
                    ub = vUB + nt * 12 + (hn % 2) * 6
                    for kt in range(3):
                        u = uacc(kt, nt)
                        tl.at(idx + 4 + kt, f"v_cvt_pk_bf16_f32 v{ub+2*kt}, v{u}, v{u+1}", f"v_cvt_pk_bf16_f32 v{ub+2*kt+1}, v{u+2}, v{u+3}")
        pustart[hn] = len(tl.main)
        if hn == 1: pu([0, 1, 2])
        elif hn == 2: pu([0])
        elif hn == 3: pu([1, 2])
    kstart[32] = len(tl.main)
    PK, TMP = 64, 108
    for nt in range(7):
        seq = []
        for mt in range(3):
            tile = nt * 3 + mt
            t4 = TMP + (tile % 6) * 4
            seq += [f"v_accvgpr_read_b32 v{t4+r}, a{oacc(nt, mt)+r}" for r in range(4)]
            seq += [f"v_cvt_pk_bf16_f32 v{PK+2*tile}, v{t4}, v{t4+1}", f"v_cvt_pk_bf16_f32 v{PK+2*tile+1}, v{t4+2}, v{t4+3}"]
            if tile % 2 == 1 or tile == 20:
                pr = tile // 2
                seq += [I(f"buffer_store_dwordx4 {V(PK+4*pr, 4)}, v{vST}, s[{sWS}:{sWS+3}], 0 offen offset:{pr*256} sc1", tag="part"),
                        I(f"ds_write_b128 v{vLW}, {V(PK+4*pr, 4)} offset:{pr*1024}", tag="ownw")]
        p0_ = pustart[3] + nt * 6 + 5 + 3
        for q in range(0, len(seq), 4): tl.at(p0_ + q // 4, *seq[q:q+4])
    for j in range(7):
        base = kstart[4 * j]
        if j == 0: pre = [WaitTag("sup0", "sup1"), "s_barrier"] + (st() if 2 in opt['stk'] else []) + flat([wo_reads(F) for F in range(LA)])
        else: pre = [WaitTag(f"sup{j+1}"), "s_barrier"]
        tl.at(base - 1, *pre)
    tl.at(sm_end + opt['pubd'], WaitTag("pst"), f"v_mov_b32 v{vF}, s{sTAG}", f"s_lshl_b32 s{sT0}, s{sHH}, 7", "s_mov_b64 exec, 1",
          f"buffer_store_dword v{vF}, v{vF1A}, s[{sWS}:{sWS+3}], s{sT0} offen sc1", "s_mov_b64 exec, -1")
    pace = {'m': opt['mp'], 'h': opt['hp']}; lag = {'m': opt['ml'], 'h': opt['hl']}
    cur = opt['start']; rdpos = []; rep = []
    f1ld = f"buffer_load_dword v{vF}, v{vF1A}, s[{sWS}:{sWS+3}], 0 offen sc1"
    f1cmp = f"v_cmp_ne_u32 vcc, s{sTAG}, v{vF}"
    posl = []
    base_pol = {k: opt[k] for k in ('wq_pol', 'x_pol', 'v_pol', 'wo_pol')}
    for n_, (kind, idx, cls) in enumerate(opt['sched']):
        posl.append(f'{kind}{idx}@{cur}')
        for k_ in base_pol: opt[k_] = ' nt' if (cls == 'm' and k_[0] in opt.get('mnt', '') or (k_ == 'wo_pol' and cls == 'm' and 'o' in opt.get('mnt', ''))) and not (k_ == 'wo_pol' and 'o' not in opt.get('mnt', '')) else base_pol[k_]
        if kind == 'W':
            if idx >= RING: cur = max(cur, 48 * (idx - RING + 1))
            for it in g_w(idx, opt): tl.at(cur, *it); cur += pace[cls]
            rep.append(f"W{idx}:{48*max(idx-1,0) - 1 - (cur - pace[cls])}")
            assert 48*max(idx-1,0) - 1 - (cur - pace[cls]) > 0, rep[-1]
        elif kind == 'O':
            e = {0: 48 * 9, 1: 48 * 11, 2: 48 * 13}.get(idx)
            if e is None: e = kstart[4 * (idx - 3)]
            cur = max(cur, e)
            for it in g_wo(idx, opt): tl.at(cur, *it); cur += pace[cls]
            rep.append(f"O{idx}:{kstart[4*max(idx-1,0)] - 1 - (cur - pace[cls])}")
            assert kstart[4*max(idx-1,0)] - 1 - (cur - pace[cls]) > 0, rep[-1]
        elif kind == 'Y':
            pace['m'], pace['h'] = divmod(idx, 10)
        elif kind == 'Z':
            cur = max(cur, s2s + idx - 100)
        elif kind == 'F':
            cur = max(cur, idx + s2s)
            tl.at(cur, f1ld); cur += lag['h']
            tl.at(cur, f1cmp, "s_cmp_eq_u64 vcc, 0", "s_cbranch_scc0 Lf1", "Lf1_r:")
            oline += spin("Lf1", f1ld, f1cmp)
        elif kind == 'P':
            if idx >= 2: cur = max(cur, kstart[16])
            for it in g_p(idx, opt): tl.at(cur, *it); cur += pace[cls]
            rep.append(f"P{idx}:{pustart[max(idx,1)] - cur}")
        else:
            for q in range(3):
                if kind == 'X':
                    iss, rd = sg.tile(vXD, sX, [f"s_add_u32 s{sSO2}, s{sXO+idx}, {q*14336}" if idx else f"s_mov_b32 s{sSO2}, {q*14336}"], opt['x_pol'], A(xreg(2*idx, q), 4), A(xreg(2*idx+1, q), 4))
                    dl = 96 * idx - 6; er = -9999
                elif kind == 'K':
                    iss, rd = sg.tile(vKD, sK, [f"s_mov_b32 s{sSO2}, {q*8192 + idx*128}"], opt['k_pol'], A(kreg(2*idx, q), 4), A(kreg(2*idx+1, q), 4))
                    dl = 672 + 18 * idx - 6; er = 48 if (idx == 3 and q >= 1) else -9999
                else:
                    hn, j = divmod(idx, 4)
                    so = ([f"s_mul_i32 s{sVH}, s{sHB+hn}, 24576", f"s_add_u32 s{sVH}, s{sVH}, s{sVU+j}"] if q == 0 else []) + [f"s_add_u32 s{sSO2}, s{sVH}, {q*8192}"]
                    iss, rd = sg.tile(vVD, sV, so, opt['v_pol'], A(vfrag(2*idx, q), 4), A(vfrag(2*idx+1, q), 4))
                    dl = kstart[2 * idx] - 6
                    er = -9999
                    for e in range(2):
                        f = (2 * idx + e) * 3 + q
                        if f >= NVF:
                            ps, pk_ = divmod(f - NVF, 3); er = max(er, kstart[ps + 1] if (ps + 1) % 8 else pustart[ps // 8])
                        else:
                            r = aV + f * 4; er = max(er, 48 * (r // 12 + 1) if (r % 12) <= 8 else 48 * (r // 12 + 2))
                n = len(rdpos)
                if n >= sg.nsl: cur = max(cur, rdpos[n - sg.nsl] + 4)
                cur = max(cur, er - lag[cls])
                tl.at(cur, *iss[0]); tl.at(cur, *iss[1]); last = cur; cur += 2 * pace[cls]
                rp = max(min(last + pace[cls] + lag[cls], dl), er, last)
                if rdpos: rp = max(rp, rdpos[-1])
                if rp == -1: rp = -2
                if rp > dl and dl >= 0: print("LATE", kind, idx, q, rp, dl)
                assert rp <= dl + 5 or dl < 0, (kind, idx, rp, dl)
                tl.at(rp, *rd); rdpos.append(rp)
                rep.append(f"{kind}{idx}.{q}:{rp - last}")
        if n_ == 2: tl.at(cur - 1, *setup1(opt))
        if n_ == opt['s2at']: assert cur - 1 < -2; tl.at(cur - 1, *setup2(opt))
    for sp_ in opt.get('stp', ()): tl.at(sp_, *st())
    if opt.get('verbose') == 2: print(' '.join(posl))
    if opt.get('verbose') == 1: print(" ".join(rep), "end", cur, "s2s", s2s, "total", len(tl.main))
    body = tl.flat()
    if opt.get('strip') == 1:
        txt = lambda x: x if isinstance(x, str) else getattr(x, 'txt', '')
        body = [x for x in body if not (txt(x).startswith('v_mfma') or txt(x).startswith('ds_read_b64_tr') or txt(x).startswith('v_cvt') or txt(x).startswith('v_exp') or txt(x).startswith('v_swap'))]
    if opt.get('strip') == 2:
        nb = []
        for x in body:
            t = x if isinstance(x, str) else getattr(x, 'txt', '')
            if t.startswith('buffer_load_dwordx4') and ' lds' in t:
                y = I("s_nop 0"); y.tag = x.tag; nb.append(y)
            else: nb.append(x)
        body = nb
    P += body + (st() if 3 in opt['stk'] else [])
    f2ld = f"buffer_load_dword v{vF}, v{vF2A}, s[{sWS}:{sWS+3}], 0 offen sc1"
    P += [f"v_mov_b32 v{vF}, s{sTAG}", f"s_lshl_b32 s{sT0}, s{sHQ}, 7", WaitTag("part"), "s_mov_b64 exec, 1",
          f"buffer_store_dword v{vF}, v{vF2A}, s[{sWS}:{sWS+3}], s{sT0} offen sc1", "s_mov_b64 exec, -1", "s_nop 1", f2ld]
    OWN, ACC, RX = 108, 120, 148
    P += [WaitTag("ownw")] + [f"ds_read_b128 {V(OWN + 4*i, 4)}, v{vLR} offset:{i*4096}" for i in range(3)]
    for k in range(3): P += [f"s_add_u32 s{sHB+k}, s{sHQ}, {k+1}", f"s_and_b32 s{sHB+k}, s{sHB+k}, 3", f"s_mul_i32 s{sHB+k}, s{sHB+k}, 3072"]
    P += [f"s_mov_b32 s{sVU}, 0x3f80", f"s_mov_b32 s{sVU+1}, 0x3f800000"]
    for r in range(12): P += [f"v_lshlrev_b32 v{ACC+2*r}, 16, v{OWN+r}", f"v_and_b32 v{ACC+2*r+1}, 0xffff0000, v{OWN+r}"]
    P += [f1cmp, "s_cmp_eq_u64 vcc, 0", "s_cbranch_scc0 Lf2", "Lf2_r:"]
    oline += spin("Lf2", f2ld, f1cmp)
    P += (st() if 4 in opt['stk'] else [])
    for i in range(3):
        for k in range(3):
            P += [f"buffer_load_dwordx4 {V(RX + (i*3+k)*4, 4)}, v{vLD}, s[{sWS}:{sWS+3}], s{sHB+k} offen offset:{i*1024} sc1"]
    for i in range(3):
        for k in range(3):
            for r in range(4):
                x = RX + (i*3+k)*4 + r
                P += [f"v_dot2c_f32_bf16 v{ACC+8*i+2*r}, s{sVU}, v{x}", f"v_dot2c_f32_bf16 v{ACC+8*i+2*r+1}, s{sVU+1}, v{x}"]
        for r in range(4): P += [f"v_cvt_pk_bf16_f32 v{OWN+4*i+r}, v{ACC+8*i+2*r}, v{ACC+8*i+2*r+1}"]
        for e in range(2): P += [f"buffer_store_dwordx2 {V(OWN+4*i+2*e, 2)}, v{vOUT+2*i+e}, s[{sOUT}:{sOUT+3}], 0 offen"]
    P += (st() if 5 in opt['stk'] else []) + st.dump() + ["Lend:", "s_endpgm"]
    lines, stats = finalize(P, quiet=bool(opt.get('strip')))
    print(stats, len(lines))
    lines += oline + ['Lcodeend:']
    return lines

def build(opt):
    import re as _re
    scheds = opt['sched']
    nvar = len(scheds)
    lines = []
    if nvar > 1:
        sh, w = opt['vsel']
        lines += ["s_cmp_ge_u32 s2, 256", "s_cbranch_scc0 Lgo", "s_endpgm", "Lgo:", f"s_bfe_u32 s3, s2, {hex((w << 16) | sh)}"]
        for v in range(1, nvar):
            lines += [f"s_cmp_eq_u32 s3, {v}", f"s_cbranch_scc0 Lsk{v}", f"s_getpc_b64 s[4:5]", f"Lpc{v}:", f"s_add_u32 s4, s4, Lvar{v}-Lpc{v}", "s_addc_u32 s5, s5, 0", "s_setpc_b64 s[4:5]", f"Lsk{v}:"]
    for v in range(nvar):
        o = dict(opt); o['sched'] = scheds[v]
        body = build_body(o)
        if nvar > 1:
            body = [_re.sub(r'\b(L(?:end|notag|tag|f1|f2|pcf|codeend)(?:_[lr])?)\b', lambda m: m.group(1) + f"_v{v}", l) for l in body]
            lines += [".p2align 6", f"Lvar{v}:"] if v else []
        lines += body
    hdr = open('concat_heads__mha_block_cached__gqa_block_cached__near_ridge.s.ref').read().split('; Override')[0]
    txt = hdr + "; @launch grid=(256,1,1) block=(256,1,1) lds=163840\n" + '.amdgcn_target "amdgcn-amd-amdhsa--gfx950"\n.text\n'
    txt += f".globl {NAME}\n.p2align 8\n.type {NAME},@function\n{NAME}:\n" + "\n".join("  " + l if not l.endswith(':') else l for l in lines) + "\n"
    txt += (f'.section .rodata,"a"\n.p2align 6\n.amdhsa_kernel {NAME}\n  .amdhsa_next_free_vgpr 512\n  .amdhsa_next_free_sgpr 102\n  .amdhsa_accum_offset 256\n'
            "  .amdhsa_group_segment_fixed_size 0\n  .amdhsa_kernarg_size 104\n  .amdhsa_user_sgpr_count 2\n  .amdhsa_user_sgpr_kernarg_segment_ptr 1\n"
            "  .amdhsa_system_sgpr_workgroup_id_x 1\n.end_amdhsa_kernel\n")
    return txt

def parse_sched(s):
    out = []
    for t in s.split():
        k, rest = t[0], t[1:]
        cls = 'h'
        if rest.endswith('m'): cls = 'm'; rest = rest[:-1]
        out.append((k, int(rest), cls))
    return out
SCHED = ("X0m W0m W1m X1m W2m W3m X2m W4m W5m W6 X3 W7 W8 X4 W9 W10 X5 W11 X6 W12 W13 K0m K1m K2m K3m V0m O0m O1m V4m V1 V2 V3 O2m "
         "O3m V5 V6 F60 V7 P0 P1 V8m O4 V9 O5 V10 V11 V12m O6 P2 P3 V13 O7 V14 V15")

if __name__ == "__main__":
    opt = dict(wq_pol='', x_pol='', k_pol=' nt', v_pol='', wo_pol='', rot=1, nlock=2, hrot=1, urot=1, st=Stamps(False), stk=(0, 1, 2, 4, 5), mp=7, hp=3, ml=80, hl=36, gap=80,
               start=-160, verbose=1, s2at=3, pubd=30, sched=SCHED)
    for kv in sys.argv[2:]:
        k, v = kv.split('=')
        if k == 'st': opt['st'] = Stamps(True); opt['stk'] = tuple(int(x) for x in v.split(','))
        elif k == 'stp': opt['st'] = Stamps(True); opt['stk'] = (); opt['stp'] = tuple(int(x) for x in v.split(','))
        elif k in ('sched', 'mnt'): opt[k] = v
        else: opt[k] = ((' ' + v) if v else '') if k.endswith('pol') else int(v)
    if opt.get('rt'): opt['st'].rt = opt['rt']
    opt['st'].dbg = opt.get('dbg', 0)
    opt['sched'] = [parse_sched(x) for x in opt['sched'].split('|')]
    opt['vsel'] = (opt.get('vsh', 3), 1 if len(opt['sched']) == 2 else 2)
    open(sys.argv[1], "w").write(build(opt))
```

```python
import struct, sys
from fw import *

def fbits(x): return struct.unpack('<I', struct.pack('<f', x))[0]
SZ_X, SZ_KV, SZ_W, SZ_OUT, SZ_WS = 1376256, 12582912, 3670016, 2752512, 268435456
SCALE = 1.4426950408889634 / 16.0
PART_OFF = 8 << 20
FLAG1_OFF = 40 << 20
FLAG2_OFF = 41 << 20
TAG_OFF = 42 << 20
NAME = "concat_heads__mha_block_cached__gqa_block_cached__near_ridge_kernel"

sX, sWQ, sK, sWS, sV, sWO, sOUT = 4, 8, 12, 16, 64, 68, 72
sHQ, sP, sHH, sBG, sH, sW, sB = 20, 21, 22, 23, 24, 25, 26
sM0B, sODD, sSC, sT0, sT1 = 27, 28, 30, 31, 32
sSTG, sWOM, sSO2 = 33, 34, 35
sWQO = 36
sXO = 50
sTAG, sCNT, sSO = 57, 62, 63
sDBG = 76
sHB = 80
sVU = 84
sWOR = 88
sVH, sWH = 90, 91
STAMP_REGS = [92, 94, 96, 98, 100]

vTR, vTRH, vW, vXD, vKD, vSR, vVD, vWO, vPA, vPB, vF = 2, 10, 18, 22, 24, 26, 28, 30, 37, 38, 39
vFR, NS = 40, 6
vACC = 64
vT = 64
def acc(t, mt): return vACC + (t * 3 + mt) * 4
def xreg(j, mt): return (j * 3 + mt) * 4
def kreg(s, kt):
    f = s * 3 + kt
    return 168 + 4 * f if f < 22 else 4 * (f - 22)
vTW, vTWH, vP2A, vP2B, vST, vF1A, vF2A, vLD, vOUT, vLW, vLR = 2, 3, 4, 5, 6, 7, 8, 9, 10, 16, 17
vU = 172
vUB = 64
def uacc(kt, nt): return vU + (nt * 3 + kt) * 4
def oacc(nt, mt): return 168 + (nt * 3 + mt) * 4
aV, NVF = 8, 31
aP = 132
def vfrag(sig, kt): return aV + ((sig * 3 + kt) % NVF) * 4
RING, SLAB = 7, 16384
SUP, R2 = 28672, 4
STG = 114688

flat = lambda gs: [x for g in gs for x in g]
def srd(d, lo, size):
    return [f"s_mov_b32 s{d}, s{lo}", f"s_mov_b32 s{d+1}, s{lo+1}", f"s_mov_b32 s{d+2}, {size}", f"s_mov_b32 s{d+3}, 0x20000"]

class Stamps:
    def __init__(self, on): self.on = on; self.n = 0; self.pend = []
    def __call__(self):
        if not self.on: return []
        r = STAMP_REGS[self.n % len(STAMP_REGS)]
        out = []
        if self.n >= len(STAMP_REGS): raise RuntimeError("too many stamps")
        self.n += 1
        if getattr(self, 'rt', 0) == 2 or (getattr(self, 'rt', 0) == 1 and self.n in (2, 4)): return [f"s_memrealtime s[{r}:{r+1}]"]
        return [f"s_memtime s[{r}:{r+1}]"]
    def dump(self):
        if not self.on: return []
        if getattr(self, 'dbg', 0):
            R = STAMP_REGS
            P = [Fence(), "s_mov_b64 exec, 1", "v_mov_b32 v3, 0", f"s_not_b32 s{sT0}, s{R[0]}", f"v_mov_b32 v2, s{sT0}", f"buffer_atomic_umax v2, v3, s[{sDBG}:{sDBG+3}], 0 offen offset:8",
                 f"v_mov_b32 v4, s{R[self.n-1]}", f"buffer_atomic_umax v4, v3, s[{sDBG}:{sDBG+3}], 0 offen offset:12"]
            for i in range(1, self.n):
                P += [f"s_sub_u32 s{sT0}, s{R[i]}, s{R[0]}", f"v_mov_b32 v{4+i}, s{sT0}", f"buffer_atomic_umax v{4+i}, v3, s[{sDBG}:{sDBG+3}], 0 offen offset:{12+4*i}",
                      f"buffer_atomic_add v{4+i}, v3, s[{sDBG}:{sDBG+3}], 0 offen offset:{32+4*i}"]
            return P
        P = [Fence(), f"s_lshl_b32 s{sT0}, s2, 2", f"s_add_u32 s{sT0}, s{sT0}, s{sW}", f"s_lshl_b32 s{sT0}, s{sT0}, 7", f"s_add_u32 s{sT0}, s{sT0}, {64 << 20}", "v_mov_b32 v3, 0"]
        for i in range(self.n):
            P += [f"v_mov_b32 v2, s{STAMP_REGS[i]}", f"buffer_store_dword v2, v3, s[{sWS}:{sWS+3}], s{sT0} offen offset:{4*i}"]
        return P

def prologue(opt):
    P = ["s_cmp_ge_u32 s2, 256", "s_cbranch_scc1 Lend",
         "s_load_dwordx16 s[36:51], s[0:1], 0", "s_load_dwordx8 s[52:59], s[0:1], 64", "s_load_dwordx2 s[60:61], s[0:1], 96"] + opt['st']() + [
         f"s_and_b32 s{sHQ}, s2, 3", f"s_bfe_u32 s{sP}, s2, 0x10002", f"s_bfe_u32 s{sHH}, s2, 0x20003", f"s_lshr_b32 s{sBG}, s2, 5",
         f"s_lshl_b32 s{sH}, s{sHQ}, 2", f"s_add_u32 s{sH}, s{sH}, s{sHH}",
         "v_lshrrev_b32 v1, 6, v0", f"v_readfirstlane_b32 s{sW}, v1", "v_and_b32 v1, 63, v0",
         f"s_lshl_b32 s{sB}, s{sBG}, 2", f"s_add_u32 s{sB}, s{sB}, s{sW}"]
    a, b, c, d = vT, vT + 1, vT + 2, vT + 3
    if opt.get('cpf'):
        P += ["s_getpc_b64 s[88:89]", "Lpcf:", f"s_lshr_b32 s{sT0}, s2, 3", f"s_lshl_b32 s{sT0}, s{sT0}, 2", f"s_add_u32 s{sT0}, s{sT0}, s{sW}", f"s_lshl_b32 s{sT0}, s{sT0}, 9",
              f"v_and_b32 v{a}, 3, v1", f"v_lshlrev_b32 v{a}, 7, v{a}", f"v_add_u32 v{a}, s{sT0}, v{a}", f"v_min_u32 v{a}, Lcodeend-Lpcf-4, v{a}", XI(f"global_load_dword v{vF}, v{a}, s[88:89]")]
    P += [f"s_mul_i32 s{sSTG}, s{sW}, 12288", f"s_add_u32 s{sSTG}, s{sSTG}, {STG}", f"s_mul_i32 s{sT0}, s{sB}, 43008"]
    P += stage_dma_voff(vXD, 896, sT0)
    P += [f"s_lshl_b32 s{sM0B}, s{sW}, 12", f"s_and_b32 s{sT0}, s{sW}, 1", f"s_lshl_b32 s{sT0}, s{sT0}, 3",
          f"s_lshl_b32 s{sT1}, s{sW}, 16", f"s_lshl_b32 s{sSO}, s{sH}, 9", f"s_add_u32 s{sT1}, s{sT1}, s{sSO}",
          f"v_lshrrev_b32 v{a}, 5, v1", f"v_and_b32 v{b}, 31, v1", f"v_or_b32 v{c}, s{sT0}, v{a}", f"v_xor_b32 v{b}, v{b}, v{c}",
          f"v_lshlrev_b32 v{b}, 4, v{b}", f"v_lshl_add_u32 v{b}, v{a}, 13, v{b}", f"v_add_u32 v{vW}, s{sT1}, v{b}",
          f"v_xor_b32 v{c}, 64, v{vW}", f"v_add_u32 v{vW+1}, {16384-1024}, v{c}", f"v_add_u32 v{vW+2}, {2*(16384-1024)}, v{vW}", f"v_add_u32 v{vW+3}, {3*(16384-1024)}, v{c}"]
    P += [f"v_and_b32 v{a}, 15, v1", f"v_lshrrev_b32 v{b}, 4, v1", f"v_lshrrev_b32 v{c}, 1, v{a}", f"v_xor_b32 v{c}, v{c}, v{b}", f"v_lshlrev_b32 v{c}, 4, v{c}",
          f"v_lshl_add_u32 v{c}, v{a}, 7, v{c}", f"v_add_u32 v{vSR}, s{sSTG}, v{c}", f"v_xor_b32 v{c}, 64, v{c}", f"v_add_u32 v{vSR+1}, s{sSTG}, v{c}"]
    P += [f"s_mov_b32 s{sX+2}, {SZ_X}", f"s_mov_b32 s{sX+3}, 0x20000", f"s_mov_b32 s{sWQ+2}, {SZ_W}", f"s_mov_b32 s{sWQ+3}, 0x20000",
          f"s_mov_b32 s{sT0}, 0", f"s_mov_b32 s{sT1}, {1 << 18}", f"s_cmp_eq_u32 s{sP}, 0",
          f"s_cselect_b64 s[{sX}:{sX+1}], s[36:37], s[46:47]", f"s_cselect_b64 s[{sWQ}:{sWQ+1}], s[42:43], s[52:53]"]
    return P

def setup1(opt):
    P = [f"s_cmp_eq_u32 s{sP}, 0"]
    for i, d_ in ((1, sK), (2, sV), (4, sWO)):
        P.append(f"s_cselect_b64 s[{d_}:{d_+1}], s[{36+2*i}:{37+2*i}], s[{46+2*i}:{47+2*i}]")
    for d_, sz in ((sK, SZ_KV), (sV, SZ_KV), (sWO, SZ_W)):
        P += [f"s_mov_b32 s{d_+2}, {sz}", f"s_mov_b32 s{d_+3}, 0x20000"]
    P += srd(sOUT, 56, SZ_OUT) + srd(sWS, 60, SZ_WS) + srd(sDBG, 58, 256)
    P += [f"s_add_u32 s{sVH}, s60, {TAG_OFF}", f"s_addc_u32 s{sWH}, s61, 0", f"s_load_dword s{sTAG}, s[{sVH}:{sWH}], 0"]
    P += [f"s_mov_b32 s{sXO+1}, 128", f"s_mov_b32 s{sWQO+2}, {2 << 18}", f"s_mov_b32 s{sWQO+3}, {3 << 18}"]
    return P

def stage_dma_voff(vd, rowstride, sbase):
    a, b, c = vT, vT + 1, vT + 2
    return [f"v_lshrrev_b32 v{a}, 3, v1", f"v_and_b32 v{b}, 7, v1", f"v_lshrrev_b32 v{c}, 4, v1", f"v_xor_b32 v{b}, v{b}, v{c}", f"v_lshlrev_b32 v{b}, 4, v{b}",
            f"v_mul_u32_u24 v{a}, {rowstride}, v{a}", f"v_add3_u32 v{vd}, v{a}, v{b}, s{sbase}", f"v_xor_b32 v{b}, 64, v{b}", f"v_add3_u32 v{vd+1}, v{a}, v{b}, s{sbase}",
            f"v_add_u32 v{vd+1}, {8*rowstride - 1024}, v{vd+1}"]

def setup2(opt):
    P = []
    a, b, c, d, e = vT, vT + 1, vT + 2, vT + 3, vT + 4
    nl = opt['nlock']; nr = 7 - nl
    if opt['rot']:
        P += [f"s_lshl_b32 s{sCNT}, s{sHH}, 1", f"s_add_u32 s{sCNT}, s{sCNT}, s{sBG}"]
        for _ in range(3): P += [f"s_cmp_ge_u32 s{sCNT}, {nr}", f"s_cselect_b32 s{sSO}, {nr}, 0", f"s_sub_u32 s{sCNT}, s{sCNT}, s{sSO}"]
    else: P += [f"s_mov_b32 s{sCNT}, 0"]
    P += [f"s_add_u32 s{sCNT}, s{sCNT}, {nl}"]
    for j in range(2, nl):
        P += [f"s_mov_b32 s{sXO+j}, {j*128}", f"s_mov_b32 s{sWQO+2*j}, {j << 19}", f"s_mov_b32 s{sWQO+2*j+1}, {(j << 19) + (1 << 18)}"]
    for j in range(nl, 7):
        P += [f"s_lshl_b32 s{sXO+j}, s{sCNT}, 7", f"s_lshl_b32 s{sWQO+2*j}, s{sCNT}, 19", f"s_add_u32 s{sWQO+2*j+1}, s{sWQO+2*j}, {1 << 18}"]
        if j < 6: P += [f"s_add_u32 s{sCNT}, s{sCNT}, 1", f"s_cmp_eq_u32 s{sCNT}, 7", f"s_cselect_b32 s{sCNT}, {nl}, s{sCNT}"]
    P += [f"v_lshrrev_b32 v{a}, 4, v1", f"v_bfe_u32 v{b}, v1, 2, 2", f"v_and_b32 v{c}, 3, v1",
          f"v_lshl_add_u32 v{d}, v{a}, 3, v{b}", f"v_lshlrev_b32 v{d}, 9, v{d}",
          f"v_and_b32 v{a}, 1, v{a}", f"v_lshlrev_b32 v{a}, 3, v{a}",
          f"v_lshrrev_b32 v{e}, 1, v{b}", f"v_lshl_or_b32 v{a}, v{e}, 2, v{a}",
          f"v_and_b32 v{b}, 1, v{b}", f"v_or_b32 v{a}, v{a}, v{b}",
          f"v_xor_b32 v{a}, v{a}, v{c}", f"v_lshl_add_u32 v{d}, v{a}, 4, v{d}",
          f"v_and_b32 v{c}, 1, v{c}", f"v_lshl_add_u32 v{d}, v{c}, 3, v{d}"]
    for bb in range(4):
        for tau in range(2):
            P.append(f"v_xor_b32 v{vTR + bb*2 + tau}, {(bb << 6) | (tau << 3)}, v{d}")
            P.append(f"v_xor_b32 v{vTRH + bb*2 + tau}, {0x10000 | (bb << 6) | (tau << 3)}, v{d}")
    P += [f"s_lshl_b32 s{sSO}, s{sB}, 4", f"s_add_u32 s{sCNT}, s{sSO}, s{sH}", f"s_mul_i32 s{sSO2}, s{sCNT}, 24576"]
    P += stage_dma_voff(vKD, 512, sSO2)
    P += [f"s_mul_i32 s{sSO2}, s{sHH}, 24576", f"v_subrev_u32 v{vVD}, s{sSO2}, v{vKD}", f"v_subrev_u32 v{vVD+1}, s{sSO2}, v{vKD+1}"]
    P += [f"s_lshl_b32 s{sSO}, s{sP}, 9", f"s_add_u32 s{sSO}, s{sSO}, s{sCNT}", f"s_mul_i32 s{sSO}, s{sSO}, 4608",
          f"v_lshlrev_b32 v{a}, 4, v1", f"v_add_u32 v{vPA}, s{sSO}, v{a}", f"v_lshlrev_b32 v{a}, 3, v1", f"s_add_u32 s{sSO}, s{sSO}, 1024", f"v_add_u32 v{vPB}, s{sSO}, v{a}"]
    P += [f"s_mov_b32 s{sODD}, 0xffff0000", f"s_mov_b32 s{sODD+1}, 0xffff0000", f"s_mov_b32 s{sSC}, {fbits(SCALE)}"]
    for hn in range(4):
        src = sBG if opt['hrot'] else None
        if src is not None: P += [f"s_add_u32 s{sHB+hn}, s{src}, {hn}", f"s_and_b32 s{sHB+hn}, s{sHB+hn}, 3"]
        else: P += [f"s_mov_b32 s{sHB+hn}, {hn}"]
        if opt['urot']: P += [f"s_add_u32 s{sVU+hn}, s{sHH}, {hn}", f"s_and_b32 s{sVU+hn}, s{sVU+hn}, 3", f"s_lshl_b32 s{sVU+hn}, s{sVU+hn}, 7"]
        else: P += [f"s_mov_b32 s{sVU+hn}, {hn*128}"]
    for hf2 in range(2):
        P += [f"s_lshr_b32 s{sSO}, s{sW}, 1", f"s_add_u32 s{sSO}, s{sSO}, {2*hf2}"]
        if opt['urot']: P += [f"s_add_u32 s{sSO}, s{sSO}, s{sHH}"]
        P += [f"s_and_b32 s{sSO}, s{sSO}, 3", f"s_lshl_b32 s{sSO}, s{sSO}, 1", f"s_and_b32 s{sSO2}, s{sW}, 1", f"s_add_u32 s{sSO}, s{sSO}, s{sSO2}", f"s_mul_i32 s{sWOR+hf2}, s{sSO}, {32*896}"]
    P += [f"s_mul_i32 s{sWOM}, s{sW}, 7168"]
    P += [f"s_mul_i32 s{sSO}, s{sHH}, 224", f"s_mul_i32 s{sSO2}, s{sHQ}, {1024*896}", f"s_add_u32 s{sSO}, s{sSO}, s{sSO2}", f"s_mov_b32 s{sSO2}, {(1 << 32) // 14 + 1}"]
    for i in range(7):
        P += [f"v_add_u32 v{a}, {64*i}, v1", f"v_mul_hi_u32 v{b}, v{a}, s{sSO2}", f"v_mul_u32_u24 v{c}, 14, v{b}", f"v_sub_u32 v{c}, v{a}, v{c}",
              f"v_and_b32 v{a}, 19, v{b}", f"v_bfe_u32 v{d}, v{b}, 2, 1", f"v_lshl_or_b32 v{a}, v{d}, 3, v{a}", f"v_bfe_u32 v{d}, v{b}, 3, 1", f"v_lshl_or_b32 v{a}, v{d}, 2, v{a}",
              f"v_mul_u32_u24 v{a}, 896, v{a}", f"v_lshl_add_u32 v{a}, v{c}, 4, v{a}", f"v_add_u32 v{vWO+i}, s{sSO}, v{a}"]
        if i & 3: P += [f"v_subrev_u32 v{vWO+i}, {1024*(i & 3)}, v{vWO+i}"]
    P += [f"s_add_u32 s{sTAG}, s{sTAG}, 1", f"s_bitset1_b32 s{sTAG}, 31",
          f"s_or_b32 s{sSO}, s2, s{sW}", f"s_cmp_lg_u32 s{sSO}, 0", "s_cbranch_scc1 Lnotag",
          f"v_mov_b32 v{a}, s{sTAG}", f"v_mov_b32 v{b}, 0", f"s_mov_b32 s{sSO}, {TAG_OFF}", "s_mov_b64 exec, 1",
          XI(f"buffer_store_dword v{a}, v{b}, s[{sWS}:{sWS+3}], s{sSO} offen sc1"), XI(f"buffer_store_dword v{a}, v{b}, s[{sDBG}:{sDBG+3}], 0 offen sc1"),
          "s_mov_b64 exec, -1", "s_nop 1", "Lnotag:"]
    return P

def XI(txt):
    i = I(txt); i.kind = 'xvm'; return i

def setup3(opt):
    a, b, c, d = vFR, vFR + 1, vFR + 2, vFR + 3
    P = [f"v_bfe_u32 v{a}, v1, 2, 3", f"v_lshrrev_b32 v{b}, 5, v1", f"v_lshl_add_u32 v{a}, v{b}, 4, v{a}", f"v_mul_u32_u24 v{a}, 224, v{a}",
         f"v_and_b32 v{b}, 3, v1", f"v_lshl_add_u32 v{vTW}, v{b}, 3, v{a}", f"v_add_u32 v{vTWH}, {2*SUP}, v{vTW}",
         f"s_mul_i32 s{sT0}, s{sHH}, 4608", f"v_subrev_u32 v{vP2A}, s{sT0}, v{vPA}", f"v_subrev_u32 v{vP2B}, s{sT0}, v{vPB}"]
    P += [f"s_lshl_b32 s{sT0}, s{sP}, 9", f"s_lshl_b32 s{sT1}, s{sB}, 4", f"s_add_u32 s{sT0}, s{sT0}, s{sT1}", f"s_lshl_b32 s{sT1}, s{sHQ}, 2", f"s_add_u32 s{sT0}, s{sT0}, s{sT1}",
          f"s_lshl_b32 s{sT0}, s{sT0}, 7", f"s_add_u32 s{sT0}, s{sT0}, {FLAG1_OFF}", f"v_lshlrev_b32 v{b}, 7, v{b}", f"v_add_u32 v{vF1A}, s{sT0}, v{b}"]
    P += [f"s_lshl_b32 s{sT0}, s{sP}, 3", f"s_add_u32 s{sT0}, s{sT0}, s{sBG}", f"s_lshl_b32 s{sT0}, s{sT0}, 2", f"s_add_u32 s{sT0}, s{sT0}, s{sHH}",
          f"s_lshl_b32 s{sT0}, s{sT0}, 2", f"s_add_u32 s{sT0}, s{sT0}, s{sW}",
          f"s_lshl_b32 s{sT1}, s{sT0}, 9", f"s_add_u32 s{sT1}, s{sT1}, {FLAG2_OFF}", f"v_add_u32 v{vF2A}, s{sT1}, v{b}"]
    P += [f"s_mul_i32 s{sT0}, s{sT0}, 49152", f"s_add_u32 s{sT0}, s{sT0}, {PART_OFF}",
          f"s_mul_i32 s{sT1}, s{sHQ}, 3072", f"s_add_u32 s{sT1}, s{sT1}, s{sT0}",
          f"v_lshrrev_b32 v{a}, 4, v1", f"v_cmp_eq_u32 vcc, s{sHQ}, v{a}", f"v_mul_u32_u24 v{d}, 12288, v{a}", f"v_and_b32 v{c}, 15, v1", f"v_lshl_add_u32 v{d}, v{c}, 4, v{d}", f"v_add_u32 v{vST}, s{sT1}, v{d}",
          f"v_mov_b32 v{b}, 0x7ff00000", f"v_cndmask_b32 v{vST}, v{vST}, v{b}, vcc",
          f"s_mul_i32 s{sT1}, s{sHQ}, 12288", f"s_add_u32 s{sT1}, s{sT1}, s{sT0}", f"v_lshlrev_b32 v{d}, 4, v1", f"v_add_u32 v{vLD}, s{sT1}, v{d}",
          f"v_add_u32 v{vLW}, s{sSTG}, v{d}",
          f"s_lshl_b32 s{sT1}, s{sHQ}, 8", f"s_add_u32 s{sT1}, s{sT1}, s{sSTG}", f"v_lshlrev_b32 v{d}, 10, v{a}", f"v_lshl_add_u32 v{d}, v{c}, 4, v{d}", f"v_add_u32 v{vLR}, s{sT1}, v{d}"]
    P += [f"s_mul_i32 s{sT0}, s{sB}, {48*1792}", f"s_mul_i32 s{sT1}, s{sP}, 896", f"s_add_u32 s{sT0}, s{sT0}, s{sT1}", f"s_mul_i32 s{sT1}, s{sHH}, 224", f"s_add_u32 s{sT0}, s{sT0}, s{sT1}",
          f"s_lshl_b32 s{sT1}, s{sHQ}, 3", f"s_add_u32 s{sT0}, s{sT0}, s{sT1}", f"v_mul_u32_u24 v{c}, 1792, v{c}", f"v_add_u32 v{c}, s{sT0}, v{c}"]
    e_ = vFR + 4
    for i in range(6):
        P += [f"v_lshl_add_u32 v{e_}, v{a}, 1, {8*(i//2) + (i & 1)}", f"v_mul_u32_u24 v{b}, 43, v{e_}", f"v_lshrrev_b32 v{b}, 7, v{b}", f"v_mul_u32_u24 v{d}, 3, v{b}", f"v_sub_u32 v{d}, v{e_}, v{d}",
              f"v_mul_u32_u24 v{d}, {16*1792}, v{d}", f"v_lshl_add_u32 v{d}, v{b}, 5, v{d}", f"v_add_u32 v{vOUT+i}, v{c}, v{d}"]
        if i >= 4: P += [f"v_cmp_lt_u32 vcc, 20, v{e_}", f"v_mov_b32 v{b}, 0x7ff00000", f"v_cndmask_b32 v{vOUT+i}, v{vOUT+i}, v{b}, vcc"]
    return P

class Stager:
    def __init__(self, nsl): self.nsl = nsl; self.n = 0
    def tile(self, vdma, srd_, so_ins, pol, dst0, dst1):
        n = self.n; self.n += 1
        slot = n % self.nsl
        pre = [WaitTag(f"sr{n - self.nsl}")] if n >= self.nsl else []
        iss = [pre + [f"s_add_u32 m0, s{sSTG}, {slot*2048}"] + so_ins + [I(f"buffer_load_dwordx4 v{vdma}, s[{srd_}:{srd_+3}], s{sSO2} offen{pol} lds", tag=f"sd{n}")],
               [I(f"buffer_load_dwordx4 v{vdma+1}, s[{srd_}:{srd_+3}], s{sSO2} offen offset:1024{pol} lds", tag=f"sd{n}")]]
        rd = [WaitTag(f"sd{n}"), I(f"ds_read_b128 {dst0}, v{vSR} offset:{slot*2048}", tag=f"sr{n}"), I(f"ds_read_b128 {dst1}, v{vSR+1} offset:{slot*2048}", tag=f"sr{n}")]
        return iss, rd

def g_w(s, opt):
    slot = (s % RING) * SLAB
    return [([f"s_add_u32 m0, s{sM0B}, {slot}", "s_nop 0"] if i == 0 else []) +
            [I(f"buffer_load_dwordx4 v{vW+i}, s[{sWQ}:{sWQ+3}], s{(sT0, sT1)[s] if s < 2 else sWQO+s} offen offset:{i*1024}{opt['wq_pol']} lds", tag=f"slab{s}")] for i in range(4)]
def g_wo(j, opt):
    hn, half = divmod(j, 2)
    out = []
    for i in range(7):
        pre = []
        if i in (0, 4): pre += [f"s_add_u32 m0, s{sWOM}, {(j % R2) * SUP + i * 1024}"]
        if i == 0: pre += [f"s_mul_i32 s{sWH}, s{sHB+hn}, {256*896}", f"s_add_u32 s{sWH}, s{sWH}, s{sWOR+half}"]
        if i == 4: pre += ["s_nop 0"]
        out.append(pre + [I(f"buffer_load_dwordx4 v{vWO+i}, s[{sWO}:{sWO+3}], s{sWH} offen offset:{(i & 3)*1024}{opt['wo_pol']} lds", tag=f"sup{j}")])
    return out
def g_p(hn, opt):
    out = []
    o = (hn & 1) * 6
    for mt in range(3):
        pre = [f"s_mul_i32 s{sSO}, s{sHB+hn}, 4608"] if mt == 0 else []
        out.append(pre + [f"buffer_load_dwordx4 {A(aP + mt*12 + o, 4)}, v{vP2A}, s[{sWS}:{sWS+3}], s{sSO} offen offset:{mt*1536} sc1"])
        out.append([f"buffer_load_dwordx2 {A(aP + mt*12 + o + 4, 2)}, v{vP2B}, s[{sWS}:{sWS+3}], s{sSO} offen offset:{mt*1536} sc1"])
    return out

def tr_reads(T):
    ks, t = divmod(T, 16)
    sp, tau = divmod(t, 2)
    ap, bp = divmod(sp, 4)
    slot = ks % RING
    base = (vTR if slot < 4 else vTRH) + bp * 2 + tau
    off = (slot % 4) * SLAB + ap * 256
    d = vFR + (T % NS) * 4
    return [f"ds_read_b64_tr_b16 {V(d, 2)}, v{base} offset:{off}", f"ds_read_b64_tr_b16 {V(d+2, 2)}, v{base} offset:{off + 2048}"]
def wo_reads(F):
    sig, nt = divmod(F, 7)
    j, sl = divmod(sig, 4)
    ss = j % R2
    base = vTW if ss < 2 else vTWH
    off = (ss % 2) * SUP + sl * 7168 + nt * 32
    d = vFR + (F % NS) * 4
    return [f"ds_read_b64_tr_b16 {V(d, 2)}, v{base} offset:{off}", f"ds_read_b64_tr_b16 {V(d+2, 2)}, v{base} offset:{off + 1792}"]

def softmax_block(sacc, m, t, pk):
    sv = lambda mt: [sacc(kt, mt) + r for kt in range(3) for r in range(4)]
    Q = []
    for mt in range(3):
        x = sv(mt)
        Q.append(f"v_max3_f32 v{m[mt]}, v{x[0]}, v{x[1]}, v{x[2]}")
    for j in range(4):
        for mt in range(3):
            x = sv(mt); Q.append(f"v_max3_f32 v{m[mt]}, v{m[mt]}, v{x[3+2*j]}, v{x[4+2*j]}")
    for mt in range(3): Q.append(f"v_max_f32 v{m[mt]}, v{m[mt]}, v{sv(mt)[11]}")
    def xred(op):
        o = []
        for pl in ('v_permlane32_swap_b32', 'v_permlane16_swap_b32'):
            o += [f"v_mov_b32 v{t[mt]}, v{m[mt]}" for mt in range(3)]
            o += [f"{pl} v{m[mt]}, v{t[mt]}" for mt in range(3)]
            o += [f"{op} v{m[mt]}, v{m[mt]}, v{t[mt]}" for mt in range(3)]
        return o
    Q += xred('v_max_f32')
    Q += [f"v_mul_f32 v{m[mt]}, s{sSC}, v{m[mt]}" for mt in range(3)]
    for j in range(12):
        Q += [f"v_fma_f32 v{sv(mt)[j]}, v{sv(mt)[j]}, s{sSC}, -v{m[mt]}" for mt in range(3)]
        Q += [f"v_exp_f32 v{sv(mt)[j]}, v{sv(mt)[j]}" for mt in range(3)]
    Q += [f"v_add_f32 v{m[mt]}, v{sv(mt)[0]}, v{sv(mt)[1]}" for mt in range(3)]
    for j in range(2, 12):
        Q += [f"v_add_f32 v{m[mt]}, v{m[mt]}, v{sv(mt)[j]}" for mt in range(3)]
    Q += xred('v_add_f32')
    Q += [f"v_rcp_f32 v{m[mt]}, v{m[mt]}" for mt in range(3)]
    for mt in range(3):
        x = sv(mt)
        for j in range(12): Q.append(f"v_mul_f32 v{x[j]}, v{x[j]}, v{m[mt]}")
        for j in range(6): Q.append(f"v_cvt_pk_bf16_f32 v{pk + mt*6 + j}, v{x[2*j]}, v{x[2*j+1]}")
        Q.append(I(f"buffer_store_dwordx4 {V(pk + mt*6, 4)}, v{vPA}, s[{sWS}:{sWS+3}], 0 offen offset:{mt*1536} sc1", tag="pst"))
        Q.append(I(f"buffer_store_dwordx2 {V(pk + mt*6 + 4, 2)}, v{vPB}, s[{sWS}:{sWS+3}], 0 offen offset:{mt*1536} sc1", tag="pst"))
    return Q

def spin(label, load, cmp_, load2=None, cmp2=None):
    if load2 is not None:
        chk = lambda c: [c, "s_nop 4", "s_cmp_eq_u64 vcc, 0", f"s_cbranch_scc1 {label}_r"]
        return [f"{label}:", f"s_mov_b32 s{sCNT}, 0x40000", "s_waitcnt vmcnt(0)", load, "s_sleep 4", f"{label}_l:", load2, "s_waitcnt vmcnt(1)"] + chk(cmp_) + [load, "s_waitcnt vmcnt(1)"] + chk(cmp2) + [
                f"s_sub_u32 s{sCNT}, s{sCNT}, 1", f"s_cmp_lg_u32 s{sCNT}, 0", f"s_cbranch_scc1 {label}_l", f"s_branch {label}_r"]
    return [f"{label}:", f"s_mov_b32 s{sCNT}, 0x40000", f"{label}_l:", "s_sleep 2", load, "s_waitcnt vmcnt(0)", cmp_, "s_nop 4", "s_cmp_eq_u64 vcc, 0", f"s_cbranch_scc1 {label}_r",
            f"s_sub_u32 s{sCNT}, s{sCNT}, 1", f"s_cmp_lg_u32 s{sCNT}, 0", f"s_cbranch_scc1 {label}_l", f"s_branch {label}_r"]

def build_body(opt):
    st = opt['st']; st.n = 0
    sg = Stager(6)
    P = prologue(opt)
    tl = Timeline()
    LA = 4
    for ks in range(14):
        for t in range(16):
            T = ks * 16 + t
            af = vFR + (T % NS) * 4
            for mt in range(3):
                c = '0' if ks == 0 else V(acc(t, mt), 4)
                idx = tl.add(f"v_mfma_f32_16x16x32_bf16 {V(acc(t, mt), 4)}, {V(af, 4)}, {A(xreg(ks, mt), 4)}, {c}")
                if mt < 2 and T + LA < 224: tl.at(idx, tr_reads(T + LA)[mt])
        pre = ([WaitTag(f"slab{ks+1}")] if ks < 13 else []) + ["s_barrier"]
        if ks == 0: pre += (st() if 0 in opt['stk'] else []) + flat([tr_reads(T) for T in range(LA)])
        tl.at(ks * 48 - 1, *pre)
    b13 = 13 * 48
    cv = []
    for sp in range(8):
        for mt in range(3):
            t0, t1 = acc(2 * sp, mt), acc(2 * sp + 1, mt)
            cv += [f"v_cvt_pk_bf16_f32 v{t0}, v{t0}, v{t0+1}", f"v_cvt_pk_bf16_f32 v{t0+1}, v{t0+2}, v{t0+3}",
                   f"v_cvt_pk_bf16_f32 v{t0+2}, v{t1}, v{t1+1}", f"v_cvt_pk_bf16_f32 v{t0+3}, v{t1+2}, v{t1+3}"]
        sw = [f"s_mov_b64 exec, s[{sODD}:{sODD+1}]"]
        for mt in range(3):
            t0 = acc(2 * sp, mt)
            sw += [f"v_swap_b32 v{t0}, v{t0+2}", f"v_swap_b32 v{t0+1}, v{t0+3}"]
        sw.append("s_mov_b64 exec, -1")
        cv.append(sw)
    pos = b13 + 10; cnt = 0
    for c in cv:
        if isinstance(c, list): tl.at(pos, *c); pos += 3; cnt = 0
        else:
            tl.at(pos, c); cnt += 1
            if cnt == 2: cnt = 0; pos += 1
    sacc = lambda kt, mt: acc(2 * kt + 1, mt)
    for sp in range(8):
        for mt in range(3):
            for kt in range(3):
                c = '0' if sp == 0 else V(sacc(kt, mt), 4)
                tl.add(f"v_mfma_f32_16x16x32_bf16 {V(sacc(kt, mt), 4)}, {A(kreg(sp, kt), 4)}, {V(acc(2*sp, mt), 4)}, {c}")
    if 1 in opt['stk']: tl.at(b13 + 47, *st())
    s3 = setup3(opt)
    p0 = pos + 1
    for q in range(0, len(s3), 3): tl.at(min(p0 + q // 3, 743), *s3[q:q+3])
    tagld = f"buffer_load_dword v{vF}, off, s[{sDBG}:{sDBG+3}], 0 sc1"
    tl.at(640, tagld)
    f0 = acc(7, 0)
    sm = softmax_block(sacc, [f0, f0 + 1, f0 + 2], [f0 + 3, f0 + 4, f0 + 5], 154)
    sm_start = len(tl.main)
    nex = opt['smx']
    for q in range(0, nex, 4):
        idx = tl.add(sm[q]); tl.at(idx, *sm[q+1:min(q+4, nex)])
    for _ in range(opt['gap']): tl.add(None)
    s2s = len(tl.main)
    sm_end = s2s
    for q in range(nex, len(sm), opt['smw']):
        tl.at(sm_end, *sm[q:q+opt['smw']]); sm_end += 1
    sm_end = max(sm_end, s2s - opt['gap'])
    oline = []
    tagchk = [f"v_cmp_eq_u32 vcc, 0, v{vF}", "s_cmp_eq_u64 vcc, 0", "s_cbranch_scc0 Ltag", "Ltag_r:", f"v_readfirstlane_b32 s{sTAG}, v{vF}"]
    oline += spin("Ltag", tagld, f"v_cmp_eq_u32 vcc, 0, v{vF}")
    tl.at(sm_start - 1, *tagchk)
    kstart = {}
    oinit = set()
    def pu(us):
        for nt in range(7):
            for u in us:
                ub = vUB + nt * 12 + u * 4
                for mt in range(3):
                    c = A(oacc(nt, mt), 4) if (nt, mt) in oinit else '0'
                    oinit.add((nt, mt))
                    tl.add(f"v_mfma_f32_16x16x32_bf16 {A(oacc(nt, mt), 4)}, {V(ub, 4)}, {A(aP + mt*12 + u*4, 4)}, {c}")
    pustart = {}; kend = {}; vuse = {}
    for hn in range(4):
        for s in range(8):
            sig = hn * 8 + s
            if sig == opt['pu0']:
                pustart[1] = len(tl.main); pu([0, 1, 2]); puend0 = len(tl.main)
            kstart[sig] = len(tl.main)
            for nt in range(7):
                F = sig * 7 + nt
                bf = vFR + (F % NS) * 4
                for kt in range(3):
                    c = '0' if s == 0 else V(uacc(kt, nt), 4)
                    idx = tl.add(f"v_mfma_f32_16x16x32_bf16 {V(uacc(kt, nt), 4)}, @V@, {V(bf, 4)}, {c}"); vuse.setdefault((sig, kt), []).append(idx)
                    if kt < 2 and F + LA < 224: tl.at(idx, wo_reads(F + LA)[kt])
                if s == 7:
                    ub = vUB + nt * 12 + (hn % 2) * 6
                    for kt in range(3):
                        u = uacc(kt, nt)
                        tl.at(idx + 4 + kt, f"v_cvt_pk_bf16_f32 v{ub+2*kt}, v{u}, v{u+1}", f"v_cvt_pk_bf16_f32 v{ub+2*kt+1}, v{u+2}, v{u+3}")
        kend[hn * 8 + 7] = len(tl.main)
        if hn != 1: pustart[hn] = len(tl.main)
        if hn == 3: pu([0, 1, 2])
    kstart[32] = len(tl.main)
    PK, TMP = 172, 216
    for nt in range(7):
        seq = []
        for mt in range(3):
            tile = nt * 3 + mt
            t4 = TMP + (tile % 6) * 4
            seq += [f"v_accvgpr_read_b32 v{t4+r}, a{oacc(nt, mt)+r}" for r in range(4)]
            seq += [f"v_cvt_pk_bf16_f32 v{PK+2*tile}, v{t4}, v{t4+1}", f"v_cvt_pk_bf16_f32 v{PK+2*tile+1}, v{t4+2}, v{t4+3}"]
            if tile % 2 == 1 or tile == 20:
                pr = tile // 2
                seq += [I(f"buffer_store_dwordx4 {V(PK+4*pr, 4)}, v{vST}, s[{sWS}:{sWS+3}], 0 offen offset:{pr*256} sc1", tag="part"),
                        I(f"ds_write_b128 v{vLW}, {V(PK+4*pr, 4)} offset:{pr*1024}", tag="ownw")]
        p0_ = pustart[3] + nt * 9 + 8 + 3
        for q in range(0, len(seq), 3): tl.at(p0_ + q // 3, *seq[q:q+3])
    for j in range(7):
        base = kstart[4 * j]
        if j == 0: pre = [WaitTag("sup0", "sup1"), "s_barrier"] + (st() if 2 in opt['stk'] else []) + flat([wo_reads(F) for F in range(LA)])
        else: pre = [WaitTag(f"sup{j+1}"), "s_barrier"]
        tl.at(base - 1, *pre)
    tl.at(sm_end + opt['pubd'], WaitTag("pst"), f"v_mov_b32 v{vF}, s{sTAG}", f"s_lshl_b32 s{sT0}, s{sHH}, 7", "s_mov_b64 exec, 1",
          f"buffer_store_dword v{vF}, v{vF1A}, s[{sWS}:{sWS+3}], s{sT0} offen sc1", "s_mov_b64 exec, -1")
    pace = {'m': opt['mp'], 'h': opt['hp']}; lag = {'m': opt['ml'], 'h': opt['hl']}
    cur = opt['start']; rdpos = []; rep = []
    f1ld = f"buffer_load_dword v{vF}, v{vF1A}, s[{sWS}:{sWS+3}], 0 offen sc1"
    f1cmp = f"v_cmp_ne_u32 vcc, s{sTAG}, v{vF}"
    posl = []
    INF = 10**9
    p0min = s2s + opt['p0at']
    pool = {}
    for r in range(8, 132, 4): pool[r] = (48 * (r // 12 + 1), INF)
    if opt['pools']:
        for r in range(132, 168, 4): pool[r] = (48 * (r // 12 + 1), p0min)
        for r in range(168, 252, 4): pool[r] = (672 + 9 * (((r - 168) // 4) // 3 + 1), pustart[1])
        for r in (0, 4): pool[r] = (744, INF)
        pool[252] = (744, INF)
    base_pol = {k: opt[k] for k in ('wq_pol', 'x_pol', 'v_pol', 'wo_pol')}
    for n_, (kind, idx, cls) in enumerate(opt['sched']):
        posl.append(f'{kind}{idx}@{cur}')
        for k_ in base_pol: opt[k_] = ' nt' if (cls == 'm' and k_[0] in opt.get('mnt', '') or (k_ == 'wo_pol' and cls == 'm' and 'o' in opt.get('mnt', ''))) and not (k_ == 'wo_pol' and 'o' not in opt.get('mnt', '')) else base_pol[k_]
        if kind == 'W':
            if idx >= RING: cur = max(cur, 48 * (idx - RING + 1))
            for it in g_w(idx, opt): tl.at(cur, *it); cur += pace[cls]
            rep.append(f"W{idx}:{48*max(idx-1,0) - 1 - (cur - pace[cls])}")
            assert 48*max(idx-1,0) - 1 - (cur - pace[cls]) > 0, rep[-1]
        elif kind == 'O':
            e = {0: 48 * 9, 1: 48 * 11, 2: 48 * 13}.get(idx)
            if e is None: e = kstart[4 * (idx - 3)]
            cur = max(cur, e)
            for it in g_wo(idx, opt): tl.at(cur, *it); cur += pace[cls]
            rep.append(f"O{idx}:{kstart[4*max(idx-1,0)] - 1 - (cur - pace[cls])}")
            assert kstart[4*max(idx-1,0)] - 1 - (cur - pace[cls]) > 0, rep[-1]
        elif kind == 'Y':
            pace['m'], pace['h'] = divmod(idx, 10)
        elif kind == 'Z':
            cur = max(cur, s2s + idx - 100)
        elif kind == 'F':
            cur = max(cur, idx + s2s)
            tl.at(cur, f1ld); cur += lag['h']
            tl.at(cur, f1cmp, "s_cmp_eq_u64 vcc, 0", "s_cbranch_scc0 Lf1", "Lf1_r:")
            oline += spin("Lf1", f1ld, f1cmp)
        elif kind == 'P':
            if idx >= 2: cur = max(cur, puend0)
            if idx == 0: assert cur >= p0min, (cur, p0min)
            for it in g_p(idx, opt): tl.at(cur, *it); cur += pace[cls]
            rep.append(f"P{idx}:{pustart[1 if idx < 2 else 3] - cur}")
        else:
            kind0, idx0 = kind, idx
            for q in range(4 if kind0 in 'LU' else 3):
                if kind0 == 'L': kind, idx, q = 'K', q, idx0
                if kind0 == 'U': kind, idx, q = 'V', (idx0 // 3) * 4 + q, idx0 % 3
                if kind == 'X':
                    iss, rd = sg.tile(vXD, sX, [f"s_add_u32 s{sSO2}, s{sXO+idx}, {q*14336}" if idx else f"s_mov_b32 s{sSO2}, {q*14336}"], opt['x_pol'], A(xreg(2*idx, q), 4), A(xreg(2*idx+1, q), 4))
                    dl = 96 * idx - 6; er = -9999
                elif kind == 'K':
                    iss, rd = sg.tile(vKD, sK, [f"s_mov_b32 s{sSO2}, {q*8192 + idx*128}"], opt['k_pol'], A(kreg(2*idx, q), 4), A(kreg(2*idx+1, q), 4))
                    dl = 672 + 18 * idx - 6; er = 48 if (idx == 3 and q >= 1) else -9999
                else:
                    hn, j = divmod(idx, 4)
                    so = ([f"s_mul_i32 s{sVH}, s{sHB+hn}, 24576", f"s_add_u32 s{sVH}, s{sVH}, s{sVU+j}"] if (q == 0 or kind0 == 'U') else []) + [f"s_add_u32 s{sSO2}, s{sVH}, {q*8192}"]
                    dl = kstart[2 * idx] - 6
                    er = -9999; dst = []
                    for e in range(2):
                        last_use = vuse[(2 * idx + e, q)][-1] + 1
                        cand = [r for r in pool if pool[r][1] >= last_use]
                        want = cur + lag[cls]
                        rdy = [r for r in cand if pool[r][0] <= want]
                        r = min(rdy, key=lambda r: (pool[r][1], pool[r][0])) if rdy else min(cand, key=lambda r: pool[r][0])
                        er = max(er, pool[r][0]); pool[r] = (last_use, pool[r][1]); dst.append(r)
                        for i_ in vuse[(2 * idx + e, q)]: tl.main[i_] = tl.main[i_].replace('@V@', A(r, 4))
                    iss, rd = sg.tile(vVD, sV, so, opt['v_pol'], A(dst[0], 4), A(dst[1], 4))
                n = len(rdpos)
                if n >= sg.nsl: cur = max(cur, rdpos[n - sg.nsl] + 4)
                cur = max(cur, er - lag[cls])
                tl.at(cur, *iss[0]); tl.at(cur, *iss[1]); last = cur; cur += 2 * pace[cls]
                rp = max(min(last + pace[cls] + lag[cls], dl), er, last)
                if rdpos: rp = max(rp, rdpos[-1])
                if rp == -1: rp = -2
                if rp > dl and dl >= 0: print("LATE", kind, idx, q, rp, dl)
                assert rp <= dl + 5 or dl < 0, (kind, idx, rp, dl)
                tl.at(rp, *rd); rdpos.append(rp)
                rep.append(f"{kind}{idx}.{q}:{rp - last}")
        if n_ == 2: tl.at(cur - 1, *setup1(opt))
        if n_ == opt['s2at']: assert cur - 1 < -2; tl.at(cur - 1, *setup2(opt))
    for sp_ in opt.get('stp', ()): tl.at(sp_, *st())
    if opt.get('verbose') == 2: print(' '.join(posl))
    if opt.get('verbose') == 1: print(" ".join(rep), "end", cur, "s2s", s2s, "total", len(tl.main))
    body = tl.flat()
    if opt.get('strip') == 1:
        txt = lambda x: x if isinstance(x, str) else getattr(x, 'txt', '')
        body = [x for x in body if not (txt(x).startswith('v_mfma') or txt(x).startswith('ds_read_b64_tr') or txt(x).startswith('v_cvt') or txt(x).startswith('v_exp') or txt(x).startswith('v_swap'))]
    if opt.get('strip') == 2:
        nb = []
        for x in body:
            t = x if isinstance(x, str) else getattr(x, 'txt', '')
            if t.startswith('buffer_load_dwordx4') and ' lds' in t:
                y = I("s_nop 0"); y.tag = x.tag; nb.append(y)
            else: nb.append(x)
        body = nb
    P += body + (st() if 3 in opt['stk'] else [])
    f2ld = f"buffer_load_dword v{vF}, v{vF2A}, s[{sWS}:{sWS+3}], 0 offen sc1"
    P += [f"v_mov_b32 v{vF}, s{sTAG}", f"s_lshl_b32 s{sT0}, s{sHQ}, 7", WaitTag("part"), "s_mov_b64 exec, 1",
          f"buffer_store_dword v{vF}, v{vF2A}, s[{sWS}:{sWS+3}], s{sT0} offen sc1", "s_mov_b64 exec, -1", "s_nop 1", f2ld]
    OWN, ACC, RX = 216, 228, 64
    P += [WaitTag("ownw")] + [f"ds_read_b128 {V(OWN + 4*i, 4)}, v{vLR} offset:{i*4096}" for i in range(3)]
    for k in range(3): P += [f"s_add_u32 s{sHB+k}, s{sHQ}, {k+1}", f"s_and_b32 s{sHB+k}, s{sHB+k}, 3", f"s_mul_i32 s{sHB+k}, s{sHB+k}, 3072"]
    P += [f"s_mov_b32 s{sVU}, 0x3f80", f"s_mov_b32 s{sVU+1}, 0x3f800000"]
    for r in range(12): P += [f"v_lshlrev_b32 v{ACC+2*r}, 16, v{OWN+r}", f"v_and_b32 v{ACC+2*r+1}, 0xffff0000, v{OWN+r}"]
    P += [f1cmp, "s_cmp_eq_u64 vcc, 0", "s_cbranch_scc0 Lf2", "Lf2_r:"]
    oline += spin("Lf2", f2ld, f1cmp, f2ld.replace(f"v{vF},", f"v{vF1A},"), f1cmp.replace(f"v{vF}", f"v{vF1A}")) if opt.get('pp', 1) else spin("Lf2", f2ld, f1cmp)
    P += (st() if 4 in opt['stk'] else [])
    for i in range(3):
        for k in range(3):
            P += [f"buffer_load_dwordx4 {V(RX + (i*3+k)*4, 4)}, v{vLD}, s[{sWS}:{sWS+3}], s{sHB+k} offen offset:{i*1024} sc1"]
    for i in range(3):
        for k in range(3):
            for r in range(4):
                x = RX + (i*3+k)*4 + r
                P += [f"v_dot2c_f32_bf16 v{ACC+8*i+2*r}, s{sVU}, v{x}", f"v_dot2c_f32_bf16 v{ACC+8*i+2*r+1}, s{sVU+1}, v{x}"]
        for r in range(4): P += [f"v_cvt_pk_bf16_f32 v{OWN+4*i+r}, v{ACC+8*i+2*r}, v{ACC+8*i+2*r+1}"]
        for e in range(2): P += [f"buffer_store_dwordx2 {V(OWN+4*i+2*e, 2)}, v{vOUT+2*i+e}, s[{sOUT}:{sOUT+3}], 0 offen"]
    P += (st() if 5 in opt['stk'] else []) + st.dump() + ["Lend:", "s_endpgm"]
    lines, stats = finalize(P, quiet=bool(opt.get('strip')))
    print(stats, len(lines))
    lines += oline + ['Lcodeend:']
    return lines

def build(opt):
    import re as _re
    scheds = opt['sched']
    nvar = len(scheds)
    lines = []
    if nvar > 1:
        sh, w = opt['vsel']
        lines += ["s_cmp_ge_u32 s2, 256", "s_cbranch_scc0 Lgo", "s_endpgm", "Lgo:", f"s_bfe_u32 s3, s2, {hex((w << 16) | sh)}"]
        for v in range(1, nvar):
            lines += [f"s_cmp_eq_u32 s3, {v}", f"s_cbranch_scc0 Lsk{v}", f"s_getpc_b64 s[4:5]", f"Lpc{v}:", f"s_add_u32 s4, s4, Lvar{v}-Lpc{v}", "s_addc_u32 s5, s5, 0", "s_setpc_b64 s[4:5]", f"Lsk{v}:"]
    for v in range(nvar):
        o = dict(opt); o['sched'] = scheds[v]
        body = build_body(o)
        if nvar > 1:
            body = [_re.sub(r'\b(L(?:end|notag|tag|f1|f2|pcf|codeend)(?:_[lr])?)\b', lambda m: m.group(1) + f"_v{v}", l) for l in body]
            lines += [".p2align 6", f"Lvar{v}:"] if v else []
        lines += body
    hdr = open('concat_heads__mha_block_cached__gqa_block_cached__near_ridge.s.ref').read().split('; Override')[0]
    txt = hdr + "; @launch grid=(256,1,1) block=(256,1,1) lds=163840\n" + '.amdgcn_target "amdgcn-amd-amdhsa--gfx950"\n.text\n'
    txt += f".globl {NAME}\n.p2align 8\n.type {NAME},@function\n{NAME}:\n" + "\n".join("  " + l if not l.endswith(':') else l for l in lines) + "\n"
    txt += (f'.section .rodata,"a"\n.p2align 6\n.amdhsa_kernel {NAME}\n  .amdhsa_next_free_vgpr 512\n  .amdhsa_next_free_sgpr 102\n  .amdhsa_accum_offset 256\n'
            "  .amdhsa_group_segment_fixed_size 0\n  .amdhsa_kernarg_size 104\n  .amdhsa_user_sgpr_count 2\n  .amdhsa_user_sgpr_kernarg_segment_ptr 1\n"
            "  .amdhsa_system_sgpr_workgroup_id_x 1\n.end_amdhsa_kernel\n")
    return txt

def parse_sched(s):
    out = []
    for t in s.split():
        k, rest = t[0], t[1:]
        cls = 'h'
        if rest.endswith('m'): cls = 'm'; rest = rest[:-1]
        out.append((k, int(rest), cls))
    return out
SCHED = ("X0m W0m W1m X1m W2m W3m X2m W4m W5m W6 X3 W7 W8 X4 W9 W10 X5 W11 X6 W12 W13 K0m K1m K2m K3m V0m O0m O1m V4m V1 V2 V3 O2m "
         "O3m V5 V6 F60 V7 P0 P1 V8m O4 V9 O5 V10 V11 V12m O6 P2 P3 V13 O7 V14 V15")

if __name__ == "__main__":
    opt = dict(wq_pol='', x_pol='', k_pol=' nt', v_pol='', wo_pol='', rot=1, nlock=2, hrot=1, urot=1, st=Stamps(False), stk=(0, 1, 2, 4, 5), mp=7, hp=3, ml=80, hl=36, gap=80, smx=0, smw=2, pu0=23, p0at=370, pools=1,
               start=-160, verbose=1, s2at=3, pubd=30, sched=SCHED)
    for kv in sys.argv[2:]:
        k, v = kv.split('=')
        if k == 'st': opt['st'] = Stamps(True); opt['stk'] = tuple(int(x) for x in v.split(','))
        elif k == 'stp': opt['st'] = Stamps(True); opt['stk'] = (); opt['stp'] = tuple(int(x) for x in v.split(','))
        elif k in ('sched', 'mnt'): opt[k] = v
        else: opt[k] = ((' ' + v) if v else '') if k.endswith('pol') else int(v)
    if opt.get('rt'): opt['st'].rt = opt['rt']
    opt['st'].dbg = opt.get('dbg', 0)
    opt['sched'] = [parse_sched(x) for x in opt['sched'].split('|')]
    opt['vsel'] = (opt.get('vsh', 3), 1 if len(opt['sched']) == 2 else 2)
    open(sys.argv[1], "w").write(build(opt))
```

```python
import re

_REG = re.compile(r'(?<![\w.])([vas])(?:\[(\d+):(\d+)\]|(\d+))(?![\w])')
def regs_of(op):
    out = []
    for m in _REG.finditer(op):
        k = m.group(1)
        if m.group(2) is not None:
            out += [f"{k}{i}" for i in range(int(m.group(2)), int(m.group(3)) + 1)]
        else:
            out.append(f"{k}{m.group(4)}")
    for sp in ('vcc', 'exec', 'm0'):
        if re.search(r'(?<![\w])' + sp + r'(?![\w])', op): out.append(sp)
    return out

def R(k, base, n=1):
    return f"{k}{base}" if n == 1 else f"{k}[{base}:{base+n-1}]"
def V(b, n=1): return R('v', b, n)
def A(b, n=1): return R('a', b, n)
def S(b, n=1): return R('s', b, n)

TRANS = ('v_exp_f32', 'v_log_f32', 'v_rcp_f32', 'v_rsq_f32', 'v_sqrt_f32', 'v_sin_f32', 'v_cos_f32')

class I:
    __slots__ = ('txt', 'kind', 'rd', 'wr', 'tag', 'srcc', 'ab', 'states', 'wtags', 'size')
    def __init__(self, txt, tag=None):
        self.txt = txt; self.tag = tag; self.srcc = []; self.ab = []; self.states = 1; self.wtags = None
        parts = txt.split(None, 1)
        op = parts[0]; rest = parts[1] if len(parts) > 1 else ''
        ops = [o.strip() for o in re.split(r',(?![^\[]*\])', rest)] if rest else []
        rd, wr = [], []
        allr = lambda xs: [r for o in xs for r in regs_of(o)]
        if op.startswith('v_mfma'):
            k = 'mfma'; wr = regs_of(ops[0]); self.ab = allr(ops[1:3]); self.srcc = regs_of(ops[3]); rd = self.ab + self.srcc
        elif op.startswith('buffer_load') or op.startswith('global_load'):
            if re.search(r'\blds\b', txt) or '_lds_' in op:
                k = 'dma'; rd = allr(ops) + ['m0']
            else:
                k = 'vld'; wr = regs_of(ops[0]); rd = allr(ops[1:])
        elif op.startswith('buffer_store') or op.startswith('global_store'):
            k = 'vst'; rd = allr(ops)
        elif op.startswith('buffer_atomic') or op.startswith('global_atomic'):
            k = 'vst'; rd = allr(ops)
            if 'sc0' in txt: k = 'vld'; wr = regs_of(ops[0])
        elif op in ('buffer_wbl2', 'buffer_inv'):
            k = 'vst'
        elif op.startswith('ds_read') or op.startswith('ds_bpermute') or op.startswith('ds_swizzle'):
            k = 'dsr'; wr = regs_of(ops[0]); rd = allr(ops[1:])
        elif op.startswith('ds_write'):
            k = 'dsw'; rd = allr(ops)
        elif op.startswith('s_load') or op in ('s_memtime', 's_memrealtime'):
            k = 'smem'; wr = regs_of(ops[0]); rd = allr(ops[1:])
        elif op == 's_nop':
            k = 'nop'; self.states = int(ops[0], 0) + 1
        elif op == 's_barrier': k = 'bar'
        elif op == 's_waitcnt': k = 'wait'
        elif op.startswith('s_cbranch') or op == 's_branch' or op == 's_endpgm' or op == 's_setprio' or op == 's_sleep':
            k = 'ctl'
        elif op.startswith('s_cmp'):
            k = 'salu'; rd = allr(ops)
        elif op.startswith('s_'):
            k = 'salu'; wr = regs_of(ops[0]); rd = allr(ops[1:])
            if 'saveexec' in op: wr = wr + ['exec']; rd = rd + ['exec']
        elif op.startswith('v_permlane') or op == 'v_swap_b32':
            k = 'perm' if op.startswith('v_permlane') else 'valu'; rd = allr(ops); wr = list(rd)
        elif op.startswith('v_readfirstlane') or op.startswith('v_readlane'):
            k = 'rfl'; wr = regs_of(ops[0]); rd = allr(ops[1:])
        elif op.startswith('v_'):
            k = 'trans' if op.replace('_e32', '').replace('_e64', '') in TRANS else 'valu'
            wr = regs_of(ops[0]); rd = allr(ops[1:])
            if op.startswith('v_fmac') or op.startswith('v_pk_fmac') or op.startswith('v_dot2c'): rd = rd + wr
            if op.startswith('v_dot2'): k = 'dot'
            if '_co_' in op or op.startswith('v_div_scale'): wr = wr + regs_of(ops[1]); rd = allr(ops[2:])
            if 'dpp' in txt or 'row_' in txt: k = 'dpp'
        elif op.endswith(':') or op.startswith('.'):
            k = 'label'; self.states = 0
        else:
            raise ValueError("unknown op " + txt)
        self.kind = k; self.rd = rd; self.wr = wr

class WaitTag:
    def __init__(self, *tags): self.tags = set(tags)
class Fence:
    def __init__(self, vm=True, lgkm=True): self.vm = vm; self.lgkm = lgkm
class Atomic:
    def __init__(self, lst): self.lst = lst
class Raw:
    def __init__(self, txt): self.txt = txt

VALUISH = ('valu', 'trans', 'perm', 'rfl', 'dpp', 'dot')
VMEMISH = ('vld', 'vst', 'dma')

def finalize(prog, strict_max=True, log=None, quiet=False):
    out = []
    vm = []
    lg = []
    seen = set()
    written = {'s0', 's1', 's2', 'v0', 'exec'}
    stats = {'nops': 0, 'waits': 0, 'maxvm': 0, 'maxlg': 0}
    def emit(i): out.append(i)
    def do_wait(nvm, nlg):
        parts = []
        if nvm is not None:
            nvm = min(nvm, 63); parts.append(f"vmcnt({nvm})"); del vm[:max(0, len(vm) - nvm)]
        if nlg is not None:
            nlg = min(nlg, 15); parts.append(f"lgkmcnt({nlg})"); del lg[:max(0, len(lg) - nlg)]
        if parts:
            emit(I("s_waitcnt " + " ".join(parts))); stats['waits'] += 1
    def need(lst, pred):
        n = None
        for idx, e in enumerate(lst):
            if pred(e): n = len(lst) - 1 - idx
        return n
    def lg_need(pred):
        n = need(lg, pred)
        if n is not None and any(e.kind == 'smem' for e in lg): n = 0
        return n
    for it in prog:
        if isinstance(it, str): it = I(it)
        if isinstance(it, WaitTag):
            for tg in it.tags: assert tg in seen, f"WaitTag {tg} before its op was issued"
            do_wait(need(vm, lambda e: e.tag in it.tags), lg_need(lambda e: e.tag in it.tags)); continue
        if isinstance(it, Fence):
            do_wait(0 if it.vm and vm else None, 0 if it.lgkm and lg else None); continue
        if isinstance(it, Raw):
            emit(I("s_nop 7")); emit(I("s_nop 7"))
            for ln in it.txt.strip().split("\n"):
                r = I("s_nop 0"); r.txt = ln; r.kind = 'raw'; r.rd = []; r.wr = []; emit(r)
            emit(I("s_nop 7")); emit(I("s_nop 7"))
            continue
        touched = set(it.rd) | set(it.wr)
        unw = [r for r in it.rd if r not in written]
        if unw and not quiet: print('UNWRITTEN', unw, 'in', it.txt)
        written.update(it.wr); written.update(unw)
        if touched:
            a = need(vm, lambda e: e.wr and not touched.isdisjoint(e.wr))
            b = lg_need(lambda e: e.wr and not touched.isdisjoint(e.wr))
            do_wait(a, b)
        if it.kind in ('dsr', 'dsw', 'smem') and len(lg) >= 15: do_wait(None, 0 if any(e.kind == 'smem' for e in lg) else 14)
        req = 0; gap = 0
        rdS, wrS = set(it.rd), set(it.wr)
        for pv in reversed(out):
            if gap > 24: break
            n = 0
            pw = set(pv.wr)
            if pv.kind in VALUISH:
                vw = {r for r in pw if r[0] in 'va' and r not in ('vcc',)}
                sw = {r for r in pw if r[0] == 's' or r == 'vcc'}
                if it.kind == 'mfma' and vw & rdS: n = max(n, 2)
                if it.kind in ('perm', 'dpp') and vw & rdS: n = max(n, 2)
                if it.kind == 'rfl' and vw & rdS: n = max(n, 1)
                if pv.kind == 'trans' and it.kind in VALUISH and it.kind != 'trans' and vw & rdS: n = max(n, 1)
                if pv.kind == 'dot' and it.kind != 'dot' and vw & (rdS | wrS): n = max(n, 3)
                if it.kind in VMEMISH and sw & rdS: n = max(n, 5)
                if it.kind in VALUISH and sw & rdS: n = max(n, 4 if it.kind == 'rfl' else 2)
                if it.kind in ('salu', 'smem') and sw & rdS: n = max(n, 2)
                if 'exec' in pw: n = max(n, 5)
            elif pv.kind == 'mfma':
                if it.kind == 'mfma':
                    if pw & set(it.ab): n = max(n, 8)
                    ov = pw & set(it.srcc)
                    if ov and (it.srcc != pv.wr): n = max(n, 6)
                    if not ov and pw & wrS and it.wr != pv.wr: n = max(n, 8)
                elif (pw & (rdS | wrS)): n = max(n, 8)
                if it.kind in VALUISH and set(pv.srcc) & wrS: n = max(n, 3)
            elif pv.kind == 'salu':
                if 'm0' in pw and it.kind == 'dma': n = max(n, 1)
            elif pv.kind == 'vst':
                if ('x4' in pv.txt or 'x3' in pv.txt) and set(pv.rd) & wrS: n = max(n, 2)
            if n - gap > req: req = n - gap
            gap += pv.states
        if req > 0:
            emit(I(f"s_nop {req-1}")); stats['nops'] += req
            if log is not None: log.append((len(out), it.txt, req))
        emit(it)
        if it.tag: seen.add(it.tag)
        if it.kind in VMEMISH:
            vm.append(it); stats['maxvm'] = max(stats['maxvm'], len(vm))
            if strict_max: assert len(vm) <= 63, "too many vmem outstanding at " + it.txt
        elif it.kind in ('dsr', 'dsw', 'smem'):
            lg.append(it); stats['maxlg'] = max(stats['maxlg'], len(lg))
    return [o.txt for o in out], stats

class Timeline:
    def __init__(self): self.main = []; self.side = {}
    def add(self, ins): self.main.append(ins); return len(self.main) - 1
    def at(self, pos, *ins):
        self.side.setdefault(pos, []).extend(ins)
    def flat(self):
        out = []
        for p in sorted(k for k in self.side if k < 0): out += self.side[p]
        for i, m in enumerate(self.main):
            if m is not None: out.append(m)
            out += self.side.get(i, [])
        mx = max(self.side.keys(), default=-1)
        for p in range(len(self.main), mx + 1): out += self.side.get(p, [])
        return [y for x in out for y in (x.lst if isinstance(x, Atomic) else [x])]

def smooth(tl, maxslide=6, rdslide=3, cap=2):
    main = [None if m is None else (I(m) if isinstance(m, str) else m) for m in tl.main]
    n = len(main)
    items = []; fixed = {}
    def info(x):
        if isinstance(x, (WaitTag, Fence)): return None
        return I(x) if isinstance(x, str) else x
    for g in range(0, n):
        lst = tl.side.get(g, [])
        fixed[g] = [x for x in lst if getattr(x, 'wtags', None) == 'A' or getattr(x, 'pinned', False)]
        lst = [x for x in lst if x not in fixed[g]]
        k = 0
        while k < len(lst):
            x = lst[k]; t = x if isinstance(x, str) else getattr(x, 'txt', '')
            grp = list(x.lst) if isinstance(x, Atomic) else [x]
            if t.startswith('s_mov_b64 exec') and not t.endswith('-1'):
                while not (grp[-1] if isinstance(grp[-1], str) else getattr(grp[-1], 'txt', '')).startswith('s_mov_b64 exec, -1') or len(grp) == 1:
                    k += 1; grp.append(lst[k])
            k += 1
            ins = [info(y) for y in grp]
            cost = 0; lds = 0; rd = set(); wr = set(); slide = maxslide; valu = False
            for y in ins:
                if y is None: cost += 1; continue
                if y.kind == 'label': continue
                cost += 2 if y.kind == 'trans' else (4 if y.kind == 'vst' else 1)
                if y.kind in ('dsr', 'dsw'): lds += 1; slide = min(slide, rdslide)
                if y.kind in VALUISH: valu = True
                rd |= set(y.rd); wr |= set(y.wr)
            dl = g + slide
            pinned = main[g] is None or main[g].kind != 'mfma'
            if pinned: dl = g
            for m in range(g + 1, min(dl + 2, n)):
                mm = main[m]
                if mm is None or mm.kind != 'mfma': dl = min(dl, m - 1); break
                if (wr & (set(mm.rd) | set(mm.wr))) or (rd & set(mm.wr)):
                    dl = min(dl, max(g, m - (2 if valu and (wr & set(mm.rd)) else 1))); break
            items.append([g, grp, cost, lds, min(dl, n - 1)])
    for i in range(len(items) - 2, -1, -1): items[i][4] = min(items[i][4], items[i + 1][4])
    side = {p: v for p, v in tl.side.items() if p < 0 or p >= n}
    q = 0; over = 0
    for g in range(n):
        out = list(fixed[g]); used = len(out); lds = sum(1 for x in out if isinstance(x, I))
        while q < len(items) and items[q][0] <= g:
            r, grp, cost, l, dl = items[q]
            c = cost + (1 if (l and lds) else 0)
            if used + c <= cap or dl <= g or (used <= len(fixed[g]) and cost > cap - used and cost >= cap and lds == 0):
                out += grp; used += c; lds += l; q += 1
            else: break
        if used > cap and main[g] is not None and main[g].kind == 'mfma': over += used - cap
        if out: side[g] = out
    assert q == len(items)
    tl.side = side
    return over
```

```python
import struct, sys
from fw import *

def fbits(x): return struct.unpack('<I', struct.pack('<f', x))[0]
SZ_X, SZ_KV, SZ_W, SZ_OUT, SZ_WS = 1376256, 12582912, 3670016, 2752512, 268435456
SCALE = 1.4426950408889634 / 16.0
PART_OFF = 8 << 20
FLAG1_OFF = 40 << 20
FLAG2_OFF = 41 << 20
TAG_OFF = 42 << 20
NAME = "concat_heads__mha_block_cached__gqa_block_cached__near_ridge_kernel"

sX, sWQ, sK, sWS, sV, sWO, sOUT = 4, 8, 12, 16, 64, 68, 72
sHQ, sP, sHH, sBG, sH, sW, sB = 20, 21, 22, 23, 24, 25, 26
sM0B, sODD, sSC, sT0, sT1 = 27, 28, 30, 31, 32
sSTG, sWOM, sSO2 = 33, 34, 35
sWQO = 36
sXO = 50
sTAG, sCNT, sSO = 57, 62, 63
sDBG = 76
sHB = 80
sVU = 84
sWOR = 88
sVH, sWH = 90, 91
STAMP_REGS = [92, 94, 96, 98, 100]

vTR, vTRH, vW, vXD, vKD, vSR, vVD, vWO, vPA, vPB, vF = 2, 10, 18, 22, 24, 26, 28, 30, 37, 38, 39
vFR, NS = 40, 6
vACC = 64
vT = 64
def acc(t, mt): return vACC + (t * 3 + mt) * 4
def xreg(j, mt): return (j * 3 + mt) * 4
def kreg(s, kt):
    f = s * 3 + kt
    return 168 + 4 * f if f < 22 else 4 * (f - 22)
vTW, vTWH, vP2A, vP2B, vST, vF1A, vF2A, vLD, vOUT, vLW, vLR = 2, 3, 4, 5, 6, 7, 8, 9, 10, 16, 17
vU = 172
vUB = 64
def uacc(kt, nt): return vU + (nt * 3 + kt) * 4
def oacc(nt, mt): return 168 + (nt * 3 + mt) * 4
aV, NVF = 8, 31
aP = 132
def vfrag(sig, kt): return aV + ((sig * 3 + kt) % NVF) * 4
RING, SLAB = 7, 16384
SUP, R2 = 28672, 4
STG = 114688

flat = lambda gs: [x for g in gs for x in g]
def srd(d, lo, size):
    return [f"s_mov_b32 s{d}, s{lo}", f"s_mov_b32 s{d+1}, s{lo+1}", f"s_mov_b32 s{d+2}, {size}", f"s_mov_b32 s{d+3}, 0x20000"]

class Stamps:
    def __init__(self, on): self.on = on; self.n = 0; self.pend = []
    def __call__(self):
        if not self.on: return []
        r = STAMP_REGS[self.n % len(STAMP_REGS)]
        out = []
        if self.n >= len(STAMP_REGS): raise RuntimeError("too many stamps")
        self.n += 1
        if getattr(self, 'rt', 0) == 2 or (getattr(self, 'rt', 0) == 1 and self.n in (2, 4)): return [f"s_memrealtime s[{r}:{r+1}]"]
        return [f"s_memtime s[{r}:{r+1}]"]
    def dump(self):
        if not self.on: return []
        if getattr(self, 'dbg', 0):
            R = STAMP_REGS
            P = [Fence(), "s_mov_b64 exec, 1", "v_mov_b32 v3, 0", f"s_not_b32 s{sT0}, s{R[0]}", f"v_mov_b32 v2, s{sT0}", f"buffer_atomic_umax v2, v3, s[{sDBG}:{sDBG+3}], 0 offen offset:8",
                 f"v_mov_b32 v4, s{R[self.n-1]}", f"buffer_atomic_umax v4, v3, s[{sDBG}:{sDBG+3}], 0 offen offset:12"]
            for i in range(1, self.n):
                P += [f"s_sub_u32 s{sT0}, s{R[i]}, s{R[0]}", f"v_mov_b32 v{4+i}, s{sT0}", f"buffer_atomic_umax v{4+i}, v3, s[{sDBG}:{sDBG+3}], 0 offen offset:{12+4*i}",
                      f"buffer_atomic_add v{4+i}, v3, s[{sDBG}:{sDBG+3}], 0 offen offset:{32+4*i}"]
            return P
        P = [Fence(), f"s_lshl_b32 s{sT0}, s2, 2", f"s_add_u32 s{sT0}, s{sT0}, s{sW}", f"s_lshl_b32 s{sT0}, s{sT0}, 7", f"s_add_u32 s{sT0}, s{sT0}, {64 << 20}", "v_mov_b32 v3, 0"]
        for i in range(self.n):
            P += [f"v_mov_b32 v2, s{STAMP_REGS[i]}", f"buffer_store_dword v2, v3, s[{sWS}:{sWS+3}], s{sT0} offen offset:{4*i}"]
        return P

def prologue(opt):
    P = ["s_cmp_ge_u32 s2, 256", "s_cbranch_scc1 Lend",
         "s_load_dwordx16 s[36:51], s[0:1], 0", "s_load_dwordx8 s[52:59], s[0:1], 64", "s_load_dwordx2 s[60:61], s[0:1], 96"] + opt['st']() + [
         f"s_and_b32 s{sHQ}, s2, 3", f"s_bfe_u32 s{sP}, s2, 0x10002", f"s_bfe_u32 s{sHH}, s2, 0x20003", f"s_lshr_b32 s{sBG}, s2, 5",
         f"s_lshl_b32 s{sH}, s{sHQ}, 2", f"s_add_u32 s{sH}, s{sH}, s{sHH}",
         "v_lshrrev_b32 v1, 6, v0", f"v_readfirstlane_b32 s{sW}, v1", "v_and_b32 v1, 63, v0",
         f"s_lshl_b32 s{sB}, s{sBG}, 2", f"s_add_u32 s{sB}, s{sB}, s{sW}"]
    a, b, c, d = vT, vT + 1, vT + 2, vT + 3
    if opt.get('cpf'):
        P += ["s_getpc_b64 s[88:89]", "Lpcf:", f"s_lshr_b32 s{sT0}, s2, 3", f"s_lshl_b32 s{sT0}, s{sT0}, 2", f"s_add_u32 s{sT0}, s{sT0}, s{sW}", f"s_lshl_b32 s{sT0}, s{sT0}, 9",
              f"v_and_b32 v{a}, 3, v1", f"v_lshlrev_b32 v{a}, 7, v{a}", f"v_add_u32 v{a}, s{sT0}, v{a}", f"v_min_u32 v{a}, Lcodeend-Lpcf-4, v{a}", XI(f"global_load_dword v{vF}, v{a}, s[88:89]")]
    P += [f"s_mul_i32 s{sSTG}, s{sW}, 12288", f"s_add_u32 s{sSTG}, s{sSTG}, {STG}", f"s_mul_i32 s{sT0}, s{sB}, 43008"]
    P += stage_dma_voff(vXD, 896, sT0)
    P += [f"s_lshl_b32 s{sM0B}, s{sW}, 12", f"s_and_b32 s{sT0}, s{sW}, 1", f"s_lshl_b32 s{sT0}, s{sT0}, 3",
          f"s_lshl_b32 s{sT1}, s{sW}, 16", f"s_lshl_b32 s{sSO}, s{sH}, 9", f"s_add_u32 s{sT1}, s{sT1}, s{sSO}",
          f"v_lshrrev_b32 v{a}, 5, v1", f"v_and_b32 v{b}, 31, v1", f"v_or_b32 v{c}, s{sT0}, v{a}", f"v_xor_b32 v{b}, v{b}, v{c}",
          f"v_lshlrev_b32 v{b}, 4, v{b}", f"v_lshl_add_u32 v{b}, v{a}, 13, v{b}", f"v_add_u32 v{vW}, s{sT1}, v{b}",
          f"v_xor_b32 v{c}, 64, v{vW}", f"v_add_u32 v{vW+1}, {16384-1024}, v{c}", f"v_add_u32 v{vW+2}, {2*(16384-1024)}, v{vW}", f"v_add_u32 v{vW+3}, {3*(16384-1024)}, v{c}"]
    P += [f"v_and_b32 v{a}, 15, v1", f"v_lshrrev_b32 v{b}, 4, v1", f"v_lshrrev_b32 v{c}, 1, v{a}", f"v_xor_b32 v{c}, v{c}, v{b}", f"v_lshlrev_b32 v{c}, 4, v{c}",
          f"v_lshl_add_u32 v{c}, v{a}, 7, v{c}", f"v_add_u32 v{vSR}, s{sSTG}, v{c}", f"v_xor_b32 v{c}, 64, v{c}", f"v_add_u32 v{vSR+1}, s{sSTG}, v{c}"]
    P += [f"s_mov_b32 s{sX+2}, {SZ_X}", f"s_mov_b32 s{sX+3}, 0x20000", f"s_mov_b32 s{sWQ+2}, {SZ_W}", f"s_mov_b32 s{sWQ+3}, 0x20000",
          f"s_mov_b32 s{sT0}, 0", f"s_mov_b32 s{sT1}, {1 << 18}", f"s_cmp_eq_u32 s{sP}, 0",
          f"s_cselect_b64 s[{sX}:{sX+1}], s[36:37], s[46:47]", f"s_cselect_b64 s[{sWQ}:{sWQ+1}], s[42:43], s[52:53]"]
    return P

def setup1(opt):
    P = [f"s_cmp_eq_u32 s{sP}, 0"]
    for i, d_ in ((1, sK), (2, sV), (4, sWO)):
        P.append(f"s_cselect_b64 s[{d_}:{d_+1}], s[{36+2*i}:{37+2*i}], s[{46+2*i}:{47+2*i}]")
    for d_, sz in ((sK, SZ_KV), (sV, SZ_KV), (sWO, SZ_W)):
        P += [f"s_mov_b32 s{d_+2}, {sz}", f"s_mov_b32 s{d_+3}, 0x20000"]
    P += srd(sOUT, 56, SZ_OUT) + srd(sWS, 60, SZ_WS) + srd(sDBG, 58, 256)
    P += [f"s_mov_b32 s{sVH}, {TAG_OFF}", f"buffer_load_dword v{vF}, off, s[{sWS}:{sWS+3}], s{sVH} sc1"]
    P += [f"s_mov_b32 s{sXO+1}, 128", f"s_mov_b32 s{sWQO+2}, {2 << 18}", f"s_mov_b32 s{sWQO+3}, {3 << 18}"]
    return P

def stage_dma_voff(vd, rowstride, sbase):
    a, b, c = vT, vT + 1, vT + 2
    return [f"v_lshrrev_b32 v{a}, 3, v1", f"v_and_b32 v{b}, 7, v1", f"v_lshrrev_b32 v{c}, 4, v1", f"v_xor_b32 v{b}, v{b}, v{c}", f"v_lshlrev_b32 v{b}, 4, v{b}",
            f"v_mul_u32_u24 v{a}, {rowstride}, v{a}", f"v_add3_u32 v{vd}, v{a}, v{b}, s{sbase}", f"v_xor_b32 v{b}, 64, v{b}", f"v_add3_u32 v{vd+1}, v{a}, v{b}, s{sbase}",
            f"v_add_u32 v{vd+1}, {8*rowstride - 1024}, v{vd+1}"]

def setup2(opt):
    P = []
    a, b, c, d, e = vT, vT + 1, vT + 2, vT + 3, vT + 4
    nl = opt['nlock']; nr = 7 - nl
    if opt['rot']:
        P += [f"s_lshl_b32 s{sCNT}, s{sHH}, 1", f"s_add_u32 s{sCNT}, s{sCNT}, s{sBG}"]
        for _ in range(3): P += [f"s_cmp_ge_u32 s{sCNT}, {nr}", f"s_cselect_b32 s{sSO}, {nr}, 0", f"s_sub_u32 s{sCNT}, s{sCNT}, s{sSO}"]
    else: P += [f"s_mov_b32 s{sCNT}, 0"]
    P += [f"s_add_u32 s{sCNT}, s{sCNT}, {nl}"]
    for j in range(2, nl):
        P += [f"s_mov_b32 s{sXO+j}, {j*128}", f"s_mov_b32 s{sWQO+2*j}, {j << 19}", f"s_mov_b32 s{sWQO+2*j+1}, {(j << 19) + (1 << 18)}"]
    for j in range(nl, 7):
        P += [f"s_lshl_b32 s{sXO+j}, s{sCNT}, 7", f"s_lshl_b32 s{sWQO+2*j}, s{sCNT}, 19", f"s_add_u32 s{sWQO+2*j+1}, s{sWQO+2*j}, {1 << 18}"]
        if j < 6: P += [f"s_add_u32 s{sCNT}, s{sCNT}, 1", f"s_cmp_eq_u32 s{sCNT}, 7", f"s_cselect_b32 s{sCNT}, {nl}, s{sCNT}"]
    P += [f"v_lshrrev_b32 v{a}, 4, v1", f"v_bfe_u32 v{b}, v1, 2, 2", f"v_and_b32 v{c}, 3, v1",
          f"v_lshl_add_u32 v{d}, v{a}, 3, v{b}", f"v_lshlrev_b32 v{d}, 9, v{d}",
          f"v_and_b32 v{a}, 1, v{a}", f"v_lshlrev_b32 v{a}, 3, v{a}",
          f"v_lshrrev_b32 v{e}, 1, v{b}", f"v_lshl_or_b32 v{a}, v{e}, 2, v{a}",
          f"v_and_b32 v{b}, 1, v{b}", f"v_or_b32 v{a}, v{a}, v{b}",
          f"v_xor_b32 v{a}, v{a}, v{c}", f"v_lshl_add_u32 v{d}, v{a}, 4, v{d}",
          f"v_and_b32 v{c}, 1, v{c}", f"v_lshl_add_u32 v{d}, v{c}, 3, v{d}"]
    for bb in range(4):
        for tau in range(2):
            P.append(f"v_xor_b32 v{vTR + bb*2 + tau}, {(bb << 6) | (tau << 3)}, v{d}")
            P.append(f"v_xor_b32 v{vTRH + bb*2 + tau}, {0x10000 | (bb << 6) | (tau << 3)}, v{d}")
    P += [f"s_lshl_b32 s{sSO}, s{sB}, 4", f"s_add_u32 s{sCNT}, s{sSO}, s{sH}", f"s_mul_i32 s{sSO2}, s{sCNT}, 24576"]
    P += stage_dma_voff(vKD, 512, sSO2)
    P += [f"s_mul_i32 s{sSO2}, s{sHH}, 24576", f"v_subrev_u32 v{vVD}, s{sSO2}, v{vKD}", f"v_subrev_u32 v{vVD+1}, s{sSO2}, v{vKD+1}"]
    P += [f"s_lshl_b32 s{sSO}, s{sP}, 9", f"s_add_u32 s{sSO}, s{sSO}, s{sCNT}", f"s_mul_i32 s{sSO}, s{sSO}, 4608",
          f"v_lshlrev_b32 v{a}, 4, v1", f"v_add_u32 v{vPA}, s{sSO}, v{a}", f"v_lshlrev_b32 v{a}, 3, v1", f"s_add_u32 s{sSO}, s{sSO}, 1024", f"v_add_u32 v{vPB}, s{sSO}, v{a}"]
    P += [f"s_mov_b32 s{sODD}, 0xffff0000", f"s_mov_b32 s{sODD+1}, 0xffff0000", f"s_mov_b32 s{sSC}, {fbits(SCALE)}"]
    for hn in range(4):
        src = sBG if opt['hrot'] else None
        if src is not None: P += [f"s_add_u32 s{sHB+hn}, s{src}, {hn}", f"s_and_b32 s{sHB+hn}, s{sHB+hn}, 3"]
        else: P += [f"s_mov_b32 s{sHB+hn}, {hn}"]
        if opt['urot']: P += [f"s_add_u32 s{sVU+hn}, s{sHH}, {hn}", f"s_and_b32 s{sVU+hn}, s{sVU+hn}, 3", f"s_lshl_b32 s{sVU+hn}, s{sVU+hn}, 7"]
        else: P += [f"s_mov_b32 s{sVU+hn}, {hn*128}"]
    for hf2 in range(2):
        P += [f"s_lshr_b32 s{sSO}, s{sW}, 1", f"s_add_u32 s{sSO}, s{sSO}, {2*hf2}"]
        if opt['urot']: P += [f"s_add_u32 s{sSO}, s{sSO}, s{sHH}"]
        P += [f"s_and_b32 s{sSO}, s{sSO}, 3", f"s_lshl_b32 s{sSO}, s{sSO}, 1", f"s_and_b32 s{sSO2}, s{sW}, 1", f"s_add_u32 s{sSO}, s{sSO}, s{sSO2}", f"s_mul_i32 s{sWOR+hf2}, s{sSO}, {32*896}"]
    P += [f"s_mul_i32 s{sWOM}, s{sW}, 7168"]
    P += [f"s_mul_i32 s{sSO}, s{sHH}, 224", f"s_mul_i32 s{sSO2}, s{sHQ}, {1024*896}", f"s_add_u32 s{sSO}, s{sSO}, s{sSO2}", f"s_mov_b32 s{sSO2}, {(1 << 32) // 14 + 1}"]
    for i in range(7):
        P += [f"v_add_u32 v{a}, {64*i}, v1", f"v_mul_hi_u32 v{b}, v{a}, s{sSO2}", f"v_mul_u32_u24 v{c}, 14, v{b}", f"v_sub_u32 v{c}, v{a}, v{c}",
              f"v_and_b32 v{a}, 19, v{b}", f"v_bfe_u32 v{d}, v{b}, 2, 1", f"v_lshl_or_b32 v{a}, v{d}, 3, v{a}", f"v_bfe_u32 v{d}, v{b}, 3, 1", f"v_lshl_or_b32 v{a}, v{d}, 2, v{a}",
              f"v_mul_u32_u24 v{a}, 896, v{a}", f"v_lshl_add_u32 v{a}, v{c}, 4, v{a}", f"v_add_u32 v{vWO+i}, s{sSO}, v{a}"]
        if i & 3: P += [f"v_subrev_u32 v{vWO+i}, {1024*(i & 3)}, v{vWO+i}"]
    return P

def tagpub(opt):
    return [f"v_add_u32 v{vF}, 1, v{vF}", f"v_or_b32 v{vF}, 0x80000000, v{vF}",
          f"s_or_b32 s{sSO}, s2, s{sW}", f"s_cmp_lg_u32 s{sSO}, 0", "s_cbranch_scc1 Lnotag",
          f"s_mov_b32 s{sSO}, {TAG_OFF}", "s_mov_b64 exec, 1",
          XI(f"buffer_store_dword v{vF}, off, s[{sWS}:{sWS+3}], s{sSO} sc1"), XI(f"buffer_store_dword v{vF}, off, s[{sDBG}:{sDBG+3}], 0 sc1"),
          "s_mov_b64 exec, -1", "s_nop 1", "Lnotag:"]

def XI(txt):
    i = I(txt); i.kind = 'xvm'; return i

def setup3(opt):
    a, b, c, d = vFR, vFR + 1, vFR + 2, vFR + 3
    P = [f"v_bfe_u32 v{a}, v1, 2, 3", f"v_lshrrev_b32 v{b}, 5, v1", f"v_lshl_add_u32 v{a}, v{b}, 4, v{a}", f"v_mul_u32_u24 v{a}, 224, v{a}",
         f"v_and_b32 v{b}, 3, v1", f"v_lshl_add_u32 v{vTW}, v{b}, 3, v{a}", f"v_add_u32 v{vTWH}, {2*SUP}, v{vTW}",
         f"s_mul_i32 s{sT0}, s{sHH}, 4608", f"v_subrev_u32 v{vP2A}, s{sT0}, v{vPA}", f"v_subrev_u32 v{vP2B}, s{sT0}, v{vPB}"]
    P += [f"s_lshl_b32 s{sT0}, s{sP}, 9", f"s_lshl_b32 s{sT1}, s{sB}, 4", f"s_add_u32 s{sT0}, s{sT0}, s{sT1}", f"s_lshl_b32 s{sT1}, s{sHQ}, 2", f"s_add_u32 s{sT0}, s{sT0}, s{sT1}",
          f"s_lshl_b32 s{sT0}, s{sT0}, 7", f"s_add_u32 s{sT0}, s{sT0}, {FLAG1_OFF}", f"v_lshlrev_b32 v{b}, 7, v{b}", f"v_add_u32 v{vF1A}, s{sT0}, v{b}"]
    P += [f"s_lshl_b32 s{sT0}, s{sP}, 3", f"s_add_u32 s{sT0}, s{sT0}, s{sBG}", f"s_lshl_b32 s{sT0}, s{sT0}, 2", f"s_add_u32 s{sT0}, s{sT0}, s{sHH}",
          f"s_lshl_b32 s{sT0}, s{sT0}, 2", f"s_add_u32 s{sT0}, s{sT0}, s{sW}",
          f"s_lshl_b32 s{sT1}, s{sT0}, 9", f"s_add_u32 s{sT1}, s{sT1}, {FLAG2_OFF}", f"v_add_u32 v{vF2A}, s{sT1}, v{b}"]
    g_, jj = vFR + 5, vFR + 6
    P += [f"s_mul_i32 s{sT0}, s{sT0}, 49152", f"s_add_u32 s{sT0}, s{sT0}, {PART_OFF}",
          f"s_mul_i32 s{sT1}, s{sHQ}, 3072", f"s_add_u32 s{sT1}, s{sT1}, s{sT0}",
          f"v_lshrrev_b32 v{a}, 4, v1", f"v_bfe_u32 v{g_}, v1, 2, 2", f"v_and_b32 v{jj}, 3, v1", f"v_cmp_eq_u32 vcc, s{sHQ}, v{g_}", f"v_mul_u32_u24 v{d}, 12288, v{g_}",
          f"v_lshl_add_u32 v{c}, v{a}, 2, v{jj}", f"v_lshl_add_u32 v{d}, v{c}, 4, v{d}", f"v_add_u32 v{vST}, s{sT1}, v{d}",
          f"v_mov_b32 v{b}, 0x7ff00000", f"v_cndmask_b32 v{vST}, v{vST}, v{b}, vcc",
          f"s_mul_i32 s{sT1}, s{sHQ}, 12288", f"s_add_u32 s{sT1}, s{sT1}, s{sT0}", f"v_lshlrev_b32 v{d}, 4, v1", f"v_add_u32 v{vLD}, s{sT1}, v{d}",
          f"v_add_u32 v{vLW}, s{sSTG}, v{d}",
          f"s_lshl_b32 s{sT1}, s{sHQ}, 6", f"s_add_u32 s{sT1}, s{sT1}, s{sSTG}", f"v_lshlrev_b32 v{d}, 10, v{a}", f"v_lshl_add_u32 v{d}, v{g_}, 8, v{d}", f"v_lshl_add_u32 v{d}, v{jj}, 4, v{d}", f"v_add_u32 v{vLR}, s{sT1}, v{d}"]
    P += [f"s_mul_i32 s{sT0}, s{sB}, {48*1792}", f"s_mul_i32 s{sT1}, s{sP}, 896", f"s_add_u32 s{sT0}, s{sT0}, s{sT1}", f"s_mul_i32 s{sT1}, s{sHH}, 224", f"s_add_u32 s{sT0}, s{sT0}, s{sT1}",
          f"s_mul_i32 s{sT1}, s{sHQ}, {4*1792}", f"s_add_u32 s{sT0}, s{sT0}, s{sT1}", f"v_mul_u32_u24 v{c}, 1792, v{jj}", f"v_lshl_add_u32 v{c}, v{g_}, 3, v{c}", f"v_add_u32 v{c}, s{sT0}, v{c}"]
    e_ = vFR + 4
    for i in range(6):
        P += [f"v_lshl_add_u32 v{e_}, v{a}, 1, {8*(i//2) + (i & 1)}", f"v_mul_u32_u24 v{b}, 43, v{e_}", f"v_lshrrev_b32 v{b}, 7, v{b}", f"v_mul_u32_u24 v{d}, 3, v{b}", f"v_sub_u32 v{d}, v{e_}, v{d}",
              f"v_mul_u32_u24 v{d}, {16*1792}, v{d}", f"v_lshl_add_u32 v{d}, v{b}, 5, v{d}", f"v_add_u32 v{vOUT+i}, v{c}, v{d}"]
        if i >= 4: P += [f"v_cmp_lt_u32 vcc, 20, v{e_}", f"v_mov_b32 v{b}, 0x7ff00000", f"v_cndmask_b32 v{vOUT+i}, v{vOUT+i}, v{b}, vcc"]
    return P

def SA(i):
    i.wtags = 'A'; return i
class PinW(WaitTag):
    pinned = True

class Stager:
    def __init__(self, nsl): self.nsl = nsl; self.n = 0
    def tile(self, vdma, srd_, so_ins, pol, dst0, dst1):
        n = self.n; self.n += 1
        slot = n % self.nsl
        pre = [WaitTag(f"sr{n - self.nsl}")] if n >= self.nsl else []
        iss = [pre + [f"s_add_u32 m0, s{sSTG}, {slot*2048}"] + so_ins + [I(f"buffer_load_dwordx4 v{vdma}, s[{srd_}:{srd_+3}], s{sSO2} offen{pol} lds", tag=f"sd{n}")],
               [I(f"buffer_load_dwordx4 v{vdma+1}, s[{srd_}:{srd_+3}], s{sSO2} offen offset:1024{pol} lds", tag=f"sd{n}")]]
        rd = [WaitTag(f"sd{n}"), I(f"ds_read_b128 {dst0}, v{vSR} offset:{slot*2048}", tag=f"sr{n}"), I(f"ds_read_b128 {dst1}, v{vSR+1} offset:{slot*2048}", tag=f"sr{n}")]
        return iss, rd

def g_w(s, opt):
    slot = (s % RING) * SLAB
    return [([f"s_add_u32 m0, s{sM0B}, {slot}", "s_nop 0"] if i == 0 else []) +
            [I(f"buffer_load_dwordx4 v{vW+i}, s[{sWQ}:{sWQ+3}], s{(sT0, sT1)[s] if s < 2 else sWQO+s} offen offset:{i*1024}{opt['wq_pol']} lds", tag=f"slab{s}")] for i in range(4)]
def g_wo(j, opt):
    hn, half = divmod(j, 2)
    out = []
    for i in range(7):
        pre = []
        if i in (0, 4): pre += [f"s_add_u32 m0, s{sWOM}, {(j % R2) * SUP + i * 1024}"]
        if i == 0: pre += [f"s_mul_i32 s{sWH}, s{sHB+hn}, {256*896}", f"s_add_u32 s{sWH}, s{sWH}, s{sWOR+half}"]
        if i == 4: pre += ["s_nop 0"]
        out.append(pre + [I(f"buffer_load_dwordx4 v{vWO+i}, s[{sWO}:{sWO+3}], s{sWH} offen offset:{(i & 3)*1024}{opt['wo_pol']} lds", tag=f"sup{j}")])
    return out
def g_p(hn, opt):
    out = []
    o = (hn & 1) * 6
    for mt in range(3):
        pre = [f"s_mul_i32 s{sSO}, s{sHB+hn}, 4608"] if mt == 0 else []
        out.append(pre + [f"buffer_load_dwordx4 {A(aP + mt*12 + o, 4)}, v{vP2A}, s[{sWS}:{sWS+3}], s{sSO} offen offset:{mt*1536} sc1"])
        out.append([f"buffer_load_dwordx2 {A(aP + mt*12 + o + 4, 2)}, v{vP2B}, s[{sWS}:{sWS+3}], s{sSO} offen offset:{mt*1536} sc1"])
    return out

def tr_reads(T):
    ks, t = divmod(T, 16)
    sp, tau = divmod(t, 2)
    ap, bp = divmod(sp, 4)
    slot = ks % RING
    base = (vTR if slot < 4 else vTRH) + bp * 2 + tau
    off = (slot % 4) * SLAB + ap * 256
    d = vFR + (T % NS) * 4
    return [I(f"ds_read_b64_tr_b16 {V(d, 2)}, v{base} offset:{off}", tag=f"ta{T}"), I(f"ds_read_b64_tr_b16 {V(d+2, 2)}, v{base} offset:{off + 2048}", tag=f"ta{T}")]
def wo_reads(F):
    sig, nt = divmod(F, 7)
    j, sl = divmod(sig, 4)
    ss = j % R2
    base = vTW if ss < 2 else vTWH
    off = (ss % 2) * SUP + sl * 7168 + nt * 32
    d = vFR + (F % NS) * 4
    return [I(f"ds_read_b64_tr_b16 {V(d, 2)}, v{base} offset:{off}", tag=f"tb{F}"), I(f"ds_read_b64_tr_b16 {V(d+2, 2)}, v{base} offset:{off + 1792}", tag=f"tb{F}")]

def softmax_block(sacc, m, t, pk):
    sv = lambda mt: [sacc(kt, mt) + r for kt in range(3) for r in range(4)]
    Q = []
    for mt in range(3):
        x = sv(mt)
        Q.append(f"v_max3_f32 v{m[mt]}, v{x[0]}, v{x[1]}, v{x[2]}")
    for j in range(4):
        for mt in range(3):
            x = sv(mt); Q.append(f"v_max3_f32 v{m[mt]}, v{m[mt]}, v{x[3+2*j]}, v{x[4+2*j]}")
    for mt in range(3): Q.append(f"v_max_f32 v{m[mt]}, v{m[mt]}, v{sv(mt)[11]}")
    def xred(op):
        o = []
        for pl in ('v_permlane32_swap_b32', 'v_permlane16_swap_b32'):
            o += [f"v_mov_b32 v{t[mt]}, v{m[mt]}" for mt in range(3)]
            o += [f"{pl} v{m[mt]}, v{t[mt]}" for mt in range(3)]
            o += [f"{op} v{m[mt]}, v{m[mt]}, v{t[mt]}" for mt in range(3)]
        return o
    Q += xred('v_max_f32')
    Q += [f"v_mul_f32 v{m[mt]}, s{sSC}, v{m[mt]}" for mt in range(3)]
    for j in range(12):
        Q += [f"v_fma_f32 v{sv(mt)[j]}, v{sv(mt)[j]}, s{sSC}, -v{m[mt]}" for mt in range(3)]
        Q += [f"v_exp_f32 v{sv(mt)[j]}, v{sv(mt)[j]}" for mt in range(3)]
    Q += [f"v_add_f32 v{m[mt]}, v{sv(mt)[0]}, v{sv(mt)[1]}" for mt in range(3)]
    for j in range(2, 12):
        Q += [f"v_add_f32 v{m[mt]}, v{m[mt]}, v{sv(mt)[j]}" for mt in range(3)]
    Q += xred('v_add_f32')
    Q += [f"v_rcp_f32 v{m[mt]}, v{m[mt]}" for mt in range(3)]
    for mt in range(3):
        x = sv(mt)
        for j in range(12): Q.append(f"v_mul_f32 v{x[j]}, v{x[j]}, v{m[mt]}")
        for j in range(6): Q.append(f"v_cvt_pk_bf16_f32 v{pk + mt*6 + j}, v{x[2*j]}, v{x[2*j+1]}")
        Q.append(I(f"buffer_store_dwordx4 {V(pk + mt*6, 4)}, v{vPA}, s[{sWS}:{sWS+3}], 0 offen offset:{mt*1536} sc1", tag="pst"))
        Q.append(I(f"buffer_store_dwordx2 {V(pk + mt*6 + 4, 2)}, v{vPB}, s[{sWS}:{sWS+3}], 0 offen offset:{mt*1536} sc1", tag="pst"))
    return Q

def spin(label, load, cmp_, load2=None, cmp2=None):
    if load2 is not None:
        chk = lambda c: [c, "s_nop 4", "s_cmp_eq_u64 vcc, 0", f"s_cbranch_scc1 {label}_r"]
        return [f"{label}:", f"s_mov_b32 s{sCNT}, 0x40000", "s_waitcnt vmcnt(0)", load, "s_sleep 4", f"{label}_l:", load2, "s_waitcnt vmcnt(1)"] + chk(cmp_) + [load, "s_waitcnt vmcnt(1)"] + chk(cmp2) + [
                f"s_sub_u32 s{sCNT}, s{sCNT}, 1", f"s_cmp_lg_u32 s{sCNT}, 0", f"s_cbranch_scc1 {label}_l", f"s_branch {label}_r"]
    return [f"{label}:", f"s_mov_b32 s{sCNT}, 0x40000", f"{label}_l:", "s_sleep 2", load, "s_waitcnt vmcnt(0)", cmp_, "s_nop 4", "s_cmp_eq_u64 vcc, 0", f"s_cbranch_scc1 {label}_r",
            f"s_sub_u32 s{sCNT}, s{sCNT}, 1", f"s_cmp_lg_u32 s{sCNT}, 0", f"s_cbranch_scc1 {label}_l", f"s_branch {label}_r"]

def build_body(opt):
    st = opt['st']; st.n = 0
    sg = Stager(6)
    P = prologue(opt)
    if opt.get('fake') == 2: P += [f'v_lshlrev_b32 v{vXD}, 4, v0']
    tl = Timeline()
    LA = 4
    for ks in range(14):
        for t in range(16):
            T = ks * 16 + t
            af = vFR + (T % NS) * 4
            for mt in range(3):
                c = '0' if ks == 0 else V(acc(t, mt), 4)
                idx = tl.add(f"v_mfma_f32_16x16x32_bf16 {V(acc(t, mt), 4)}, {V(af, 4)}, {A(xreg(ks, mt), 4)}, {c}")
                if mt < 2 and T + LA < 224: tl.at(idx, SA(tr_reads(T + LA)[mt]))
                if opt['pw'] and mt == 2 and T % 2 == 1 and T + 2 < 224: tl.at(idx, PinW(f"ta{T+2}"))
        pre = ([WaitTag(f"slab{ks+1}")] if ks < 13 else []) + ["s_barrier"]
        if ks == 0:
            if opt['b0']:
                tl.at(26, *pre); pre = [WaitTag("slab0"), "s_barrier"]
            pre += (st() if 0 in opt['stk'] else []) + flat([tr_reads(T) for T in range(LA)])
        tl.at(ks * 48 - 1, *pre)
    b13 = 13 * 48
    cv = []
    for sp in range(8):
        for mt in range(3):
            t0, t1 = acc(2 * sp, mt), acc(2 * sp + 1, mt)
            cv += [f"v_cvt_pk_bf16_f32 v{t0}, v{t0}, v{t0+1}", f"v_cvt_pk_bf16_f32 v{t0+1}, v{t0+2}, v{t0+3}",
                   f"v_cvt_pk_bf16_f32 v{t0+2}, v{t1}, v{t1+1}", f"v_cvt_pk_bf16_f32 v{t0+3}, v{t1+2}, v{t1+3}"]
        sw = [f"s_mov_b64 exec, s[{sODD}:{sODD+1}]"]
        for mt in range(3):
            t0 = acc(2 * sp, mt)
            sw += [f"v_swap_b32 v{t0}, v{t0+2}", f"v_swap_b32 v{t0+1}, v{t0+3}"]
        sw.append("s_mov_b64 exec, -1")
        cv.append(sw)
    pos = b13 + 10; cnt = 0
    for c in cv:
        if isinstance(c, list): tl.at(pos, *c); pos += 3; cnt = 0
        else:
            tl.at(pos, c); cnt += 1
            if cnt == 2: cnt = 0; pos += 1
    sacc = lambda kt, mt: acc(2 * kt + 1, mt)
    for sp in range(8):
        for mt in range(3):
            for kt in range(3):
                c = '0' if sp == 0 else V(sacc(kt, mt), 4)
                tl.add(f"v_mfma_f32_16x16x32_bf16 {V(sacc(kt, mt), 4)}, {A(kreg(sp, kt), 4)}, {V(acc(2*sp, mt), 4)}, {c}")
    if 1 in opt['stk']: tl.at(b13 + 47, *st())
    s3 = setup3(opt)
    p0 = pos + 1
    for q in range(0, len(s3), 3): tl.at(min(p0 + q // 3, 743), *s3[q:q+3])
    tl.at(70, Atomic(tagpub(opt)))
    tagld = f"buffer_load_dword v{vF}, off, s[{sDBG}:{sDBG+3}], 0 sc1"
    tl.at(640, tagld)
    f0 = acc(7, 0)
    sm = softmax_block(sacc, [f0, f0 + 1, f0 + 2], [f0 + 3, f0 + 4, f0 + 5], 154)
    sm_start = len(tl.main)
    nex = opt['smx']
    for q in range(0, nex, 4):
        idx = tl.add(sm[q]); tl.at(idx, *sm[q+1:min(q+4, nex)])
    for _ in range(opt['gap']): tl.add(None)
    s2s = len(tl.main)
    sm_end = s2s
    for q in range(nex, len(sm), opt['smw']):
        tl.at(sm_end, *sm[q:q+opt['smw']]); sm_end += 1
    sm_end = max(sm_end, s2s - opt['gap'])
    oline = []
    tagchk = [f"v_cmp_eq_u32 vcc, 0, v{vF}", "s_cmp_eq_u64 vcc, 0", "s_cbranch_scc0 Ltag", "Ltag_r:", f"v_readfirstlane_b32 s{sTAG}, v{vF}"]
    oline += spin("Ltag", tagld, f"v_cmp_eq_u32 vcc, 0, v{vF}")
    tl.at(sm_start - 1, *tagchk)
    kstart = {}
    oinit = set()
    def pu(us):
        for nt in range(7):
            for u in us:
                ub = vUB + nt * 12 + u * 4
                for mt in range(3):
                    c = A(oacc(nt, mt), 4) if (nt, mt) in oinit else '0'
                    oinit.add((nt, mt))
                    tl.add(f"v_mfma_f32_16x16x32_bf16 {A(oacc(nt, mt), 4)}, {V(ub, 4)}, {A(aP + mt*12 + u*4, 4)}, {c}")
    pustart = {}; kend = {}; vuse = {}
    for hn in range(4):
        for s in range(8):
            sig = hn * 8 + s
            if sig == opt['pu0']:
                pustart[1] = len(tl.main); pu([0, 1, 2]); puend0 = len(tl.main)
            kstart[sig] = len(tl.main)
            for nt in range(7):
                F = sig * 7 + nt
                bf = vFR + (F % NS) * 4
                for kt in range(3):
                    c = '0' if s == 0 else V(uacc(kt, nt), 4)
                    idx = tl.add(f"v_mfma_f32_16x16x32_bf16 {V(uacc(kt, nt), 4)}, @V@, {V(bf, 4)}, {c}"); vuse.setdefault((sig, kt), []).append(idx)
                    if kt < 2 and F + LA < 224: tl.at(idx, SA(wo_reads(F + LA)[kt]))
                    if opt['pw'] and kt == 2 and F % 2 == 1 and F + 2 < 224: tl.at(idx, PinW(f"tb{F+2}"))
                if s == 7:
                    ub = vUB + nt * 12 + (hn % 2) * 6
                    for kt in range(3):
                        u = uacc(kt, nt)
                        tl.at(idx + 4 + kt, f"v_cvt_pk_bf16_f32 v{ub+2*kt}, v{u}, v{u+1}", f"v_cvt_pk_bf16_f32 v{ub+2*kt+1}, v{u+2}, v{u+3}")
        kend[hn * 8 + 7] = len(tl.main)
        if hn != 1: pustart[hn] = len(tl.main)
        if hn == 3: pu([0, 1, 2])
    kstart[32] = len(tl.main)
    PK, TMP = 172, 216
    for nt in range(7):
        seq = []
        for mt in range(3):
            tile = nt * 3 + mt
            t4 = TMP + (tile % 6) * 4
            seq += [f"v_accvgpr_read_b32 v{t4+r}, a{oacc(nt, mt)+r}" for r in range(4)]
            seq += [f"v_cvt_pk_bf16_f32 v{PK+2*tile}, v{t4}, v{t4+1}", f"v_cvt_pk_bf16_f32 v{PK+2*tile+1}, v{t4+2}, v{t4+3}"]
            if tile % 2 == 1 or tile == 20:
                pr = tile // 2
                seq += [I(f"buffer_store_dwordx4 {V(PK+4*pr, 4)}, v{vST}, s[{sWS}:{sWS+3}], 0 offen offset:{pr*256} sc1", tag="part"),
                        I(f"ds_write_b128 v{vLW}, {V(PK+4*pr, 4)} offset:{pr*1024}", tag="ownw")]
        p0_ = pustart[3] + nt * 9 + 8 + 3
        for q in range(0, len(seq), 3): tl.at(p0_ + q // 3, *seq[q:q+3])
    for j in range(7):
        base = kstart[4 * j]
        if j == 0: pre = [WaitTag("sup0", "sup1"), "s_barrier"] + (st() if 2 in opt['stk'] else []) + flat([wo_reads(F) for F in range(LA)])
        else: pre = [WaitTag(f"sup{j+1}"), "s_barrier"]
        tl.at(base - 1, *pre)
    tl.at(sm_end + opt['pubd'], WaitTag("pst"), f"v_mov_b32 v{vF}, s{sTAG}", f"s_lshl_b32 s{sT0}, s{sHH}, 7", "s_mov_b64 exec, 1",
          f"buffer_store_dword v{vF}, v{vF1A}, s[{sWS}:{sWS+3}], s{sT0} offen sc1", "s_mov_b64 exec, -1")
    pace = {'m': opt['mp'], 'h': opt['hp']}; lag = {'m': opt['ml'], 'h': opt['hl']}
    cur = opt['start']; rdpos = []; rep = []
    f1ld = f"buffer_load_dword v{vF}, v{vF1A}, s[{sWS}:{sWS+3}], 0 offen sc1"
    f1cmp = f"v_cmp_ne_u32 vcc, s{sTAG}, v{vF}"
    posl = []
    INF = 10**9
    p0min = s2s + opt['p0at']
    pool = {}
    for r in range(8, 132, 4): pool[r] = (48 * (r // 12 + 1), INF)
    if opt['pools']:
        for r in range(132, 168, 4): pool[r] = (48 * (r // 12 + 1), p0min)
        for r in range(168, 252, 4): pool[r] = (672 + 9 * (((r - 168) // 4) // 3 + 1), pustart[1])
        for r in (0, 4): pool[r] = (744, INF)
        pool[252] = (744, INF)
    base_pol = {k: opt[k] for k in ('wq_pol', 'x_pol', 'v_pol', 'wo_pol')}
    for n_, (kind, idx, cls) in enumerate(opt['sched']):
        posl.append(f'{kind}{idx}@{cur}')
        for k_ in base_pol: opt[k_] = ' nt' if (cls == 'm' and k_[0] in opt.get('mnt', '') or (k_ == 'wo_pol' and cls == 'm' and 'o' in opt.get('mnt', ''))) and not (k_ == 'wo_pol' and 'o' not in opt.get('mnt', '')) else base_pol[k_]
        if kind == 'W':
            if idx >= RING: cur = max(cur, 48 * (idx - RING + 1))
            for it in g_w(idx, opt): tl.at(cur, *it); cur += pace[cls]
            rep.append(f"W{idx}:{48*max(idx-1,0) - 1 - (cur - pace[cls])}")
            assert 48*max(idx-1,0) - 1 - (cur - pace[cls]) > 0, rep[-1]
        elif kind == 'O':
            e = {0: 48 * 9, 1: 48 * 11, 2: 48 * 13}.get(idx)
            if e is None: e = kstart[4 * (idx - 3)]
            cur = max(cur, e)
            for it in g_wo(idx, opt): tl.at(cur, *it); cur += pace[cls]
            rep.append(f"O{idx}:{kstart[4*max(idx-1,0)] - 1 - (cur - pace[cls])}")
            assert kstart[4*max(idx-1,0)] - 1 - (cur - pace[cls]) > 0, rep[-1]
        elif kind == 'Y':
            pace['m'], pace['h'] = divmod(idx, 10)
        elif kind == 'Z':
            cur = max(cur, s2s + idx - 100)
        elif kind == 'F':
            cur = max(cur, idx + s2s)
            tl.at(cur, f1ld); cur += lag['h']
            tl.at(cur, f1cmp, "s_cmp_eq_u64 vcc, 0", "s_cbranch_scc0 Lf1", "Lf1_r:")
            oline += spin("Lf1", f1ld, f1cmp)
        elif kind == 'P':
            if idx >= 2: cur = max(cur, puend0)
            if idx == 0: assert cur >= p0min, (cur, p0min)
            for it in g_p(idx, opt): tl.at(cur, *it); cur += pace[cls]
            rep.append(f"P{idx}:{pustart[1 if idx < 2 else 3] - cur}")
        else:
            kind0, idx0 = kind, idx
            for q in range(4 if kind0 in 'LU' else 3):
                if kind0 == 'L': kind, idx, q = 'K', q, idx0
                if kind0 == 'U': kind, idx, q = 'V', (idx0 // 3) * 4 + q, idx0 % 3
                if kind == 'X':
                    iss, rd = sg.tile(vXD, sX, [f"s_add_u32 s{sSO2}, s{sXO+idx}, {q*14336}" if idx else f"s_mov_b32 s{sSO2}, {q*14336}"], opt['x_pol'], A(xreg(2*idx, q), 4), A(xreg(2*idx+1, q), 4))
                    dl = 96 * idx - 6; er = -9999
                elif kind == 'K':
                    iss, rd = sg.tile(vKD, sK, [f"s_mov_b32 s{sSO2}, {q*8192 + idx*128}"], opt['k_pol'], A(kreg(2*idx, q), 4), A(kreg(2*idx+1, q), 4))
                    dl = 672 + 18 * idx - 6; er = 48 if (idx == 3 and q >= 1) else -9999
                else:
                    hn, j = divmod(idx, 4)
                    so = ([f"s_mul_i32 s{sVH}, s{sHB+hn}, 24576", f"s_add_u32 s{sVH}, s{sVH}, s{sVU+j}"] if (q == 0 or kind0 == 'U') else []) + [f"s_add_u32 s{sSO2}, s{sVH}, {q*8192}"]
                    dl = kstart[2 * idx] - 6
                    er = -9999; dst = []
                    for e in range(2):
                        last_use = vuse[(2 * idx + e, q)][-1] + 1
                        cand = [r for r in pool if pool[r][1] >= last_use]
                        want = cur + lag[cls]
                        rdy = [r for r in cand if pool[r][0] <= want]
                        r = min(rdy, key=lambda r: (pool[r][1], pool[r][0])) if rdy else min(cand, key=lambda r: pool[r][0])
                        er = max(er, pool[r][0]); pool[r] = (last_use, pool[r][1]); dst.append(r)
                        for i_ in vuse[(2 * idx + e, q)]: tl.main[i_] = tl.main[i_].replace('@V@', A(r, 4))
                    iss, rd = sg.tile(vVD, sV, so, opt['v_pol'], A(dst[0], 4), A(dst[1], 4))
                n = len(rdpos)
                if n >= sg.nsl: cur = max(cur, rdpos[n - sg.nsl] + 4)
                cur = max(cur, er - lag[cls])
                tl.at(cur, *iss[0]); tl.at(cur, *iss[1]); last = cur; cur += 2 * pace[cls]
                rp = max(min(last + pace[cls] + lag[cls], dl), er, last)
                if rdpos: rp = max(rp, rdpos[-1])
                if rp == -1: rp = -2
                if rp > dl and dl >= 0: print("LATE", kind, idx, q, rp, dl)
                assert rp <= dl + 5 or dl < 0, (kind, idx, rp, dl)
                tl.at(rp, *rd); rdpos.append(rp)
                rep.append(f"{kind}{idx}.{q}:{rp - last}")
        if n_ == 2: tl.at(cur - 1, *setup1(opt))
        if n_ == opt['s2at']: assert cur - 1 < -2; tl.at(cur - 1, *setup2(opt))
    for sp_ in opt.get('stp', ()): tl.at(sp_, *st())
    if opt.get('verbose') == 2: print(' '.join(posl))
    if opt.get('verbose') == 1: print(" ".join(rep), "end", cur, "s2s", s2s, "total", len(tl.main))
    if opt['smooth']: print('overflow slots', smooth(tl))
    body = tl.flat()
    if opt.get('strip') == 1:
        txt = lambda x: x if isinstance(x, str) else getattr(x, 'txt', '')
        body = [x for x in body if not (txt(x).startswith('v_mfma') or txt(x).startswith('ds_read_b64_tr') or txt(x).startswith('v_cvt') or txt(x).startswith('v_exp') or txt(x).startswith('v_swap'))]
    if opt.get('fake'):
        import re as _re
        nb = []
        for x in body:
            t = x if isinstance(x, str) else getattr(x, 'txt', '')
            if t.startswith('buffer_load_dwordx4') and ' lds' in t:
                t2 = _re.sub(r'buffer_load_dwordx4 v\d+, (s\[\d+:\d+\]), s\d+', (r'buffer_load_dwordx4 v0, \1, 0' if opt['fake'] == 1 else r'buffer_load_dwordx4 v%d, \1, 0' % vXD), t).replace(' nt', '')
                y = I(t2); y.tag = x.tag; nb.append(y)
            else: nb.append(x)
        body = nb
    if opt.get('drop'):
        srds = {'x': sX, 'w': sWQ, 'k': sK, 'v': sV, 'o': sWO}
        pats = [f"s[{srds[c]}:{srds[c]+3}]" for c in opt['drop'] if c in srds]
        nb = []
        for x in body:
            t = x if isinstance(x, str) else getattr(x, 'txt', '')
            if t.startswith('buffer_load_dwordx4') and ' lds' in t and any(p_ in t for p_ in pats):
                y = I("s_nop 0"); y.tag = x.tag; nb.append(y)
            else: nb.append(x)
        body = nb
    if opt.get('strip') == 2:
        nb = []
        for x in body:
            t = x if isinstance(x, str) else getattr(x, 'txt', '')
            if t.startswith('buffer_load_dwordx4') and ' lds' in t:
                y = I("s_nop 0"); y.tag = x.tag; nb.append(y)
            else: nb.append(x)
        body = nb
    P += body + (st() if 3 in opt['stk'] else [])
    f2ld = f"buffer_load_dword v{vF}, v{vF2A}, s[{sWS}:{sWS+3}], 0 offen sc1"
    P += [f"v_mov_b32 v{vF}, s{sTAG}", f"s_lshl_b32 s{sT0}, s{sHQ}, 7", WaitTag("part"), "s_mov_b64 exec, 1",
          f"buffer_store_dword v{vF}, v{vF2A}, s[{sWS}:{sWS+3}], s{sT0} offen sc1", "s_mov_b64 exec, -1", "s_nop 1", f2ld]
    OWN, ACC, RX = 216, 228, 64
    P += [WaitTag("ownw")] + [f"ds_read_b128 {V(OWN + 4*i, 4)}, v{vLR} offset:{i*4096}" for i in range(3)]
    for k in range(3): P += [f"s_add_u32 s{sHB+k}, s{sHQ}, {k+1}", f"s_and_b32 s{sHB+k}, s{sHB+k}, 3", f"s_mul_i32 s{sHB+k}, s{sHB+k}, 3072"]
    P += [f"s_mov_b32 s{sVU}, 0x3f80", f"s_mov_b32 s{sVU+1}, 0x3f800000"]
    for r in range(12): P += [f"v_lshlrev_b32 v{ACC+2*r}, 16, v{OWN+r}", f"v_and_b32 v{ACC+2*r+1}, 0xffff0000, v{OWN+r}"]
    P += [f1cmp, "s_cmp_eq_u64 vcc, 0", "s_cbranch_scc0 Lf2", "Lf2_r:"]
    oline += spin("Lf2", f2ld, f1cmp, f2ld.replace(f"v{vF},", f"v{vF1A},"), f1cmp.replace(f"v{vF}", f"v{vF1A}")) if opt.get('pp', 1) else spin("Lf2", f2ld, f1cmp)
    P += (st() if 4 in opt['stk'] else [])
    for i in range(3):
        for k in range(3):
            P += [f"buffer_load_dwordx4 {V(RX + (i*3+k)*4, 4)}, v{vLD}, s[{sWS}:{sWS+3}], s{sHB+k} offen offset:{i*1024} sc1"]
    for i in range(3):
        for k in range(3):
            for r in range(4):
                x = RX + (i*3+k)*4 + r
                P += [f"v_dot2c_f32_bf16 v{ACC+8*i+2*r}, s{sVU}, v{x}", f"v_dot2c_f32_bf16 v{ACC+8*i+2*r+1}, s{sVU+1}, v{x}"]
        for r in range(4): P += [f"v_cvt_pk_bf16_f32 v{OWN+4*i+r}, v{ACC+8*i+2*r}, v{ACC+8*i+2*r+1}"]
        for e in range(2): P += [f"buffer_store_dwordx2 {V(OWN+4*i+2*e, 2)}, v{vOUT+2*i+e}, s[{sOUT}:{sOUT+3}], 0 offen{opt['out_pol']}"]
    P += (st() if 5 in opt['stk'] else []) + st.dump() + ["Lend:", "s_endpgm"]
    lines, stats = finalize(P, quiet=bool(opt.get('strip')))
    print(stats, len(lines))
    lines += oline + ['Lcodeend:']
    return lines

def build(opt):
    import re as _re
    scheds = opt['sched']
    nvar = len(scheds)
    lines = []
    if nvar > 1:
        sh, w = opt['vsel']
        lines += ["s_cmp_ge_u32 s2, 256", "s_cbranch_scc0 Lgo", "s_endpgm", "Lgo:", f"s_bfe_u32 s3, s2, {hex((w << 16) | sh)}"]
        for v in range(1, nvar):
            lines += [f"s_cmp_eq_u32 s3, {v}", f"s_cbranch_scc0 Lsk{v}", f"s_getpc_b64 s[4:5]", f"Lpc{v}:", f"s_add_u32 s4, s4, Lvar{v}-Lpc{v}", "s_addc_u32 s5, s5, 0", "s_setpc_b64 s[4:5]", f"Lsk{v}:"]
    for v in range(nvar):
        o = dict(opt); o['sched'] = scheds[v]
        if v and opt.get('drop1'): o['drop'] = opt['drop1']
        body = build_body(o)
        if nvar > 1:
            body = [_re.sub(r'\b(L(?:end|notag|tag|f1|f2|pcf|codeend)(?:_[lr])?)\b', lambda m: m.group(1) + f"_v{v}", l) for l in body]
            lines += [".p2align 6", f"Lvar{v}:"] if v else []
        lines += body
    hdr = open('concat_heads__mha_block_cached__gqa_block_cached__near_ridge.s.ref').read().split('; Override')[0]
    txt = hdr + "; @launch grid=(256,1,1) block=(256,1,1) lds=163840\n" + '.amdgcn_target "amdgcn-amd-amdhsa--gfx950"\n.text\n'
    txt += f".globl {NAME}\n.p2align 8\n.type {NAME},@function\n{NAME}:\n" + "\n".join("  " + l if not l.endswith(':') else l for l in lines) + "\n"
    txt += (f'.section .rodata,"a"\n.p2align 6\n.amdhsa_kernel {NAME}\n  .amdhsa_next_free_vgpr 512\n  .amdhsa_next_free_sgpr 102\n  .amdhsa_accum_offset 256\n'
            "  .amdhsa_group_segment_fixed_size 0\n  .amdhsa_kernarg_size 104\n  .amdhsa_user_sgpr_count 2\n  .amdhsa_user_sgpr_kernarg_segment_ptr 1\n"
            "  .amdhsa_system_sgpr_workgroup_id_x 1\n.end_amdhsa_kernel\n")
    return txt

def parse_sched(s):
    out = []
    for t in s.split():
        k, rest = t[0], t[1:]
        cls = 'h'
        if rest.endswith('m'): cls = 'm'; rest = rest[:-1]
        out.append((k, int(rest), cls))
    return out
SCHED = ("X0m W0m W1m X1m W2m W3m X2m W4m W5m W6 X3 W7 W8 X4 W9 W10 X5 W11 X6 W12 W13 K0m K1m K2m K3m V0m O0m O1m V4m V1 V2 V3 O2m "
         "O3m V5 V6 F60 V7 P0 P1 V8m O4 V9 O5 V10 V11 V12m O6 P2 P3 V13 O7 V14 V15")

if __name__ == "__main__":
    opt = dict(wq_pol='', x_pol='', k_pol=' nt', v_pol='', wo_pol='', rot=1, nlock=2, hrot=1, urot=1, st=Stamps(False), stk=(0, 1, 2, 4, 5), mp=7, hp=3, ml=80, hl=36, gap=80, b0=1, out_pol='', pw=1, smooth=1, smx=0, smw=2, pu0=23, p0at=370, pools=1,
               start=-160, verbose=1, s2at=3, pubd=30, sched=SCHED)
    for kv in sys.argv[2:]:
        k, v = kv.split('=')
        if k == 'st': opt['st'] = Stamps(True); opt['stk'] = tuple(int(x) for x in v.split(','))
        elif k == 'stp': opt['st'] = Stamps(True); opt['stk'] = (); opt['stp'] = tuple(int(x) for x in v.split(','))
        elif k in ('sched', 'mnt', 'drop', 'drop1'): opt[k] = v
        else: opt[k] = ((' ' + v) if v else '') if k.endswith('pol') else int(v)
    if opt.get('rt'): opt['st'].rt = opt['rt']
    opt['st'].dbg = opt.get('dbg', 0)
    opt['sched'] = [parse_sched(x) for x in opt['sched'].split('|')]
    opt['vsel'] = (opt.get('vsh', 3), 1 if len(opt['sched']) == 2 else 2)
    open(sys.argv[1], "w").write(build(opt))
```

```python
import struct, sys
from fw import *

def fbits(x): return struct.unpack('<I', struct.pack('<f', x))[0]
SZ_X, SZ_KV, SZ_W, SZ_OUT, SZ_WS = 1376256, 12582912, 3670016, 2752512, 268435456
SCALE = 1.4426950408889634 / 16.0
PART_OFF = 8 << 20
FLAG1_OFF = 40 << 20
FLAG2_OFF = 41 << 20
TAG_OFF = 42 << 20
NAME = "concat_heads__mha_block_cached__gqa_block_cached__near_ridge_kernel"

sX, sWQ, sK, sWS, sV, sWO, sOUT = 4, 8, 12, 16, 64, 68, 72
sHQ, sP, sHH, sBG, sH, sW, sB = 20, 21, 22, 23, 24, 25, 26
sM0B, sODD, sSC, sT0, sT1 = 27, 28, 30, 31, 32
sSTG, sWOM, sSO2 = 33, 34, 35
sWQO = 36
sXO = 50
sTAG, sCNT, sSO = 57, 62, 63
sDBG = 76
sHB = 80
sVU = 84
sWOR = 88
sVH, sWH = 90, 91
STAMP_REGS = [92, 94, 96, 98, 100]

vTR, vTRH, vW, vXD, vKD, vSR, vVD, vWO, vPA, vPB, vF = 2, 10, 18, 22, 24, 26, 28, 30, 37, 38, 39
vFR, NS = 40, 6
vACC = 64
vT = 64
def acc(t, mt): return vACC + (t * 3 + mt) * 4
def xreg(j, mt): return (j * 3 + mt) * 4
def kreg(s, kt):
    f = s * 3 + kt
    return 168 + 4 * f if f < 22 else 4 * (f - 22)
vTW, vTWH, vP2A, vP2B, vST, vF1A, vF2A, vLD, vOUT, vLW, vLR = 2, 3, 4, 5, 6, 7, 8, 9, 10, 16, 17
vOR, vOG = 18, 21
vU = 172
vUB = 64
def uacc(kt, nt): return vU + (nt * 3 + kt) * 4
def oacc(nt, mt): return 168 + (nt * 3 + mt) * 4
aV, NVF = 8, 31
aP = 132
def vfrag(sig, kt): return aV + ((sig * 3 + kt) % NVF) * 4
RING, SLAB = 7, 16384
SUP, R2 = 28672, 4
STG = 114688

flat = lambda gs: [x for g in gs for x in g]
def srd(d, lo, size):
    return [f"s_mov_b32 s{d}, s{lo}", f"s_mov_b32 s{d+1}, s{lo+1}", f"s_mov_b32 s{d+2}, {size}", f"s_mov_b32 s{d+3}, 0x20000"]

class Stamps:
    def __init__(self, on): self.on = on; self.n = 0; self.pend = []
    def __call__(self):
        if not self.on: return []
        r = STAMP_REGS[self.n % len(STAMP_REGS)]
        out = []
        if self.n >= len(STAMP_REGS): raise RuntimeError("too many stamps")
        self.n += 1
        if getattr(self, 'rt', 0) == 2 or (getattr(self, 'rt', 0) == 1 and self.n in (2, 4)): return [f"s_memrealtime s[{r}:{r+1}]"]
        return [f"s_memtime s[{r}:{r+1}]"]
    def dump(self):
        if not self.on: return []
        if getattr(self, 'dbg', 0):
            R = STAMP_REGS
            P = [Fence(), "s_mov_b64 exec, 1", "v_mov_b32 v3, 0", f"s_not_b32 s{sT0}, s{R[0]}", f"v_mov_b32 v2, s{sT0}", f"buffer_atomic_umax v2, v3, s[{sDBG}:{sDBG+3}], 0 offen offset:8",
                 f"v_mov_b32 v4, s{R[self.n-1]}", f"buffer_atomic_umax v4, v3, s[{sDBG}:{sDBG+3}], 0 offen offset:12"]
            for i in range(1, self.n):
                P += [f"s_sub_u32 s{sT0}, s{R[i]}, s{R[0]}", f"v_mov_b32 v{4+i}, s{sT0}", f"buffer_atomic_umax v{4+i}, v3, s[{sDBG}:{sDBG+3}], 0 offen offset:{12+4*i}",
                      f"buffer_atomic_add v{4+i}, v3, s[{sDBG}:{sDBG+3}], 0 offen offset:{32+4*i}"]
            return P
        P = [Fence(), f"s_lshl_b32 s{sT0}, s2, 2", f"s_add_u32 s{sT0}, s{sT0}, s{sW}", f"s_lshl_b32 s{sT0}, s{sT0}, 7", f"s_add_u32 s{sT0}, s{sT0}, {64 << 20}", "v_mov_b32 v3, 0"]
        for i in range(self.n):
            P += [f"v_mov_b32 v2, s{STAMP_REGS[i]}", f"buffer_store_dword v2, v3, s[{sWS}:{sWS+3}], s{sT0} offen offset:{4*i}"]
        return P

def prologue(opt):
    P = ["s_cmp_ge_u32 s2, 256", "s_cbranch_scc1 Lend",
         "s_load_dwordx16 s[36:51], s[0:1], 0", "s_load_dwordx8 s[52:59], s[0:1], 64", "s_load_dwordx2 s[60:61], s[0:1], 96"] + opt['st']() + [
         f"s_and_b32 s{sHQ}, s2, 3", f"s_bfe_u32 s{sP}, s2, 0x10002", f"s_bfe_u32 s{sHH}, s2, 0x20003", f"s_lshr_b32 s{sBG}, s2, 5",
         f"s_lshl_b32 s{sH}, s{sHQ}, 2", f"s_add_u32 s{sH}, s{sH}, s{sHH}",
         "v_lshrrev_b32 v1, 6, v0", f"v_readfirstlane_b32 s{sW}, v1", "v_and_b32 v1, 63, v0",
         f"s_lshl_b32 s{sB}, s{sBG}, 2", f"s_add_u32 s{sB}, s{sB}, s{sW}"]
    a, b, c, d = vT, vT + 1, vT + 2, vT + 3
    if opt.get('cpf'):
        P += ["s_getpc_b64 s[88:89]", "Lpcf:", f"s_lshr_b32 s{sT0}, s2, 3", f"s_lshl_b32 s{sT0}, s{sT0}, 2", f"s_add_u32 s{sT0}, s{sT0}, s{sW}", f"s_lshl_b32 s{sT0}, s{sT0}, 9",
              f"v_and_b32 v{a}, 3, v1", f"v_lshlrev_b32 v{a}, 7, v{a}", f"v_add_u32 v{a}, s{sT0}, v{a}", f"v_min_u32 v{a}, Lcodeend-Lpcf-4, v{a}", XI(f"global_load_dword v{vF}, v{a}, s[88:89]")]
    P += [f"s_mul_i32 s{sSTG}, s{sW}, 12288", f"s_add_u32 s{sSTG}, s{sSTG}, {STG}", f"s_mul_i32 s{sT0}, s{sB}, 43008"]
    P += stage_dma_voff(vXD, 896, sT0)
    P += [f"s_lshl_b32 s{sM0B}, s{sW}, 12", f"s_and_b32 s{sT0}, s{sW}, 1", f"s_lshl_b32 s{sT0}, s{sT0}, 3",
          f"s_lshl_b32 s{sT1}, s{sW}, 16", f"s_lshl_b32 s{sSO}, s{sH}, 9", f"s_add_u32 s{sT1}, s{sT1}, s{sSO}",
          f"v_lshrrev_b32 v{a}, 5, v1", f"v_and_b32 v{b}, 31, v1", f"v_or_b32 v{c}, s{sT0}, v{a}", f"v_xor_b32 v{b}, v{b}, v{c}",
          f"v_lshlrev_b32 v{b}, 4, v{b}", f"v_lshl_add_u32 v{b}, v{a}, 13, v{b}", f"v_add_u32 v{vW}, s{sT1}, v{b}",
          f"v_xor_b32 v{c}, 64, v{vW}", f"v_add_u32 v{vW+1}, {16384-1024}, v{c}", f"v_add_u32 v{vW+2}, {2*(16384-1024)}, v{vW}", f"v_add_u32 v{vW+3}, {3*(16384-1024)}, v{c}"]
    P += [f"v_and_b32 v{a}, 15, v1", f"v_lshrrev_b32 v{b}, 4, v1", f"v_lshrrev_b32 v{c}, 1, v{a}", f"v_xor_b32 v{c}, v{c}, v{b}", f"v_lshlrev_b32 v{c}, 4, v{c}",
          f"v_lshl_add_u32 v{c}, v{a}, 7, v{c}", f"v_add_u32 v{vSR}, s{sSTG}, v{c}", f"v_xor_b32 v{c}, 64, v{c}", f"v_add_u32 v{vSR+1}, s{sSTG}, v{c}"]
    P += [f"s_mov_b32 s{sX+2}, {SZ_X}", f"s_mov_b32 s{sX+3}, 0x20000", f"s_mov_b32 s{sWQ+2}, {SZ_W}", f"s_mov_b32 s{sWQ+3}, 0x20000",
          f"s_mov_b32 s{sT0}, 0", f"s_mov_b32 s{sT1}, {1 << 18}", f"s_cmp_eq_u32 s{sP}, 0",
          f"s_cselect_b64 s[{sX}:{sX+1}], s[36:37], s[46:47]", f"s_cselect_b64 s[{sWQ}:{sWQ+1}], s[42:43], s[52:53]"]
    return P

def setup1(opt):
    P = [f"s_cmp_eq_u32 s{sP}, 0"]
    for i, d_ in ((1, sK), (2, sV), (4, sWO)):
        P.append(f"s_cselect_b64 s[{d_}:{d_+1}], s[{36+2*i}:{37+2*i}], s[{46+2*i}:{47+2*i}]")
    for d_, sz in ((sK, SZ_KV), (sV, SZ_KV), (sWO, SZ_W)):
        P += [f"s_mov_b32 s{d_+2}, {sz}", f"s_mov_b32 s{d_+3}, 0x20000"]
    P += srd(sOUT, 56, SZ_OUT) + srd(sWS, 60, SZ_WS) + srd(sDBG, 58, 256)
    P += [f"s_mov_b32 s{sVH}, {TAG_OFF}", f"buffer_load_dword v{vF}, off, s[{sWS}:{sWS+3}], s{sVH} sc1"]
    P += [f"s_mov_b32 s{sXO+1}, 128", f"s_mov_b32 s{sWQO+2}, {2 << 18}", f"s_mov_b32 s{sWQO+3}, {3 << 18}"]
    return P

def stage_dma_voff(vd, rowstride, sbase):
    a, b, c = vT, vT + 1, vT + 2
    return [f"v_lshrrev_b32 v{a}, 3, v1", f"v_and_b32 v{b}, 7, v1", f"v_lshrrev_b32 v{c}, 4, v1", f"v_xor_b32 v{b}, v{b}, v{c}", f"v_lshlrev_b32 v{b}, 4, v{b}",
            f"v_mul_u32_u24 v{a}, {rowstride}, v{a}", f"v_add3_u32 v{vd}, v{a}, v{b}, s{sbase}", f"v_xor_b32 v{b}, 64, v{b}", f"v_add3_u32 v{vd+1}, v{a}, v{b}, s{sbase}",
            f"v_add_u32 v{vd+1}, {8*rowstride - 1024}, v{vd+1}"]

def setup2(opt):
    P = []
    a, b, c, d, e = vT, vT + 1, vT + 2, vT + 3, vT + 4
    nl = opt['nlock']; nr = 7 - nl
    if opt['rot'] == 3:
        P += [f"s_add_u32 s{sCNT}, s{sHH}, s{sBG}"]
        for _ in range(3): P += [f"s_cmp_ge_u32 s{sCNT}, 3", f"s_cselect_b32 s{sSO}, 3, 0", f"s_sub_u32 s{sCNT}, s{sCNT}, s{sSO}"]
        P += [f"s_lshl_b32 s{sCNT}, s{sCNT}, 1"]
    elif opt['rot'] == 2:
        P += [f"s_add_u32 s{sCNT}, s{sHH}, s{sBG}", f"s_and_b32 s{sCNT}, s{sCNT}, 1", f"s_mul_i32 s{sCNT}, s{sCNT}, 3"]
    elif opt['rot']:
        P += [f"s_lshl_b32 s{sCNT}, s{sHH}, 1", f"s_add_u32 s{sCNT}, s{sCNT}, s{sBG}"]
        for _ in range(3): P += [f"s_cmp_ge_u32 s{sCNT}, {nr}", f"s_cselect_b32 s{sSO}, {nr}, 0", f"s_sub_u32 s{sCNT}, s{sCNT}, s{sSO}"]
    else: P += [f"s_mov_b32 s{sCNT}, 0"]
    P += [f"s_add_u32 s{sCNT}, s{sCNT}, {nl}"]
    for j in range(2, nl):
        P += [f"s_mov_b32 s{sXO+j}, {j*128}", f"s_mov_b32 s{sWQO+2*j}, {j << 19}", f"s_mov_b32 s{sWQO+2*j+1}, {(j << 19) + (1 << 18)}"]
    for j in range(nl, 7):
        P += [f"s_lshl_b32 s{sXO+j}, s{sCNT}, 7", f"s_lshl_b32 s{sWQO+2*j}, s{sCNT}, 19", f"s_add_u32 s{sWQO+2*j+1}, s{sWQO+2*j}, {1 << 18}"]
        if j < 6: P += [f"s_add_u32 s{sCNT}, s{sCNT}, 1", f"s_cmp_eq_u32 s{sCNT}, 7", f"s_cselect_b32 s{sCNT}, {nl}, s{sCNT}"]
    P += [f"v_lshrrev_b32 v{a}, 4, v1", f"v_bfe_u32 v{b}, v1, 2, 2", f"v_and_b32 v{c}, 3, v1",
          f"v_lshl_add_u32 v{d}, v{a}, 3, v{b}", f"v_lshlrev_b32 v{d}, 9, v{d}",
          f"v_and_b32 v{a}, 1, v{a}", f"v_lshlrev_b32 v{a}, 3, v{a}",
          f"v_lshrrev_b32 v{e}, 1, v{b}", f"v_lshl_or_b32 v{a}, v{e}, 2, v{a}",
          f"v_and_b32 v{b}, 1, v{b}", f"v_or_b32 v{a}, v{a}, v{b}",
          f"v_xor_b32 v{a}, v{a}, v{c}", f"v_lshl_add_u32 v{d}, v{a}, 4, v{d}",
          f"v_and_b32 v{c}, 1, v{c}", f"v_lshl_add_u32 v{d}, v{c}, 3, v{d}"]
    for bb in range(4):
        for tau in range(2):
            P.append(f"v_xor_b32 v{vTR + bb*2 + tau}, {(bb << 6) | (tau << 3)}, v{d}")
            P.append(f"v_xor_b32 v{vTRH + bb*2 + tau}, {0x10000 | (bb << 6) | (tau << 3)}, v{d}")
    P += [f"s_lshl_b32 s{sSO}, s{sB}, 4", f"s_add_u32 s{sCNT}, s{sSO}, s{sH}", f"s_mul_i32 s{sSO2}, s{sCNT}, 24576"]
    P += stage_dma_voff(vKD, 512, sSO2)
    P += [f"s_mul_i32 s{sSO2}, s{sHH}, 24576", f"v_subrev_u32 v{vVD}, s{sSO2}, v{vKD}", f"v_subrev_u32 v{vVD+1}, s{sSO2}, v{vKD+1}"]
    P += [f"s_lshl_b32 s{sSO}, s{sP}, 9", f"s_add_u32 s{sSO}, s{sSO}, s{sCNT}", f"s_mul_i32 s{sSO}, s{sSO}, 4608",
          f"v_lshlrev_b32 v{a}, 4, v1", f"v_add_u32 v{vPA}, s{sSO}, v{a}", f"v_lshlrev_b32 v{a}, 3, v1", f"s_add_u32 s{sSO}, s{sSO}, 1024", f"v_add_u32 v{vPB}, s{sSO}, v{a}"]
    P += [f"s_mov_b32 s{sODD}, 0xffff0000", f"s_mov_b32 s{sODD+1}, 0xffff0000", f"s_mov_b32 s{sSC}, {fbits(SCALE)}"]
    for hn in range(4):
        src = sBG if opt['hrot'] else None
        if src is not None: P += [f"s_add_u32 s{sHB+hn}, s{src}, {hn}", f"s_and_b32 s{sHB+hn}, s{sHB+hn}, 3"]
        else: P += [f"s_mov_b32 s{sHB+hn}, {hn}"]
        if opt['urot']: P += [f"s_add_u32 s{sVU+hn}, s{sHH}, {hn}", f"s_and_b32 s{sVU+hn}, s{sVU+hn}, 3", f"s_lshl_b32 s{sVU+hn}, s{sVU+hn}, 7"]
        else: P += [f"s_mov_b32 s{sVU+hn}, {hn*128}"]
    for hf2 in range(2):
        P += [f"s_lshr_b32 s{sSO}, s{sW}, 1", f"s_add_u32 s{sSO}, s{sSO}, {2*hf2}"]
        if opt['urot']: P += [f"s_add_u32 s{sSO}, s{sSO}, s{sHH}"]
        P += [f"s_and_b32 s{sSO}, s{sSO}, 3", f"s_lshl_b32 s{sSO}, s{sSO}, 1", f"s_and_b32 s{sSO2}, s{sW}, 1", f"s_add_u32 s{sSO}, s{sSO}, s{sSO2}", f"s_mul_i32 s{sWOR+hf2}, s{sSO}, {32*896}"]
    P += [f"s_mul_i32 s{sWOM}, s{sW}, 7168"]
    P += [f"s_mul_i32 s{sSO}, s{sHH}, 224", f"s_mul_i32 s{sSO2}, s{sHQ}, {1024*896}", f"s_add_u32 s{sSO}, s{sSO}, s{sSO2}", f"s_mov_b32 s{sSO2}, {(1 << 32) // 14 + 1}"]
    for i in range(7):
        P += [f"v_add_u32 v{a}, {64*i}, v1", f"v_mul_hi_u32 v{b}, v{a}, s{sSO2}", f"v_mul_u32_u24 v{c}, 14, v{b}", f"v_sub_u32 v{c}, v{a}, v{c}",
              f"v_and_b32 v{a}, 19, v{b}", f"v_bfe_u32 v{d}, v{b}, 2, 1", f"v_lshl_or_b32 v{a}, v{d}, 3, v{a}", f"v_bfe_u32 v{d}, v{b}, 3, 1", f"v_lshl_or_b32 v{a}, v{d}, 2, v{a}",
              f"v_mul_u32_u24 v{a}, 896, v{a}", f"v_lshl_add_u32 v{a}, v{c}, 4, v{a}", f"v_add_u32 v{vWO+i}, s{sSO}, v{a}"]
        if i & 3: P += [f"v_subrev_u32 v{vWO+i}, {1024*(i & 3)}, v{vWO+i}"]
    return P

def tagpub(opt):
    return [f"v_add_u32 v{vF}, 1, v{vF}", f"v_or_b32 v{vF}, 0x80000000, v{vF}",
          f"s_or_b32 s{sSO}, s2, s{sW}", f"s_cmp_lg_u32 s{sSO}, 0", "s_cbranch_scc1 Lnotag",
          f"s_mov_b32 s{sSO}, {TAG_OFF}", "s_mov_b64 exec, 1",
          XI(f"buffer_store_dword v{vF}, off, s[{sWS}:{sWS+3}], s{sSO} sc1"), XI(f"buffer_store_dword v{vF}, off, s[{sDBG}:{sDBG+3}], 0 sc1"),
          "s_mov_b64 exec, -1", "s_nop 1", "Lnotag:"]

def XI(txt):
    i = I(txt); i.kind = 'xvm'; return i

def setup3(opt):
    a, b, c, d = vFR, vFR + 1, vFR + 2, vFR + 3
    P = [f"v_bfe_u32 v{a}, v1, 2, 3", f"v_lshrrev_b32 v{b}, 5, v1", f"v_lshl_add_u32 v{a}, v{b}, 4, v{a}", f"v_mul_u32_u24 v{a}, 224, v{a}",
         f"v_and_b32 v{b}, 3, v1", f"v_lshl_add_u32 v{vTW}, v{b}, 3, v{a}", f"v_add_u32 v{vTWH}, {2*SUP}, v{vTW}",
         f"s_mul_i32 s{sT0}, s{sHH}, 4608", f"v_subrev_u32 v{vP2A}, s{sT0}, v{vPA}", f"v_subrev_u32 v{vP2B}, s{sT0}, v{vPB}"]
    P += [f"s_lshl_b32 s{sT0}, s{sP}, 9", f"s_lshl_b32 s{sT1}, s{sB}, 4", f"s_add_u32 s{sT0}, s{sT0}, s{sT1}", f"s_lshl_b32 s{sT1}, s{sHQ}, 2", f"s_add_u32 s{sT0}, s{sT0}, s{sT1}",
          f"s_lshl_b32 s{sT0}, s{sT0}, 7", f"s_add_u32 s{sT0}, s{sT0}, {FLAG1_OFF}", f"v_lshlrev_b32 v{b}, 7, v{b}", f"v_add_u32 v{vF1A}, s{sT0}, v{b}"]
    P += [f"s_lshl_b32 s{sT0}, s{sP}, 3", f"s_add_u32 s{sT0}, s{sT0}, s{sBG}", f"s_lshl_b32 s{sT0}, s{sT0}, 2", f"s_add_u32 s{sT0}, s{sT0}, s{sHH}",
          f"s_lshl_b32 s{sT0}, s{sT0}, 2", f"s_add_u32 s{sT0}, s{sT0}, s{sW}",
          f"s_lshl_b32 s{sT1}, s{sT0}, 9", f"s_add_u32 s{sT1}, s{sT1}, {FLAG2_OFF}", f"v_add_u32 v{vF2A}, s{sT1}, v{b}"]
    g_, jj = vFR + 5, vFR + 6
    P += [f"s_mul_i32 s{sT0}, s{sT0}, 49152", f"s_add_u32 s{sT0}, s{sT0}, {PART_OFF}",
          f"s_mul_i32 s{sT1}, s{sHQ}, 3072", f"s_add_u32 s{sT1}, s{sT1}, s{sT0}",
          f"v_lshrrev_b32 v{a}, 4, v1", f"v_bfe_u32 v{g_}, v1, 2, 2", f"v_and_b32 v{jj}, 3, v1", f"v_cmp_eq_u32 vcc, s{sHQ}, v{g_}", f"v_mul_u32_u24 v{d}, 12288, v{g_}",
          f"v_lshl_add_u32 v{c}, v{a}, 2, v{jj}", f"v_lshl_add_u32 v{d}, v{c}, 4, v{d}", f"v_add_u32 v{vST}, s{sT1}, v{d}",
          f"v_mov_b32 v{b}, 0x7ff00000", f"v_cndmask_b32 v{vST}, v{vST}, v{b}, vcc",
          f"s_mul_i32 s{sT1}, s{sHQ}, 12288", f"s_add_u32 s{sT1}, s{sT1}, s{sT0}", f"v_lshlrev_b32 v{d}, 4, v1", f"v_add_u32 v{vLD}, s{sT1}, v{d}",
          f"v_add_u32 v{vLW}, s{sSTG}, v{d}",
          f"s_lshl_b32 s{sT1}, s{sHQ}, 6", f"s_add_u32 s{sT1}, s{sT1}, s{sSTG}", f"v_lshlrev_b32 v{d}, 10, v{a}", f"v_lshl_add_u32 v{d}, v{g_}, 8, v{d}", f"v_lshl_add_u32 v{d}, v{jj}, 4, v{d}", f"v_add_u32 v{vLR}, s{sT1}, v{d}"]
    P += [f"s_mul_i32 s{sT0}, s{sB}, {48*1792}", f"s_mul_i32 s{sT1}, s{sP}, 896", f"s_add_u32 s{sT0}, s{sT0}, s{sT1}", f"s_mul_i32 s{sT1}, s{sHH}, 224", f"s_add_u32 s{sT0}, s{sT0}, s{sT1}",
          f"s_mul_i32 s{sT1}, s{sHQ}, {4*1792}", f"s_add_u32 s{sT0}, s{sT0}, s{sT1}", f"v_mul_u32_u24 v{c}, 1792, v{jj}", f"v_lshl_add_u32 v{c}, v{g_}, 3, v{c}", f"v_add_u32 v{c}, s{sT0}, v{c}"]
    e_ = vFR + 4
    if opt['otr']:
        P += [f"v_mul_u32_u24 v{c}, 240, v{jj}", f"v_lshl_add_u32 v{c}, v{g_}, 3, v{c}", f"v_add_u32 v{c}, s{sSTG}, v{c}"]
        for i in range(6):
            P += [f"v_lshl_add_u32 v{e_}, v{a}, 1, {8*(i//2) + (i & 1)}", f"v_mul_u32_u24 v{b}, 43, v{e_}", f"v_lshrrev_b32 v{b}, 7, v{b}", f"v_mul_u32_u24 v{d}, 3, v{b}", f"v_sub_u32 v{d}, v{e_}, v{d}",
                  f"v_mul_u32_u24 v{d}, 960, v{d}", f"v_lshl_add_u32 v{d}, v{b}, 5, v{d}", f"v_add_u32 v{vOUT+i}, v{c}, v{d}"]
            if i >= 4: P += [f"v_cmp_lt_u32 vcc, 20, v{e_}", f"v_add_u32 v{b}, 4096, v{vOUT+i}", f"v_cndmask_b32 v{vOUT+i}, v{vOUT+i}, v{b}, vcc"]
        P += [f"s_mov_b32 s{sT1}, {(1 << 32) // 14 + 1}"]
        for k in range(3):
            P += [f"v_add_u32 v{e_}, {64*k}, v1", f"v_mul_hi_u32 v{b}, v{e_}, s{sT1}", f"v_mul_u32_u24 v{c}, 14, v{b}", f"v_sub_u32 v{c}, v{e_}, v{c}",
                  f"v_mul_u32_u24 v{d}, 240, v{b}", f"v_lshl_add_u32 v{d}, v{c}, 4, v{d}", f"v_add_u32 v{vOR+k}, s{sSTG}, v{d}",
                  f"v_lshrrev_b32 v{d}, 2, v{b}", f"v_mul_u32_u24 v{d}, {12*1792}, v{d}", f"v_mul_u32_u24 v{b}, 1792, v{b}", f"v_add3_u32 v{d}, v{d}, v{b}, s{sT0}", f"v_lshl_add_u32 v{vOG+k}, v{c}, 4, v{d}"]
            if k == 2: P += [f"v_cmp_lt_u32 vcc, 39, v1", f"v_mov_b32 v{b}, 0x7ff00000", f"v_cndmask_b32 v{vOG+k}, v{vOG+k}, v{b}, vcc"]
        return P
    for i in range(6):
        P += [f"v_lshl_add_u32 v{e_}, v{a}, 1, {8*(i//2) + (i & 1)}", f"v_mul_u32_u24 v{b}, 43, v{e_}", f"v_lshrrev_b32 v{b}, 7, v{b}", f"v_mul_u32_u24 v{d}, 3, v{b}", f"v_sub_u32 v{d}, v{e_}, v{d}",
              f"v_mul_u32_u24 v{d}, {16*1792}, v{d}", f"v_lshl_add_u32 v{d}, v{b}, 5, v{d}", f"v_add_u32 v{vOUT+i}, v{c}, v{d}"]
        if i >= 4: P += [f"v_cmp_lt_u32 vcc, 20, v{e_}", f"v_mov_b32 v{b}, 0x7ff00000", f"v_cndmask_b32 v{vOUT+i}, v{vOUT+i}, v{b}, vcc"]
    return P

def SA(i):
    i.wtags = 'A'; return i
class PinW(WaitTag):
    pinned = True

class Stager:
    def __init__(self, nsl): self.nsl = nsl; self.n = 0
    def tile(self, vdma, srd_, so_ins, pol, dst0, dst1):
        n = self.n; self.n += 1
        slot = n % self.nsl
        pre = [WaitTag(f"sr{n - self.nsl}")] if n >= self.nsl else []
        iss = [pre + [f"s_add_u32 m0, s{sSTG}, {slot*2048}"] + so_ins + [I(f"buffer_load_dwordx4 v{vdma}, s[{srd_}:{srd_+3}], s{sSO2} offen{pol} lds", tag=f"sd{n}")],
               [I(f"buffer_load_dwordx4 v{vdma+1}, s[{srd_}:{srd_+3}], s{sSO2} offen offset:1024{pol} lds", tag=f"sd{n}")]]
        rd = [WaitTag(f"sd{n}"), I(f"ds_read_b128 {dst0}, v{vSR} offset:{slot*2048}", tag=f"sr{n}"), I(f"ds_read_b128 {dst1}, v{vSR+1} offset:{slot*2048}", tag=f"sr{n}")]
        return iss, rd

def g_w(s, opt):
    slot = (s % RING) * SLAB
    return [([f"s_add_u32 m0, s{sM0B}, {slot}", "s_nop 0"] if i == 0 else []) +
            [I(f"buffer_load_dwordx4 v{vW+i}, s[{sWQ}:{sWQ+3}], s{(sT0, sT1)[s] if s < 2 else sWQO+s} offen offset:{i*1024}{opt['wq_pol']} lds", tag=f"slab{s}")] for i in range(4)]
def g_wo(j, opt):
    hn, half = divmod(j, 2)
    out = []
    for i in range(7):
        pre = []
        if i in (0, 4): pre += [f"s_add_u32 m0, s{sWOM}, {(j % R2) * SUP + i * 1024}"]
        if i == 0: pre += [f"s_mul_i32 s{sWH}, s{sHB+hn}, {256*896}", f"s_add_u32 s{sWH}, s{sWH}, s{sWOR+half}"]
        if i == 4: pre += ["s_nop 0"]
        out.append(pre + [I(f"buffer_load_dwordx4 v{vWO+i}, s[{sWO}:{sWO+3}], s{sWH} offen offset:{(i & 3)*1024}{opt['wo_pol']} lds", tag=f"sup{j}")])
    return out
def g_p(hn, opt):
    out = []
    o = (hn & 1) * 6
    for mt in range(3):
        pre = [f"s_mul_i32 s{sSO}, s{sHB+hn}, 4608"] if mt == 0 else []
        out.append(pre + [f"buffer_load_dwordx4 {A(aP + mt*12 + o, 4)}, v{vP2A}, s[{sWS}:{sWS+3}], s{sSO} offen offset:{mt*1536} sc1"])
        out.append([f"buffer_load_dwordx2 {A(aP + mt*12 + o + 4, 2)}, v{vP2B}, s[{sWS}:{sWS+3}], s{sSO} offen offset:{mt*1536} sc1"])
    return out

def tr_reads(T):
    ks, t = divmod(T, 16)
    sp, tau = divmod(t, 2)
    ap, bp = divmod(sp, 4)
    slot = ks % RING
    base = (vTR if slot < 4 else vTRH) + bp * 2 + tau
    off = (slot % 4) * SLAB + ap * 256
    d = vFR + (T % NS) * 4
    return [I(f"ds_read_b64_tr_b16 {V(d, 2)}, v{base} offset:{off}", tag=f"ta{T}"), I(f"ds_read_b64_tr_b16 {V(d+2, 2)}, v{base} offset:{off + 2048}", tag=f"ta{T}")]
def wo_reads(F):
    sig, nt = divmod(F, 7)
    j, sl = divmod(sig, 4)
    ss = j % R2
    base = vTW if ss < 2 else vTWH
    off = (ss % 2) * SUP + sl * 7168 + nt * 32
    d = vFR + (F % NS) * 4
    return [I(f"ds_read_b64_tr_b16 {V(d, 2)}, v{base} offset:{off}", tag=f"tb{F}"), I(f"ds_read_b64_tr_b16 {V(d+2, 2)}, v{base} offset:{off + 1792}", tag=f"tb{F}")]

def softmax_block(sacc, m, t, pk):
    sv = lambda mt: [sacc(kt, mt) + r for kt in range(3) for r in range(4)]
    Q = []
    for mt in range(3):
        x = sv(mt)
        Q.append(f"v_max3_f32 v{m[mt]}, v{x[0]}, v{x[1]}, v{x[2]}")
    for j in range(4):
        for mt in range(3):
            x = sv(mt); Q.append(f"v_max3_f32 v{m[mt]}, v{m[mt]}, v{x[3+2*j]}, v{x[4+2*j]}")
    for mt in range(3): Q.append(f"v_max_f32 v{m[mt]}, v{m[mt]}, v{sv(mt)[11]}")
    def xred(op):
        o = []
        for pl in ('v_permlane32_swap_b32', 'v_permlane16_swap_b32'):
            o += [f"v_mov_b32 v{t[mt]}, v{m[mt]}" for mt in range(3)]
            o += [f"{pl} v{m[mt]}, v{t[mt]}" for mt in range(3)]
            o += [f"{op} v{m[mt]}, v{m[mt]}, v{t[mt]}" for mt in range(3)]
        return o
    Q += xred('v_max_f32')
    Q += [f"v_mul_f32 v{m[mt]}, s{sSC}, v{m[mt]}" for mt in range(3)]
    for j in range(12):
        Q += [f"v_fma_f32 v{sv(mt)[j]}, v{sv(mt)[j]}, s{sSC}, -v{m[mt]}" for mt in range(3)]
        Q += [f"v_exp_f32 v{sv(mt)[j]}, v{sv(mt)[j]}" for mt in range(3)]
    Q += [f"v_add_f32 v{m[mt]}, v{sv(mt)[0]}, v{sv(mt)[1]}" for mt in range(3)]
    for j in range(2, 12):
        Q += [f"v_add_f32 v{m[mt]}, v{m[mt]}, v{sv(mt)[j]}" for mt in range(3)]
    Q += xred('v_add_f32')
    Q += [f"v_rcp_f32 v{m[mt]}, v{m[mt]}" for mt in range(3)]
    for mt in range(3):
        x = sv(mt)
        for j in range(12): Q.append(f"v_mul_f32 v{x[j]}, v{x[j]}, v{m[mt]}")
        for j in range(6): Q.append(f"v_cvt_pk_bf16_f32 v{pk + mt*6 + j}, v{x[2*j]}, v{x[2*j+1]}")
        Q.append(I(f"buffer_store_dwordx4 {V(pk + mt*6, 4)}, v{vPA}, s[{sWS}:{sWS+3}], 0 offen offset:{mt*1536} sc1", tag="pst"))
        Q.append(I(f"buffer_store_dwordx2 {V(pk + mt*6 + 4, 2)}, v{vPB}, s[{sWS}:{sWS+3}], 0 offen offset:{mt*1536} sc1", tag="pst"))
    return Q

def spin(label, load, cmp_, load2=None, cmp2=None):
    if load2 is not None:
        chk = lambda c: [c, "s_nop 4", "s_cmp_eq_u64 vcc, 0", f"s_cbranch_scc1 {label}_r"]
        return [f"{label}:", f"s_mov_b32 s{sCNT}, 0x40000", "s_waitcnt vmcnt(0)", load, "s_sleep 4", f"{label}_l:", load2, "s_waitcnt vmcnt(1)"] + chk(cmp_) + [load, "s_waitcnt vmcnt(1)"] + chk(cmp2) + [
                f"s_sub_u32 s{sCNT}, s{sCNT}, 1", f"s_cmp_lg_u32 s{sCNT}, 0", f"s_cbranch_scc1 {label}_l", f"s_branch {label}_r"]
    return [f"{label}:", f"s_mov_b32 s{sCNT}, 0x40000", f"{label}_l:", "s_sleep 2", load, "s_waitcnt vmcnt(0)", cmp_, "s_nop 4", "s_cmp_eq_u64 vcc, 0", f"s_cbranch_scc1 {label}_r",
            f"s_sub_u32 s{sCNT}, s{sCNT}, 1", f"s_cmp_lg_u32 s{sCNT}, 0", f"s_cbranch_scc1 {label}_l", f"s_branch {label}_r"]

def build_body(opt):
    st = opt['st']; st.n = 0
    sg = Stager(6)
    P = prologue(opt)
    if opt.get('fake') == 2: P += [f'v_lshlrev_b32 v{vXD}, 4, v0']
    tl = Timeline()
    LA = opt['LA']
    for ks in range(14):
        for t in range(16):
            T = ks * 16 + t
            af = vFR + (T % NS) * 4
            for mt in range(3):
                c = '0' if ks == 0 else V(acc(t, mt), 4)
                idx = tl.add(f"v_mfma_f32_16x16x32_bf16 {V(acc(t, mt), 4)}, {V(af, 4)}, {A(xreg(ks, mt), 4)}, {c}")
                if mt < 2 and T + LA < 224: tl.at(idx, SA(tr_reads(T + LA)[mt]))
                if opt['pw'] and mt == 2 and T % 2 == 1 and T + 2 < 224: tl.at(idx, PinW(f"ta{T+2}"))
        pre = ([WaitTag(f"slab{ks+1}")] if ks < 13 else []) + ["s_barrier"]
        if ks == 0:
            if opt['b0']:
                tl.at(26, *pre); pre = [WaitTag("slab0"), "s_barrier"]
            pre += (st() if 0 in opt['stk'] else []) + flat([tr_reads(T) for T in range(LA)])
        tl.at(ks * 48 - 1, *pre)
    b13 = 13 * 48
    cv = []
    for sp in range(8):
        for mt in range(3):
            t0, t1 = acc(2 * sp, mt), acc(2 * sp + 1, mt)
            cv += [f"v_cvt_pk_bf16_f32 v{t0}, v{t0}, v{t0+1}", f"v_cvt_pk_bf16_f32 v{t0+1}, v{t0+2}, v{t0+3}",
                   f"v_cvt_pk_bf16_f32 v{t0+2}, v{t1}, v{t1+1}", f"v_cvt_pk_bf16_f32 v{t0+3}, v{t1+2}, v{t1+3}"]
        sw = [f"s_mov_b64 exec, s[{sODD}:{sODD+1}]"]
        for mt in range(3):
            t0 = acc(2 * sp, mt)
            sw += [f"v_swap_b32 v{t0}, v{t0+2}", f"v_swap_b32 v{t0+1}, v{t0+3}"]
        sw.append("s_mov_b64 exec, -1")
        cv.append(sw)
    pos = b13 + 10; cnt = 0
    for c in cv:
        if isinstance(c, list): tl.at(pos, *c); pos += 3; cnt = 0
        else:
            tl.at(pos, c); cnt += 1
            if cnt == 2: cnt = 0; pos += 1
    sacc = lambda kt, mt: acc(2 * kt + 1, mt)
    for sp in range(8):
        for mt in range(3):
            for kt in range(3):
                c = '0' if sp == 0 else V(sacc(kt, mt), 4)
                tl.add(f"v_mfma_f32_16x16x32_bf16 {V(sacc(kt, mt), 4)}, {A(kreg(sp, kt), 4)}, {V(acc(2*sp, mt), 4)}, {c}")
    if 1 in opt['stk']: tl.at(b13 + 47, *st())
    s3 = setup3(opt)
    p0 = pos + 1
    for q in range(0, len(s3), 3): tl.at(min(p0 + q // 3, 743), *s3[q:q+3])
    tl.at(70, Atomic(tagpub(opt)))
    tagld = f"buffer_load_dword v{vF}, off, s[{sDBG}:{sDBG+3}], 0 sc1"
    tl.at(640, tagld)
    f0 = acc(7, 0)
    sm = softmax_block(sacc, [f0, f0 + 1, f0 + 2], [f0 + 3, f0 + 4, f0 + 5], 154)
    sm_start = len(tl.main)
    nex = opt['smx']
    for q in range(0, nex, 4):
        idx = tl.add(sm[q]); tl.at(idx, *sm[q+1:min(q+4, nex)])
    for _ in range(opt['gap']): tl.add(None)
    s2s = len(tl.main)
    sm_end = s2s
    for q in range(nex, len(sm), opt['smw']):
        tl.at(sm_end, *sm[q:q+opt['smw']]); sm_end += 1
    sm_end = max(sm_end, s2s - opt['gap'])
    oline = []
    tagchk = [f"v_cmp_eq_u32 vcc, 0, v{vF}", "s_cmp_eq_u64 vcc, 0", "s_cbranch_scc0 Ltag", "Ltag_r:", f"v_readfirstlane_b32 s{sTAG}, v{vF}"]
    oline += spin("Ltag", tagld, f"v_cmp_eq_u32 vcc, 0, v{vF}")
    tl.at(sm_start - 1, *tagchk)
    kstart = {}
    oinit = set()
    def pu(us):
        for nt in range(7):
            for u in us:
                ub = vUB + nt * 12 + u * 4
                for mt in range(3):
                    c = A(oacc(nt, mt), 4) if (nt, mt) in oinit else '0'
                    oinit.add((nt, mt))
                    tl.add(f"v_mfma_f32_16x16x32_bf16 {A(oacc(nt, mt), 4)}, {V(ub, 4)}, {A(aP + mt*12 + u*4, 4)}, {c}")
    pustart = {}; kend = {}; vuse = {}
    for hn in range(4):
        for s in range(8):
            sig = hn * 8 + s
            if sig == opt['pu0']:
                pustart[1] = len(tl.main); pu([0, 1, 2]); puend0 = len(tl.main)
            kstart[sig] = len(tl.main)
            for nt in range(7):
                F = sig * 7 + nt
                bf = vFR + (F % NS) * 4
                for kt in range(3):
                    c = '0' if s == 0 else V(uacc(kt, nt), 4)
                    idx = tl.add(f"v_mfma_f32_16x16x32_bf16 {V(uacc(kt, nt), 4)}, @V@, {V(bf, 4)}, {c}"); vuse.setdefault((sig, kt), []).append(idx)
                    if kt < 2 and F + LA < 224: tl.at(idx, SA(wo_reads(F + LA)[kt]))
                    if opt['pw'] and kt == 2 and F % 2 == 1 and F + 2 < 224: tl.at(idx, PinW(f"tb{F+2}"))
                if s == 7:
                    ub = vUB + nt * 12 + (hn % 2) * 6
                    for kt in range(3):
                        u = uacc(kt, nt)
                        tl.at(idx + 4 + kt, f"v_cvt_pk_bf16_f32 v{ub+2*kt}, v{u}, v{u+1}", f"v_cvt_pk_bf16_f32 v{ub+2*kt+1}, v{u+2}, v{u+3}")
        kend[hn * 8 + 7] = len(tl.main)
        if hn != 1: pustart[hn] = len(tl.main)
        if hn == 3: pu([0, 1, 2])
    kstart[32] = len(tl.main)
    PK, TMP = 172, 216
    for nt in range(7):
        seq = []
        for mt in range(3):
            tile = nt * 3 + mt
            t4 = TMP + (tile % 6) * 4
            seq += [f"v_accvgpr_read_b32 v{t4+r}, a{oacc(nt, mt)+r}" for r in range(4)]
            seq += [f"v_cvt_pk_bf16_f32 v{PK+2*tile}, v{t4}, v{t4+1}", f"v_cvt_pk_bf16_f32 v{PK+2*tile+1}, v{t4+2}, v{t4+3}"]
            if tile % 2 == 1 or tile == 20:
                pr = tile // 2
                seq += [I(f"buffer_store_dwordx4 {V(PK+4*pr, 4)}, v{vST}, s[{sWS}:{sWS+3}], 0 offen offset:{pr*256} sc1", tag="part"),
                        I(f"ds_write_b128 v{vLW}, {V(PK+4*pr, 4)} offset:{pr*1024}", tag="ownw")]
        p0_ = pustart[3] + nt * 9 + 8 + 3
        for q in range(0, len(seq), 3): tl.at(p0_ + q // 3, *seq[q:q+3])
    for j in range(7):
        base = kstart[4 * j]
        if j == 0: pre = [WaitTag("sup0", "sup1"), "s_barrier"] + (st() if 2 in opt['stk'] else []) + flat([wo_reads(F) for F in range(LA)])
        else: pre = [WaitTag(f"sup{j+1}"), "s_barrier"]
        tl.at(base - 1, *pre)
    tl.at(sm_end + opt['pubd'], WaitTag("pst"), f"v_mov_b32 v{vF}, s{sTAG}", f"s_lshl_b32 s{sT0}, s{sHH}, 7", "s_mov_b64 exec, 1",
          f"buffer_store_dword v{vF}, v{vF1A}, s[{sWS}:{sWS+3}], s{sT0} offen sc1", "s_mov_b64 exec, -1")
    pace = {'m': opt['mp'], 'h': opt['hp']}; lag = {'m': opt['ml'], 'h': opt['hl']}
    cur = opt['start']; rdpos = []; rep = []
    f1ld = f"buffer_load_dword v{vF}, v{vF1A}, s[{sWS}:{sWS+3}], 0 offen sc1"
    f1cmp = f"v_cmp_ne_u32 vcc, s{sTAG}, v{vF}"
    posl = []
    INF = 10**9
    p0min = s2s + opt['p0at']
    pool = {}
    for r in range(8, 132, 4): pool[r] = (48 * (r // 12 + 1), INF)
    if opt['pools']:
        for r in range(132, 168, 4): pool[r] = (48 * (r // 12 + 1), p0min)
        for r in range(168, 252, 4): pool[r] = (672 + 9 * (((r - 168) // 4) // 3 + 1), pustart[1])
        for r in (0, 4): pool[r] = (744, INF)
        pool[252] = (744, INF)
    base_pol = {k: opt[k] for k in ('wq_pol', 'x_pol', 'v_pol', 'wo_pol')}
    for n_, (kind, idx, cls) in enumerate(opt['sched']):
        posl.append(f'{kind}{idx}@{cur}')
        for k_ in base_pol: opt[k_] = ' nt' if (cls == 'm' and k_[0] in opt.get('mnt', '') or (k_ == 'wo_pol' and cls == 'm' and 'o' in opt.get('mnt', ''))) and not (k_ == 'wo_pol' and 'o' not in opt.get('mnt', '')) else base_pol[k_]
        if kind == 'W':
            if idx >= RING: cur = max(cur, 48 * (idx - RING + 1))
            for it in g_w(idx, opt): tl.at(cur, *it); cur += pace[cls]
            rep.append(f"W{idx}:{48*max(idx-1,0) - 1 - (cur - pace[cls])}")
            assert 48*max(idx-1,0) - 1 - (cur - pace[cls]) > 0, rep[-1]
        elif kind == 'O':
            e = {0: 48 * 9, 1: 48 * 11, 2: 48 * 13}.get(idx)
            if e is None: e = kstart[4 * (idx - 3)]
            cur = max(cur, e)
            for it in g_wo(idx, opt): tl.at(cur, *it); cur += pace[cls]
            rep.append(f"O{idx}:{kstart[4*max(idx-1,0)] - 1 - (cur - pace[cls])}")
            assert kstart[4*max(idx-1,0)] - 1 - (cur - pace[cls]) > 0, rep[-1]
        elif kind == 'Y':
            pace['m'], pace['h'] = divmod(idx, 10)
        elif kind == 'Z':
            cur = max(cur, s2s + idx - 100)
        elif kind == 'F':
            cur = max(cur, idx + s2s)
            tl.at(cur, f1ld); cur += lag['h']
            tl.at(cur, f1cmp, "s_cmp_eq_u64 vcc, 0", "s_cbranch_scc0 Lf1", "Lf1_r:")
            oline += spin("Lf1", f1ld, f1cmp)
        elif kind == 'P':
            if idx >= 2: cur = max(cur, puend0)
            if idx == 0: assert cur >= p0min, (cur, p0min)
            for it in g_p(idx, opt): tl.at(cur, *it); cur += pace[cls]
            rep.append(f"P{idx}:{pustart[1 if idx < 2 else 3] - cur}")
            assert pustart[1 if idx < 2 else 3] - cur > 8, rep[-1]
        else:
            kind0, idx0 = kind, idx
            for q in range(4 if kind0 in 'LU' else 3):
                if kind0 == 'L': kind, idx, q = 'K', q, idx0
                if kind0 == 'U': kind, idx, q = 'V', (idx0 // 3) * 4 + q, idx0 % 3
                if kind == 'X':
                    iss, rd = sg.tile(vXD, sX, [f"s_add_u32 s{sSO2}, s{sXO+idx}, {q*14336}" if idx else f"s_mov_b32 s{sSO2}, {q*14336}"], opt['x_pol'], A(xreg(2*idx, q), 4), A(xreg(2*idx+1, q), 4))
                    dl = 96 * idx - 6; er = -9999
                elif kind == 'K':
                    iss, rd = sg.tile(vKD, sK, [f"s_mov_b32 s{sSO2}, {q*8192 + idx*128}"], opt['k_pol'], A(kreg(2*idx, q), 4), A(kreg(2*idx+1, q), 4))
                    dl = 672 + 18 * idx - 6; er = 48 if (idx == 3 and q >= 1) else -9999
                else:
                    hn, j = divmod(idx, 4)
                    so = ([f"s_mul_i32 s{sVH}, s{sHB+hn}, 24576", f"s_add_u32 s{sVH}, s{sVH}, s{sVU+j}"] if (q == 0 or kind0 == 'U') else []) + [f"s_add_u32 s{sSO2}, s{sVH}, {q*8192}"]
                    dl = kstart[2 * idx] - 6
                    er = -9999; dst = []
                    for e in range(2):
                        last_use = vuse[(2 * idx + e, q)][-1] + 1
                        cand = [r for r in pool if pool[r][1] >= last_use]
                        want = cur + lag[cls]
                        rdy = [r for r in cand if pool[r][0] <= want]
                        r = min(rdy, key=lambda r: (pool[r][1], pool[r][0])) if rdy else min(cand, key=lambda r: pool[r][0])
                        er = max(er, pool[r][0]); pool[r] = (last_use, pool[r][1]); dst.append(r)
                        for i_ in vuse[(2 * idx + e, q)]: tl.main[i_] = tl.main[i_].replace('@V@', A(r, 4))
                    iss, rd = sg.tile(vVD, sV, so, opt['v_pol'], A(dst[0], 4), A(dst[1], 4))
                n = len(rdpos)
                if n >= sg.nsl: cur = max(cur, rdpos[n - sg.nsl] + 4)
                cur = max(cur, er - lag[cls])
                tl.at(cur, *iss[0]); tl.at(cur, *iss[1]); last = cur; cur += 2 * pace[cls]
                rp = max(min(last + pace[cls] + lag[cls], dl), er, last)
                if rdpos: rp = max(rp, rdpos[-1])
                if opt.get('x0late') and kind == 'X' and idx == 0: rp = -4
                if opt.get('x0late') and kind == 'X' and idx == 1: rp = max(rp, 10 + 6 * q)
                if rp == -1: rp = -2
                if rp > dl and dl >= 0: print("LATE", kind, idx, q, rp, dl)
                assert rp <= dl + 5 or dl < 0, (kind, idx, rp, dl)
                tl.at(rp, *rd); rdpos.append(rp)
                rep.append(f"{kind}{idx}.{q}:{rp - last}")
        if n_ == 2: tl.at(cur - 1, *setup1(opt))
        if n_ == opt['s2at']: assert cur - 1 < -2; tl.at(cur - 1, *setup2(opt))
    for sp_ in opt.get('stp', ()): tl.at(sp_, *st())
    if opt.get('verbose') == 2: print(' '.join(posl))
    if opt.get('verbose') == 1: print(" ".join(rep), "end", cur, "s2s", s2s, "total", len(tl.main))
    if opt['smooth']: print('overflow slots', smooth(tl))
    body = tl.flat()
    if opt.get('strip') == 1:
        txt = lambda x: x if isinstance(x, str) else getattr(x, 'txt', '')
        body = [x for x in body if not (txt(x).startswith('v_mfma') or txt(x).startswith('ds_read_b64_tr') or txt(x).startswith('v_cvt') or txt(x).startswith('v_exp') or txt(x).startswith('v_swap'))]
    if opt.get('fake'):
        import re as _re
        nb = []
        for x in body:
            t = x if isinstance(x, str) else getattr(x, 'txt', '')
            if t.startswith('buffer_load_dwordx4') and ' lds' in t:
                t2 = _re.sub(r'buffer_load_dwordx4 v\d+, (s\[\d+:\d+\]), s\d+', (r'buffer_load_dwordx4 v0, \1, 0' if opt['fake'] == 1 else r'buffer_load_dwordx4 v%d, \1, 0' % vXD), t).replace(' nt', '')
                y = I(t2); y.tag = x.tag; nb.append(y)
            else: nb.append(x)
        body = nb
    if opt.get('drop'):
        srds = {'x': sX, 'w': sWQ, 'k': sK, 'v': sV, 'o': sWO}
        pats = [f"s[{srds[c]}:{srds[c]+3}]" for c in opt['drop'] if c in srds]
        nb = []
        for x in body:
            t = x if isinstance(x, str) else getattr(x, 'txt', '')
            if t.startswith('buffer_load_dwordx4') and ' lds' in t and any(p_ in t for p_ in pats):
                y = I("s_nop 0"); y.tag = x.tag; nb.append(y)
            else: nb.append(x)
        body = nb
    if opt.get('strip') == 2:
        nb = []
        for x in body:
            t = x if isinstance(x, str) else getattr(x, 'txt', '')
            if t.startswith('buffer_load_dwordx4') and ' lds' in t:
                y = I("s_nop 0"); y.tag = x.tag; nb.append(y)
            else: nb.append(x)
        body = nb
    P += body + (st() if 3 in opt['stk'] else [])
    f2ld = f"buffer_load_dword v{vF}, v{vF2A}, s[{sWS}:{sWS+3}], 0 offen sc1"
    P += [f"v_mov_b32 v{vF}, s{sTAG}", f"s_lshl_b32 s{sT0}, s{sHQ}, 7", WaitTag("part"), "s_mov_b64 exec, 1",
          f"buffer_store_dword v{vF}, v{vF2A}, s[{sWS}:{sWS+3}], s{sT0} offen sc1", "s_mov_b64 exec, -1", "s_nop 1", f2ld]
    OWN, ACC, RX = 216, 228, 64
    P += [WaitTag("ownw")] + [f"ds_read_b128 {V(OWN + 4*i, 4)}, v{vLR} offset:{i*4096}" for i in range(3)]
    for k in range(3): P += [f"s_add_u32 s{sHB+k}, s{sHQ}, {k+1}", f"s_and_b32 s{sHB+k}, s{sHB+k}, 3", f"s_mul_i32 s{sHB+k}, s{sHB+k}, 3072"]
    P += [f"s_mov_b32 s{sVU}, 0x3f80", f"s_mov_b32 s{sVU+1}, 0x3f800000"]
    for r in range(12): P += [f"v_lshlrev_b32 v{ACC+2*r}, 16, v{OWN+r}", f"v_and_b32 v{ACC+2*r+1}, 0xffff0000, v{OWN+r}"]
    P += [f1cmp, "s_cmp_eq_u64 vcc, 0", "s_cbranch_scc0 Lf2", "Lf2_r:"]
    oline += spin("Lf2", f2ld, f1cmp, f2ld.replace(f"v{vF},", f"v{vF1A},"), f1cmp.replace(f"v{vF}", f"v{vF1A}")) if opt.get('pp', 1) else spin("Lf2", f2ld, f1cmp)
    P += (st() if 4 in opt['stk'] else [])
    for i in range(3):
        for k in range(3):
            P += [f"buffer_load_dwordx4 {V(RX + (i*3+k)*4, 4)}, v{vLD}, s[{sWS}:{sWS+3}], s{sHB+k} offen offset:{i*1024} sc1"]
    for i in range(3):
        for k in range(3):
            for r in range(4):
                x = RX + (i*3+k)*4 + r
                P += [f"v_dot2c_f32_bf16 v{ACC+8*i+2*r}, s{sVU}, v{x}", f"v_dot2c_f32_bf16 v{ACC+8*i+2*r+1}, s{sVU+1}, v{x}"]
        for r in range(4): P += [f"v_cvt_pk_bf16_f32 v{OWN+4*i+r}, v{ACC+8*i+2*r}, v{ACC+8*i+2*r+1}"]
        if opt['otr']:
            for e in range(2): P += [I(f"ds_write_b64 v{vOUT+2*i+e}, {V(OWN+4*i+2*e, 2)}", tag="otw")]
        else:
            for e in range(2): P += [f"buffer_store_dwordx2 {V(OWN+4*i+2*e, 2)}, v{vOUT+2*i+e}, s[{sOUT}:{sOUT+3}], 0 offen{opt['out_pol']}"]
    if opt['otr']:
        P += [WaitTag("otw")] + [f"ds_read_b128 {V(RX+4*k, 4)}, v{vOR+k}" for k in range(3)]
        P += [f"buffer_store_dwordx4 {V(RX+4*k, 4)}, v{vOG+k}, s[{sOUT}:{sOUT+3}], 0 offen{opt['out_pol']}" for k in range(3)]
    P += (st() if 5 in opt['stk'] else []) + st.dump() + ["Lend:", "s_endpgm"]
    lines, stats = finalize(P, quiet=bool(opt.get('strip')))
    print(stats, len(lines))
    lines += oline + ['Lcodeend:']
    return lines

def build(opt):
    import re as _re
    scheds = opt['sched']
    nvar = len(scheds)
    lines = []
    if nvar > 1:
        sh, w = opt['vsel']
        lines += ["s_cmp_ge_u32 s2, 256", "s_cbranch_scc0 Lgo", "s_endpgm", "Lgo:", f"s_bfe_u32 s3, s2, {hex((w << 16) | sh)}"]
        for v in range(1, nvar):
            lines += [f"s_cmp_eq_u32 s3, {v}", f"s_cbranch_scc0 Lsk{v}", f"s_getpc_b64 s[4:5]", f"Lpc{v}:", f"s_add_u32 s4, s4, Lvar{v}-Lpc{v}", "s_addc_u32 s5, s5, 0", "s_setpc_b64 s[4:5]", f"Lsk{v}:"]
    for v in range(nvar):
        o = dict(opt); o['sched'] = scheds[v]
        if v and opt.get('drop1'): o['drop'] = opt['drop1']
        body = build_body(o)
        if nvar > 1:
            body = [_re.sub(r'\b(L(?:end|notag|tag|f1|f2|pcf|codeend)(?:_[lr])?)\b', lambda m: m.group(1) + f"_v{v}", l) for l in body]
            lines += [".p2align 6", f"Lvar{v}:"] if v else []
        lines += body
    hdr = open('concat_heads__mha_block_cached__gqa_block_cached__near_ridge.s.ref').read().split('; Override')[0]
    txt = hdr + "; @launch grid=(256,1,1) block=(256,1,1) lds=163840\n" + '.amdgcn_target "amdgcn-amd-amdhsa--gfx950"\n.text\n'
    txt += f".globl {NAME}\n.p2align 8\n.type {NAME},@function\n{NAME}:\n" + "\n".join("  " + l if not l.endswith(':') else l for l in lines) + "\n"
    txt += (f'.section .rodata,"a"\n.p2align 6\n.amdhsa_kernel {NAME}\n  .amdhsa_next_free_vgpr 512\n  .amdhsa_next_free_sgpr 102\n  .amdhsa_accum_offset 256\n'
            "  .amdhsa_group_segment_fixed_size 0\n  .amdhsa_kernarg_size 104\n  .amdhsa_user_sgpr_count 2\n  .amdhsa_user_sgpr_kernarg_segment_ptr 1\n"
            "  .amdhsa_system_sgpr_workgroup_id_x 1\n.end_amdhsa_kernel\n")
    return txt

def parse_sched(s):
    out = []
    for t in s.split():
        k, rest = t[0], t[1:]
        cls = 'h'
        if rest.endswith('m'): cls = 'm'; rest = rest[:-1]
        out.append((k, int(rest), cls))
    return out
SCHED = ("X0m W0m W1m X1m W2m W3m X2m W4m W5m W6 X3 W7 W8 X4 W9 W10 X5 W11 X6 W12 W13 K0m K1m K2m K3m V0m O0m O1m V4m V1 V2 V3 O2m "
         "O3m V5 V6 F60 V7 P0 P1 V8m O4 V9 O5 V10 V11 V12m O6 P2 P3 V13 O7 V14 V15")

if __name__ == "__main__":
    opt = dict(wq_pol='', x_pol='', k_pol=' nt', v_pol='', wo_pol='', rot=1, nlock=2, hrot=1, urot=1, st=Stamps(False), stk=(0, 1, 2, 4, 5), mp=7, hp=3, ml=80, hl=36, gap=80, LA=4, otr=0, b0=1, out_pol='', pw=1, smooth=1, smx=0, smw=2, pu0=23, p0at=370, pools=1,
               start=-160, verbose=1, s2at=3, pubd=30, sched=SCHED)
    for kv in sys.argv[2:]:
        k, v = kv.split('=')
        if k == 'st': opt['st'] = Stamps(True); opt['stk'] = tuple(int(x) for x in v.split(','))
        elif k == 'stp': opt['st'] = Stamps(True); opt['stk'] = (); opt['stp'] = tuple(int(x) for x in v.split(','))
        elif k in ('sched', 'mnt', 'drop', 'drop1'): opt[k] = v
        else: opt[k] = ((' ' + v) if v else '') if k.endswith('pol') else int(v)
    if opt.get('rt'): opt['st'].rt = opt['rt']
    opt['st'].dbg = opt.get('dbg', 0)
    opt['sched'] = [parse_sched(x) for x in opt['sched'].split('|')]
    opt['vsel'] = (opt.get('vsh', 3), 1 if len(opt['sched']) == 2 else 2)
    open(sys.argv[1], "w").write(build(opt))
```

```python
import re

_REG = re.compile(r'(?<![\w.])([vas])(?:\[(\d+):(\d+)\]|(\d+))(?![\w])')
def regs_of(op):
    out = []
    for m in _REG.finditer(op):
        k = m.group(1)
        if m.group(2) is not None:
            out += [f"{k}{i}" for i in range(int(m.group(2)), int(m.group(3)) + 1)]
        else:
            out.append(f"{k}{m.group(4)}")
    for sp in ('vcc', 'exec', 'm0'):
        if re.search(r'(?<![\w])' + sp + r'(?![\w])', op): out.append(sp)
    return out

def R(k, base, n=1):
    return f"{k}{base}" if n == 1 else f"{k}[{base}:{base+n-1}]"
def V(b, n=1): return R('v', b, n)
def A(b, n=1): return R('a', b, n)
def S(b, n=1): return R('s', b, n)

TRANS = ('v_exp_f32', 'v_log_f32', 'v_rcp_f32', 'v_rsq_f32', 'v_sqrt_f32', 'v_sin_f32', 'v_cos_f32')

class I:
    __slots__ = ('txt', 'kind', 'rd', 'wr', 'tag', 'srcc', 'ab', 'states', 'wtags', 'size')
    def __init__(self, txt, tag=None):
        self.txt = txt; self.tag = tag; self.srcc = []; self.ab = []; self.states = 1; self.wtags = None
        parts = txt.split(None, 1)
        op = parts[0]; rest = parts[1] if len(parts) > 1 else ''
        ops = [o.strip() for o in re.split(r',(?![^\[]*\])', rest)] if rest else []
        rd, wr = [], []
        allr = lambda xs: [r for o in xs for r in regs_of(o)]
        if op.startswith('v_mfma'):
            k = 'mfma'; wr = regs_of(ops[0]); self.ab = allr(ops[1:3]); self.srcc = regs_of(ops[3]); rd = self.ab + self.srcc
        elif op.startswith('buffer_load') or op.startswith('global_load'):
            if re.search(r'\blds\b', txt) or '_lds_' in op:
                k = 'dma'; rd = allr(ops) + ['m0']
            else:
                k = 'vld'; wr = regs_of(ops[0]); rd = allr(ops[1:])
        elif op.startswith('buffer_store') or op.startswith('global_store'):
            k = 'vst'; rd = allr(ops)
        elif op.startswith('buffer_atomic') or op.startswith('global_atomic'):
            k = 'vst'; rd = allr(ops)
            if 'sc0' in txt: k = 'vld'; wr = regs_of(ops[0])
        elif op in ('buffer_wbl2', 'buffer_inv'):
            k = 'vst'
        elif op.startswith('ds_read') or op.startswith('ds_bpermute') or op.startswith('ds_swizzle'):
            k = 'dsr'; wr = regs_of(ops[0]); rd = allr(ops[1:])
        elif op.startswith('ds_write'):
            k = 'dsw'; rd = allr(ops)
        elif op.startswith('s_load') or op in ('s_memtime', 's_memrealtime'):
            k = 'smem'; wr = regs_of(ops[0]); rd = allr(ops[1:])
        elif op == 's_nop':
            k = 'nop'; self.states = int(ops[0], 0) + 1
        elif op == 's_barrier': k = 'bar'
        elif op == 's_waitcnt': k = 'wait'
        elif op.startswith('s_cbranch') or op == 's_branch' or op == 's_endpgm' or op == 's_setprio' or op == 's_sleep':
            k = 'ctl'
        elif op.startswith('s_cmp'):
            k = 'salu'; rd = allr(ops)
        elif op.startswith('s_'):
            k = 'salu'; wr = regs_of(ops[0]); rd = allr(ops[1:])
            if 'saveexec' in op: wr = wr + ['exec']; rd = rd + ['exec']
        elif op.startswith('v_permlane') or op == 'v_swap_b32':
            k = 'perm' if op.startswith('v_permlane') else 'valu'; rd = allr(ops); wr = list(rd)
        elif op.startswith('v_readfirstlane') or op.startswith('v_readlane'):
            k = 'rfl'; wr = regs_of(ops[0]); rd = allr(ops[1:])
        elif op.startswith('v_'):
            k = 'trans' if op.replace('_e32', '').replace('_e64', '') in TRANS else 'valu'
            wr = regs_of(ops[0]); rd = allr(ops[1:])
            if op.startswith('v_fmac') or op.startswith('v_pk_fmac') or op.startswith('v_dot2c'): rd = rd + wr
            if op.startswith('v_dot2'): k = 'dot'
            if '_co_' in op or op.startswith('v_div_scale'): wr = wr + regs_of(ops[1]); rd = allr(ops[2:])
            if 'dpp' in txt or 'row_' in txt: k = 'dpp'
        elif op.endswith(':') or op.startswith('.'):
            k = 'label'; self.states = 0
        else:
            raise ValueError("unknown op " + txt)
        self.kind = k; self.rd = rd; self.wr = wr

class WaitTag:
    def __init__(self, *tags): self.tags = set(tags)
class Fence:
    def __init__(self, vm=True, lgkm=True): self.vm = vm; self.lgkm = lgkm
class Atomic:
    def __init__(self, lst): self.lst = lst
class Raw:
    def __init__(self, txt): self.txt = txt

VALUISH = ('valu', 'trans', 'perm', 'rfl', 'dpp', 'dot')
VMEMISH = ('vld', 'vst', 'dma')

def finalize(prog, strict_max=True, log=None, quiet=False):
    out = []
    vm = []
    lg = []
    seen = set()
    written = {'s0', 's1', 's2', 'v0', 'exec'}
    stats = {'nops': 0, 'waits': 0, 'maxvm': 0, 'maxlg': 0}
    def emit(i): out.append(i)
    def do_wait(nvm, nlg):
        parts = []
        if nvm is not None:
            nvm = min(nvm, 63); parts.append(f"vmcnt({nvm})"); del vm[:max(0, len(vm) - nvm)]
        if nlg is not None:
            nlg = min(nlg, 15); parts.append(f"lgkmcnt({nlg})"); del lg[:max(0, len(lg) - nlg)]
        if parts:
            emit(I("s_waitcnt " + " ".join(parts))); stats['waits'] += 1
    def need(lst, pred):
        n = None
        for idx, e in enumerate(lst):
            if pred(e): n = len(lst) - 1 - idx
        return n
    def lg_need(pred):
        n = need(lg, pred)
        if n is not None and any(e.kind == 'smem' for e in lg): n = 0
        return n
    for it in prog:
        if isinstance(it, str): it = I(it)
        if isinstance(it, WaitTag):
            for tg in it.tags: assert tg in seen, f"WaitTag {tg} before its op was issued"
            do_wait(need(vm, lambda e: e.tag in it.tags), lg_need(lambda e: e.tag in it.tags)); continue
        if isinstance(it, Fence):
            do_wait(0 if it.vm and vm else None, 0 if it.lgkm and lg else None); continue
        if isinstance(it, Raw):
            emit(I("s_nop 7")); emit(I("s_nop 7"))
            for ln in it.txt.strip().split("\n"):
                r = I("s_nop 0"); r.txt = ln; r.kind = 'raw'; r.rd = []; r.wr = []; emit(r)
            emit(I("s_nop 7")); emit(I("s_nop 7"))
            continue
        touched = set(it.rd) | set(it.wr)
        unw = [r for r in it.rd if r not in written]
        if unw and not quiet: print('UNWRITTEN', unw, 'in', it.txt)
        written.update(it.wr); written.update(unw)
        if touched:
            a = need(vm, lambda e: e.wr and not touched.isdisjoint(e.wr))
            b = lg_need(lambda e: e.wr and not touched.isdisjoint(e.wr))
            do_wait(a, b)
        if it.kind in ('dsr', 'dsw', 'smem') and len(lg) >= 15: do_wait(None, 0 if any(e.kind == 'smem' for e in lg) else 14)
        req = 0; gap = 0
        rdS, wrS = set(it.rd), set(it.wr)
        for pv in reversed(out):
            if gap > 24: break
            n = 0
            pw = set(pv.wr)
            if pv.kind in VALUISH:
                vw = {r for r in pw if r[0] in 'va' and r not in ('vcc',)}
                sw = {r for r in pw if r[0] == 's' or r == 'vcc'}
                if it.kind == 'mfma' and vw & rdS: n = max(n, 2)
                if it.kind in ('perm', 'dpp') and vw & rdS: n = max(n, 2)
                if it.kind == 'rfl' and vw & rdS: n = max(n, 1)
                if pv.kind == 'trans' and it.kind in VALUISH and it.kind != 'trans' and vw & rdS: n = max(n, 1)
                if pv.kind == 'dot' and it.kind != 'dot' and vw & (rdS | wrS): n = max(n, 3)
                if it.kind in VMEMISH and sw & rdS: n = max(n, 5)
                if it.kind in VALUISH and sw & rdS: n = max(n, 4 if it.kind == 'rfl' else 2)
                if it.kind in ('salu', 'smem') and sw & rdS: n = max(n, 2)
                if 'exec' in pw: n = max(n, 5)
            elif pv.kind == 'mfma':
                if it.kind == 'mfma':
                    if pw & set(it.ab): n = max(n, 8)
                    ov = pw & set(it.srcc)
                    if ov and (it.srcc != pv.wr): n = max(n, 6)
                    if not ov and pw & wrS and it.wr != pv.wr: n = max(n, 8)
                elif (pw & (rdS | wrS)): n = max(n, 8)
                if it.kind in VALUISH and set(pv.srcc) & wrS: n = max(n, 3)
            elif pv.kind == 'salu':
                if 'm0' in pw and it.kind == 'dma': n = max(n, 1)
            elif pv.kind == 'vst':
                if ('x4' in pv.txt or 'x3' in pv.txt) and set(pv.rd) & wrS: n = max(n, 2)
            if n - gap > req: req = n - gap
            gap += pv.states
        if req > 0:
            emit(I(f"s_nop {req-1}")); stats['nops'] += req
            if log is not None: log.append((len(out), it.txt, req))
        emit(it)
        if it.tag: seen.add(it.tag)
        if it.kind in VMEMISH:
            vm.append(it); stats['maxvm'] = max(stats['maxvm'], len(vm))
            if strict_max: assert len(vm) <= 63, "too many vmem outstanding at " + it.txt
        elif it.kind in ('dsr', 'dsw', 'smem'):
            lg.append(it); stats['maxlg'] = max(stats['maxlg'], len(lg))
    return [o.txt for o in out], stats

class Timeline:
    def __init__(self): self.main = []; self.side = {}
    def add(self, ins): self.main.append(ins); return len(self.main) - 1
    def at(self, pos, *ins):
        self.side.setdefault(pos, []).extend(ins)
    def flat(self):
        out = []
        for p in sorted(k for k in self.side if k < 0): out += self.side[p]
        for i, m in enumerate(self.main):
            if m is not None: out.append(m)
            out += self.side.get(i, [])
        mx = max(self.side.keys(), default=-1)
        for p in range(len(self.main), mx + 1): out += self.side.get(p, [])
        return [y for x in out for y in (x.lst if isinstance(x, Atomic) else [x])]

def smooth(tl, maxslide=6, rdslide=3, cap=2):
    main = [None if m is None else (I(m) if isinstance(m, str) else m) for m in tl.main]
    n = len(main)
    items = []; fixed = {}
    def info(x):
        if isinstance(x, (WaitTag, Fence)): return None
        return I(x) if isinstance(x, str) else x
    for g in range(0, n):
        lst = tl.side.get(g, [])
        fixed[g] = [x for x in lst if getattr(x, 'wtags', None) == 'A' or getattr(x, 'pinned', False)]
        lst = [x for x in lst if x not in fixed[g]]
        k = 0
        while k < len(lst):
            x = lst[k]; t = x if isinstance(x, str) else getattr(x, 'txt', '')
            grp = list(x.lst) if isinstance(x, Atomic) else [x]
            if t.startswith('s_mov_b64 exec') and not t.endswith('-1'):
                while not (grp[-1] if isinstance(grp[-1], str) else getattr(grp[-1], 'txt', '')).startswith('s_mov_b64 exec, -1') or len(grp) == 1:
                    k += 1; grp.append(lst[k])
            k += 1
            ins = [info(y) for y in grp]
            cost = 0; lds = 0; rd = set(); wr = set(); slide = maxslide; valu = False
            for y in ins:
                if y is None: cost += 1; continue
                if y.kind == 'label': continue
                cost += 2 if y.kind == 'trans' else (4 if y.kind == 'vst' else 1)
                if y.kind in ('dsr', 'dsw'): lds += 1; slide = min(slide, rdslide)
                if y.kind in VALUISH: valu = True
                rd |= set(y.rd); wr |= set(y.wr)
            dl = g + slide
            pinned = main[g] is None or main[g].kind != 'mfma'
            if pinned: dl = g
            for m in range(g + 1, min(dl + 2, n)):
                mm = main[m]
                if mm is None or mm.kind != 'mfma': dl = min(dl, m - 1); break
                if (wr & (set(mm.rd) | set(mm.wr))) or (rd & set(mm.wr)):
                    dl = min(dl, max(g, m - (2 if valu and (wr & set(mm.rd)) else 1))); break
            items.append([g, grp, cost, lds, min(dl, n - 1)])
    for i in range(len(items) - 2, -1, -1): items[i][4] = min(items[i][4], items[i + 1][4])
    side = {p: v for p, v in tl.side.items() if p < 0 or p >= n}
    q = 0; over = 0; hist = {}
    for g in range(n):
        out = list(fixed[g]); used = len(out); lds = sum(1 for x in out if isinstance(x, I))
        while q < len(items) and items[q][0] <= g:
            r, grp, cost, l, dl = items[q]
            c = cost + (1 if (l and lds) else 0)
            if used + c <= cap or dl <= g or (used <= len(fixed[g]) and cost > cap - used and cost >= cap and lds == 0):
                out += grp; used += c; lds += l; q += 1
            else: break
        if used > cap and main[g] is not None and main[g].kind == 'mfma':
            over += used - cap; hist[g // 48] = hist.get(g // 48, 0) + used - cap
        if out: side[g] = out
    assert q == len(items)
    tl.side = side
    return over, hist
```

```python
import struct, sys
from fw import *

def fbits(x): return struct.unpack('<I', struct.pack('<f', x))[0]
SZ_X, SZ_KV, SZ_W, SZ_OUT, SZ_WS = 1376256, 12582912, 3670016, 2752512, 268435456
SCALE = 1.4426950408889634 / 16.0
PART_OFF = 8 << 20
FLAG1_OFF = 40 << 20
FLAG2_OFF = 41 << 20
TAG_OFF = 42 << 20
NAME = "concat_heads__mha_block_cached__gqa_block_cached__near_ridge_kernel"

sX, sWQ, sK, sWS, sV, sWO, sOUT = 4, 8, 12, 16, 64, 68, 72
sHQ, sP, sHH, sBG, sH, sW, sB = 20, 21, 22, 23, 24, 25, 26
sM0B, sODD, sSC, sT0, sT1 = 27, 28, 30, 31, 32
sSTG, sWOM, sSO2 = 33, 34, 35
sWQO = 36
sXO = 50
sTAG, sCNT, sSO = 57, 62, 63
sDBG = 76
sHB = 80
sVU = 84
sWOR = 88
sVH, sWH = 90, 91
STAMP_REGS = [92, 94, 96, 98, 100]

vTR, vTRH, vW, vXD, vKD, vSR, vVD, vWO, vPA, vPB, vF = 2, 10, 18, 22, 24, 26, 28, 30, 37, 38, 39
vFR, NS = 40, 6
vACC = 64
vT = 64
def acc(t, mt): return vACC + (t * 3 + mt) * 4
def xreg(j, mt): return (j * 3 + mt) * 4
def kreg(s, kt):
    f = s * 3 + kt
    return 168 + 4 * f if f < 22 else 4 * (f - 22)
vTW, vTWH, vP2A, vP2B, vST, vF1A, vF2A, vLD, vOUT, vLW, vLR = 2, 3, 4, 5, 6, 7, 8, 9, 10, 16, 17
vOR, vOG = 18, 21
vU = 172
vUB = 64
def uacc(kt, nt): return vU + (nt * 3 + kt) * 4
def oacc(nt, mt): return 168 + (nt * 3 + mt) * 4
aV, NVF = 8, 31
aP = 132
def vfrag(sig, kt): return aV + ((sig * 3 + kt) % NVF) * 4
RING, SLAB = 7, 16384
SUP, R2 = 28672, 4
STG = 114688

flat = lambda gs: [x for g in gs for x in g]
def srd(d, lo, size):
    return [f"s_mov_b32 s{d}, s{lo}", f"s_mov_b32 s{d+1}, s{lo+1}", f"s_mov_b32 s{d+2}, {size}", f"s_mov_b32 s{d+3}, 0x20000"]

class Stamps:
    def __init__(self, on): self.on = on; self.n = 0; self.pend = []
    def __call__(self):
        if not self.on: return []
        r = STAMP_REGS[self.n % len(STAMP_REGS)]
        out = []
        if self.n >= len(STAMP_REGS): raise RuntimeError("too many stamps")
        self.n += 1
        if getattr(self, 'rt', 0) == 2 or (getattr(self, 'rt', 0) == 1 and self.n in (2, 4)): return [f"s_memrealtime s[{r}:{r+1}]"]
        return [f"s_memtime s[{r}:{r+1}]"]
    def dump(self):
        if not self.on: return []
        if getattr(self, 'dbg', 0):
            R = STAMP_REGS
            P = [Fence(), "s_mov_b64 exec, 1", "v_mov_b32 v3, 0", f"s_not_b32 s{sT0}, s{R[0]}", f"v_mov_b32 v2, s{sT0}", f"buffer_atomic_umax v2, v3, s[{sDBG}:{sDBG+3}], 0 offen offset:8",
                 f"v_mov_b32 v4, s{R[self.n-1]}", f"buffer_atomic_umax v4, v3, s[{sDBG}:{sDBG+3}], 0 offen offset:12"]
            for i in range(1, self.n):
                P += [f"s_sub_u32 s{sT0}, s{R[i]}, s{R[0]}", f"v_mov_b32 v{4+i}, s{sT0}", f"buffer_atomic_umax v{4+i}, v3, s[{sDBG}:{sDBG+3}], 0 offen offset:{12+4*i}",
                      f"buffer_atomic_add v{4+i}, v3, s[{sDBG}:{sDBG+3}], 0 offen offset:{32+4*i}"]
            return P
        P = [Fence(), f"s_lshl_b32 s{sT0}, s2, 2", f"s_add_u32 s{sT0}, s{sT0}, s{sW}", f"s_lshl_b32 s{sT0}, s{sT0}, 7", f"s_add_u32 s{sT0}, s{sT0}, {64 << 20}", "v_mov_b32 v3, 0"]
        for i in range(self.n):
            P += [f"v_mov_b32 v2, s{STAMP_REGS[i]}", f"buffer_store_dword v2, v3, s[{sWS}:{sWS+3}], s{sT0} offen offset:{4*i}"]
        return P

def prologue(opt):
    P = ["s_cmp_ge_u32 s2, 256", "s_cbranch_scc1 Lend",
         "s_load_dwordx16 s[36:51], s[0:1], 0", "s_load_dwordx8 s[52:59], s[0:1], 64", "s_load_dwordx2 s[60:61], s[0:1], 96"] + opt['st']() + [
         f"s_and_b32 s{sHQ}, s2, 3", f"s_bfe_u32 s{sP}, s2, 0x10002", f"s_bfe_u32 s{sHH}, s2, 0x20003", f"s_lshr_b32 s{sBG}, s2, 5",
         f"s_lshl_b32 s{sH}, s{sHQ}, 2", f"s_add_u32 s{sH}, s{sH}, s{sHH}",
         "v_lshrrev_b32 v1, 6, v0", f"v_readfirstlane_b32 s{sW}, v1", "v_and_b32 v1, 63, v0",
         f"s_lshl_b32 s{sB}, s{sBG}, 2", f"s_add_u32 s{sB}, s{sB}, s{sW}"]
    a, b, c, d = vT, vT + 1, vT + 2, vT + 3
    if opt.get('cpf'):
        P += ["s_getpc_b64 s[88:89]", "Lpcf:", f"s_lshr_b32 s{sT0}, s2, 3", f"s_lshl_b32 s{sT0}, s{sT0}, 2", f"s_add_u32 s{sT0}, s{sT0}, s{sW}", f"s_lshl_b32 s{sT0}, s{sT0}, 9",
              f"v_and_b32 v{a}, 3, v1", f"v_lshlrev_b32 v{a}, 7, v{a}", f"v_add_u32 v{a}, s{sT0}, v{a}", f"v_min_u32 v{a}, Lcodeend-Lpcf-4, v{a}", XI(f"global_load_dword v{vF}, v{a}, s[88:89]")]
    P += [f"s_mul_i32 s{sSTG}, s{sW}, 12288", f"s_add_u32 s{sSTG}, s{sSTG}, {STG}", f"s_mul_i32 s{sT0}, s{sB}, 43008"]
    P += stage_dma_voff(vXD, 896, sT0)
    P += [f"s_lshl_b32 s{sM0B}, s{sW}, 12", f"s_and_b32 s{sT0}, s{sW}, 1", f"s_lshl_b32 s{sT0}, s{sT0}, 3",
          f"s_lshl_b32 s{sT1}, s{sW}, 16", f"s_lshl_b32 s{sSO}, s{sH}, 9", f"s_add_u32 s{sT1}, s{sT1}, s{sSO}",
          f"v_lshrrev_b32 v{a}, 5, v1", f"v_and_b32 v{b}, 31, v1", f"v_or_b32 v{c}, s{sT0}, v{a}", f"v_xor_b32 v{b}, v{b}, v{c}",
          f"v_lshlrev_b32 v{b}, 4, v{b}", f"v_lshl_add_u32 v{b}, v{a}, 13, v{b}", f"v_add_u32 v{vW}, s{sT1}, v{b}",
          f"v_xor_b32 v{c}, 64, v{vW}", f"v_add_u32 v{vW+1}, {16384-1024}, v{c}", f"v_add_u32 v{vW+2}, {2*(16384-1024)}, v{vW}", f"v_add_u32 v{vW+3}, {3*(16384-1024)}, v{c}"]
    P += [f"v_and_b32 v{a}, 15, v1", f"v_lshrrev_b32 v{b}, 4, v1", f"v_lshrrev_b32 v{c}, 1, v{a}", f"v_xor_b32 v{c}, v{c}, v{b}", f"v_lshlrev_b32 v{c}, 4, v{c}",
          f"v_lshl_add_u32 v{c}, v{a}, 7, v{c}", f"v_add_u32 v{vSR}, s{sSTG}, v{c}", f"v_xor_b32 v{c}, 64, v{c}", f"v_add_u32 v{vSR+1}, s{sSTG}, v{c}"]
    P += [f"s_mov_b32 s{sX+2}, {SZ_X}", f"s_mov_b32 s{sX+3}, 0x20000", f"s_mov_b32 s{sWQ+2}, {SZ_W}", f"s_mov_b32 s{sWQ+3}, 0x20000",
          f"s_mov_b32 s{sT0}, 0", f"s_mov_b32 s{sT1}, {1 << 18}", f"s_cmp_eq_u32 s{sP}, 0",
          f"s_cselect_b64 s[{sX}:{sX+1}], s[36:37], s[46:47]", f"s_cselect_b64 s[{sWQ}:{sWQ+1}], s[42:43], s[52:53]"]
    return P

def setup1(opt):
    P = [f"s_cmp_eq_u32 s{sP}, 0"]
    for i, d_ in ((1, sK), (2, sV), (4, sWO)):
        P.append(f"s_cselect_b64 s[{d_}:{d_+1}], s[{36+2*i}:{37+2*i}], s[{46+2*i}:{47+2*i}]")
    for d_, sz in ((sK, SZ_KV), (sV, SZ_KV), (sWO, SZ_W)):
        P += [f"s_mov_b32 s{d_+2}, {sz}", f"s_mov_b32 s{d_+3}, 0x20000"]
    P += srd(sOUT, 56, SZ_OUT) + srd(sWS, 60, SZ_WS) + srd(sDBG, 58, 256)
    P += [f"s_mov_b32 s{sVH}, {TAG_OFF}", f"buffer_load_dword v{vF}, off, s[{sWS}:{sWS+3}], s{sVH} sc1"]
    P += [f"s_mov_b32 s{sXO+1}, 128", f"s_mov_b32 s{sWQO+2}, {2 << 18}", f"s_mov_b32 s{sWQO+3}, {3 << 18}"]
    return P

def stage_dma_voff(vd, rowstride, sbase):
    a, b, c = vT, vT + 1, vT + 2
    return [f"v_lshrrev_b32 v{a}, 3, v1", f"v_and_b32 v{b}, 7, v1", f"v_lshrrev_b32 v{c}, 4, v1", f"v_xor_b32 v{b}, v{b}, v{c}", f"v_lshlrev_b32 v{b}, 4, v{b}",
            f"v_mul_u32_u24 v{a}, {rowstride}, v{a}", f"v_add3_u32 v{vd}, v{a}, v{b}, s{sbase}", f"v_xor_b32 v{b}, 64, v{b}", f"v_add3_u32 v{vd+1}, v{a}, v{b}, s{sbase}",
            f"v_add_u32 v{vd+1}, {8*rowstride - 1024}, v{vd+1}"]

def setup2(opt):
    P = []
    a, b, c, d, e = vT, vT + 1, vT + 2, vT + 3, vT + 4
    nl = opt['nlock']; nr = 7 - nl
    if opt['rot'] == 3:
        P += [f"s_add_u32 s{sCNT}, s{sHH}, s{sBG}"]
        for _ in range(3): P += [f"s_cmp_ge_u32 s{sCNT}, 3", f"s_cselect_b32 s{sSO}, 3, 0", f"s_sub_u32 s{sCNT}, s{sCNT}, s{sSO}"]
        P += [f"s_lshl_b32 s{sCNT}, s{sCNT}, 1"]
    elif opt['rot'] == 2:
        P += [f"s_add_u32 s{sCNT}, s{sHH}, s{sBG}", f"s_and_b32 s{sCNT}, s{sCNT}, 1", f"s_mul_i32 s{sCNT}, s{sCNT}, 3"]
    elif opt['rot']:
        P += [f"s_lshl_b32 s{sCNT}, s{sHH}, 1", f"s_add_u32 s{sCNT}, s{sCNT}, s{sBG}"]
        for _ in range(3): P += [f"s_cmp_ge_u32 s{sCNT}, {nr}", f"s_cselect_b32 s{sSO}, {nr}, 0", f"s_sub_u32 s{sCNT}, s{sCNT}, s{sSO}"]
    else: P += [f"s_mov_b32 s{sCNT}, 0"]
    P += [f"s_add_u32 s{sCNT}, s{sCNT}, {nl}"]
    for j in range(2, nl):
        P += [f"s_mov_b32 s{sXO+j}, {j*128}", f"s_mov_b32 s{sWQO+2*j}, {j << 19}", f"s_mov_b32 s{sWQO+2*j+1}, {(j << 19) + (1 << 18)}"]
    for j in range(nl, 7):
        P += [f"s_lshl_b32 s{sXO+j}, s{sCNT}, 7", f"s_lshl_b32 s{sWQO+2*j}, s{sCNT}, 19", f"s_add_u32 s{sWQO+2*j+1}, s{sWQO+2*j}, {1 << 18}"]
        if j < 6: P += [f"s_add_u32 s{sCNT}, s{sCNT}, 1", f"s_cmp_eq_u32 s{sCNT}, 7", f"s_cselect_b32 s{sCNT}, {nl}, s{sCNT}"]
    P += [f"v_lshrrev_b32 v{a}, 4, v1", f"v_bfe_u32 v{b}, v1, 2, 2", f"v_and_b32 v{c}, 3, v1",
          f"v_lshl_add_u32 v{d}, v{a}, 3, v{b}", f"v_lshlrev_b32 v{d}, 9, v{d}",
          f"v_and_b32 v{a}, 1, v{a}", f"v_lshlrev_b32 v{a}, 3, v{a}",
          f"v_lshrrev_b32 v{e}, 1, v{b}", f"v_lshl_or_b32 v{a}, v{e}, 2, v{a}",
          f"v_and_b32 v{b}, 1, v{b}", f"v_or_b32 v{a}, v{a}, v{b}",
          f"v_xor_b32 v{a}, v{a}, v{c}", f"v_lshl_add_u32 v{d}, v{a}, 4, v{d}",
          f"v_and_b32 v{c}, 1, v{c}", f"v_lshl_add_u32 v{d}, v{c}, 3, v{d}"]
    for bb in range(4):
        for tau in range(2):
            P.append(f"v_xor_b32 v{vTR + bb*2 + tau}, {(bb << 6) | (tau << 3)}, v{d}")
            P.append(f"v_xor_b32 v{vTRH + bb*2 + tau}, {0x10000 | (bb << 6) | (tau << 3)}, v{d}")
    P += [f"s_lshl_b32 s{sSO}, s{sB}, 4", f"s_add_u32 s{sCNT}, s{sSO}, s{sH}", f"s_mul_i32 s{sSO2}, s{sCNT}, 24576"]
    P += stage_dma_voff(vKD, 512, sSO2)
    P += [f"s_mul_i32 s{sSO2}, s{sHH}, 24576", f"v_subrev_u32 v{vVD}, s{sSO2}, v{vKD}", f"v_subrev_u32 v{vVD+1}, s{sSO2}, v{vKD+1}"]
    P += [f"s_lshl_b32 s{sSO}, s{sP}, 9", f"s_add_u32 s{sSO}, s{sSO}, s{sCNT}", f"s_mul_i32 s{sSO}, s{sSO}, 4608",
          f"v_lshlrev_b32 v{a}, 4, v1", f"v_add_u32 v{vPA}, s{sSO}, v{a}", f"v_lshlrev_b32 v{a}, 3, v1", f"s_add_u32 s{sSO}, s{sSO}, 1024", f"v_add_u32 v{vPB}, s{sSO}, v{a}"]
    P += [f"s_mov_b32 s{sODD}, 0xffff0000", f"s_mov_b32 s{sODD+1}, 0xffff0000", f"s_mov_b32 s{sSC}, {fbits(SCALE)}"]
    for hn in range(4):
        src = sBG if opt['hrot'] else None
        if src is not None: P += [f"s_add_u32 s{sHB+hn}, s{src}, {hn}", f"s_and_b32 s{sHB+hn}, s{sHB+hn}, 3"]
        else: P += [f"s_mov_b32 s{sHB+hn}, {hn}"]
        if opt['urot']: P += [f"s_add_u32 s{sVU+hn}, s{sHH}, {hn}", f"s_and_b32 s{sVU+hn}, s{sVU+hn}, 3", f"s_lshl_b32 s{sVU+hn}, s{sVU+hn}, 7"]
        else: P += [f"s_mov_b32 s{sVU+hn}, {hn*128}"]
    for hf2 in range(2):
        P += [f"s_lshr_b32 s{sSO}, s{sW}, 1", f"s_add_u32 s{sSO}, s{sSO}, {2*hf2}"]
        if opt['urot']: P += [f"s_add_u32 s{sSO}, s{sSO}, s{sHH}"]
        P += [f"s_and_b32 s{sSO}, s{sSO}, 3", f"s_lshl_b32 s{sSO}, s{sSO}, 1", f"s_and_b32 s{sSO2}, s{sW}, 1", f"s_add_u32 s{sSO}, s{sSO}, s{sSO2}", f"s_mul_i32 s{sWOR+hf2}, s{sSO}, {32*896}"]
    P += [f"s_mul_i32 s{sWOM}, s{sW}, 7168"]
    P += [f"s_mul_i32 s{sSO}, s{sHH}, 224", f"s_mul_i32 s{sSO2}, s{sHQ}, {1024*896}", f"s_add_u32 s{sSO}, s{sSO}, s{sSO2}", f"s_mov_b32 s{sSO2}, {(1 << 32) // 14 + 1}"]
    for i in range(7):
        P += [f"v_add_u32 v{a}, {64*i}, v1", f"v_mul_hi_u32 v{b}, v{a}, s{sSO2}", f"v_mul_u32_u24 v{c}, 14, v{b}", f"v_sub_u32 v{c}, v{a}, v{c}",
              f"v_and_b32 v{a}, 19, v{b}", f"v_bfe_u32 v{d}, v{b}, 2, 1", f"v_lshl_or_b32 v{a}, v{d}, 3, v{a}", f"v_bfe_u32 v{d}, v{b}, 3, 1", f"v_lshl_or_b32 v{a}, v{d}, 2, v{a}",
              f"v_mul_u32_u24 v{a}, 896, v{a}", f"v_lshl_add_u32 v{a}, v{c}, 4, v{a}", f"v_add_u32 v{vWO+i}, s{sSO}, v{a}"]
        if i & 3: P += [f"v_subrev_u32 v{vWO+i}, {1024*(i & 3)}, v{vWO+i}"]
    return P

def tagpub(opt):
    return [f"v_add_u32 v{vF}, 1, v{vF}", f"v_or_b32 v{vF}, 0x80000000, v{vF}",
          f"s_or_b32 s{sSO}, s2, s{sW}", f"s_cmp_lg_u32 s{sSO}, 0", "s_cbranch_scc1 Lnotag",
          f"s_mov_b32 s{sSO}, {TAG_OFF}", "s_mov_b64 exec, 1",
          XI(f"buffer_store_dword v{vF}, off, s[{sWS}:{sWS+3}], s{sSO} sc1"), XI(f"buffer_store_dword v{vF}, off, s[{sDBG}:{sDBG+3}], 0 sc1"),
          "s_mov_b64 exec, -1", "s_nop 1", "Lnotag:"]

def XI(txt):
    i = I(txt); i.kind = 'xvm'; return i

def setup3(opt):
    a, b, c, d = vFR, vFR + 1, vFR + 2, vFR + 3
    P = [f"v_bfe_u32 v{a}, v1, 2, 3", f"v_lshrrev_b32 v{b}, 5, v1", f"v_lshl_add_u32 v{a}, v{b}, 4, v{a}", f"v_mul_u32_u24 v{a}, 224, v{a}",
         f"v_and_b32 v{b}, 3, v1", f"v_lshl_add_u32 v{vTW}, v{b}, 3, v{a}", f"v_add_u32 v{vTWH}, {2*SUP}, v{vTW}",
         f"s_mul_i32 s{sT0}, s{sHH}, 4608", f"v_subrev_u32 v{vP2A}, s{sT0}, v{vPA}", f"v_subrev_u32 v{vP2B}, s{sT0}, v{vPB}"]
    P += [f"s_lshl_b32 s{sT0}, s{sP}, 9", f"s_lshl_b32 s{sT1}, s{sB}, 4", f"s_add_u32 s{sT0}, s{sT0}, s{sT1}", f"s_lshl_b32 s{sT1}, s{sHQ}, 2", f"s_add_u32 s{sT0}, s{sT0}, s{sT1}",
          f"s_lshl_b32 s{sT0}, s{sT0}, 7", f"s_add_u32 s{sT0}, s{sT0}, {FLAG1_OFF}", f"v_lshlrev_b32 v{b}, 7, v{b}", f"v_add_u32 v{vF1A}, s{sT0}, v{b}"]
    P += [f"s_lshl_b32 s{sT0}, s{sP}, 3", f"s_add_u32 s{sT0}, s{sT0}, s{sBG}", f"s_lshl_b32 s{sT0}, s{sT0}, 2", f"s_add_u32 s{sT0}, s{sT0}, s{sHH}",
          f"s_lshl_b32 s{sT0}, s{sT0}, 2", f"s_add_u32 s{sT0}, s{sT0}, s{sW}",
          ]
    g_, jj = vFR + 5, vFR + 6
    P += [f"s_mul_i32 s{sT0}, s{sT0}, 49152", f"s_add_u32 s{sT0}, s{sT0}, {PART_OFF}",
          f"s_mul_i32 s{sT1}, s{sHQ}, 3072", f"s_add_u32 s{sT1}, s{sT1}, s{sT0}",
          f"v_lshrrev_b32 v{a}, 4, v1", f"v_bfe_u32 v{g_}, v1, 2, 2", f"v_and_b32 v{jj}, 3, v1", f"v_cmp_eq_u32 vcc, s{sHQ}, v{g_}", f"v_mul_u32_u24 v{d}, 12288, v{g_}",
          f"v_lshl_add_u32 v{c}, v{a}, 2, v{jj}", f"v_lshl_add_u32 v{d}, v{c}, 4, v{d}", f"v_add_u32 v{vST}, s{sT1}, v{d}",
          f"v_mov_b32 v{b}, 0x7ff00000", f"v_cndmask_b32 v{vST}, v{vST}, v{b}, vcc",
          f"s_mul_i32 s{sT1}, s{sHQ}, 12288", f"s_add_u32 s{sT1}, s{sT1}, s{sT0}", f"v_lshlrev_b32 v{d}, 4, v1", f"v_add_u32 v{vLD}, s{sT1}, v{d}",
          f"v_add_u32 v{vLW}, s{sSTG}, v{d}",
          f"v_min_u32 v{c}, 2, v{jj}", f"v_add_u32 v{c}, s{sHQ}, v{c}", f"v_add_u32 v{c}, 1, v{c}", f"v_and_b32 v{c}, 3, v{c}", f"v_mul_u32_u24 v{c}, 3072, v{c}", f"s_add_u32 s{sT1}, s{sT1}, 2816", f"v_add_u32 v{vF2A}, s{sT1}, v{c}",
          f"s_lshl_b32 s{sT1}, s{sHQ}, 6", f"s_add_u32 s{sT1}, s{sT1}, s{sSTG}", f"v_lshlrev_b32 v{d}, 10, v{a}", f"v_lshl_add_u32 v{d}, v{g_}, 8, v{d}", f"v_lshl_add_u32 v{d}, v{jj}, 4, v{d}", f"v_add_u32 v{vLR}, s{sT1}, v{d}"]
    P += [f"s_mul_i32 s{sT0}, s{sB}, {48*1792}", f"s_mul_i32 s{sT1}, s{sP}, 896", f"s_add_u32 s{sT0}, s{sT0}, s{sT1}", f"s_mul_i32 s{sT1}, s{sHH}, 224", f"s_add_u32 s{sT0}, s{sT0}, s{sT1}",
          f"s_mul_i32 s{sT1}, s{sHQ}, {4*1792}", f"s_add_u32 s{sT0}, s{sT0}, s{sT1}", f"v_mul_u32_u24 v{c}, 1792, v{jj}", f"v_lshl_add_u32 v{c}, v{g_}, 3, v{c}", f"v_add_u32 v{c}, s{sT0}, v{c}"]
    e_ = vFR + 4
    if opt['otr']:
        P += [f"v_mul_u32_u24 v{c}, 240, v{jj}", f"v_lshl_add_u32 v{c}, v{g_}, 3, v{c}", f"v_add_u32 v{c}, s{sSTG}, v{c}"]
        for i in range(6):
            P += [f"v_lshl_add_u32 v{e_}, v{a}, 1, {8*(i//2) + (i & 1)}", f"v_mul_u32_u24 v{b}, 43, v{e_}", f"v_lshrrev_b32 v{b}, 7, v{b}", f"v_mul_u32_u24 v{d}, 3, v{b}", f"v_sub_u32 v{d}, v{e_}, v{d}",
                  f"v_mul_u32_u24 v{d}, 960, v{d}", f"v_lshl_add_u32 v{d}, v{b}, 5, v{d}", f"v_add_u32 v{vOUT+i}, v{c}, v{d}"]
            if i >= 4: P += [f"v_cmp_lt_u32 vcc, 20, v{e_}", f"v_add_u32 v{b}, 4096, v{vOUT+i}", f"v_cndmask_b32 v{vOUT+i}, v{vOUT+i}, v{b}, vcc"]
        P += [f"s_mov_b32 s{sT1}, {(1 << 32) // 14 + 1}"]
        for k in range(3):
            P += [f"v_add_u32 v{e_}, {64*k}, v1", f"v_mul_hi_u32 v{b}, v{e_}, s{sT1}", f"v_mul_u32_u24 v{c}, 14, v{b}", f"v_sub_u32 v{c}, v{e_}, v{c}",
                  f"v_mul_u32_u24 v{d}, 240, v{b}", f"v_lshl_add_u32 v{d}, v{c}, 4, v{d}", f"v_add_u32 v{vOR+k}, s{sSTG}, v{d}",
                  f"v_lshrrev_b32 v{d}, 2, v{b}", f"v_mul_u32_u24 v{d}, {12*1792}, v{d}", f"v_mul_u32_u24 v{b}, 1792, v{b}", f"v_add3_u32 v{d}, v{d}, v{b}, s{sT0}", f"v_lshl_add_u32 v{vOG+k}, v{c}, 4, v{d}"]
            if k == 2: P += [f"v_cmp_lt_u32 vcc, 39, v1", f"v_mov_b32 v{b}, 0x7ff00000", f"v_cndmask_b32 v{vOG+k}, v{vOG+k}, v{b}, vcc"]
        return P
    for i in range(6):
        P += [f"v_lshl_add_u32 v{e_}, v{a}, 1, {8*(i//2) + (i & 1)}", f"v_mul_u32_u24 v{b}, 43, v{e_}", f"v_lshrrev_b32 v{b}, 7, v{b}", f"v_mul_u32_u24 v{d}, 3, v{b}", f"v_sub_u32 v{d}, v{e_}, v{d}",
              f"v_mul_u32_u24 v{d}, {16*1792}, v{d}", f"v_lshl_add_u32 v{d}, v{b}, 5, v{d}", f"v_add_u32 v{vOUT+i}, v{c}, v{d}"]
        if i >= 4: P += [f"v_cmp_lt_u32 vcc, 20, v{e_}", f"v_mov_b32 v{b}, 0x7ff00000", f"v_cndmask_b32 v{vOUT+i}, v{vOUT+i}, v{b}, vcc"]
    return P

def SA(i):
    i.wtags = 'A'; return i
class PinW(WaitTag):
    pinned = True

class Stager:
    def __init__(self, nsl): self.nsl = nsl; self.n = 0
    def tile(self, vdma, srd_, so_ins, pol, dst0, dst1):
        n = self.n; self.n += 1
        slot = n % self.nsl
        pre = [WaitTag(f"sr{n - self.nsl}")] if n >= self.nsl else []
        iss = [pre + [f"s_add_u32 m0, s{sSTG}, {slot*2048}"] + so_ins + [I(f"buffer_load_dwordx4 v{vdma}, s[{srd_}:{srd_+3}], s{sSO2} offen{pol} lds", tag=f"sd{n}")],
               [I(f"buffer_load_dwordx4 v{vdma+1}, s[{srd_}:{srd_+3}], s{sSO2} offen offset:1024{pol} lds", tag=f"sd{n}")]]
        rd = [WaitTag(f"sd{n}"), I(f"ds_read_b128 {dst0}, v{vSR} offset:{slot*2048}", tag=f"sr{n}"), I(f"ds_read_b128 {dst1}, v{vSR+1} offset:{slot*2048}", tag=f"sr{n}")]
        return iss, rd

def g_w(s, opt):
    slot = (s % RING) * SLAB
    return [([f"s_add_u32 m0, s{sM0B}, {slot}", "s_nop 0"] if i == 0 else []) +
            [I(f"buffer_load_dwordx4 v{vW+i}, s[{sWQ}:{sWQ+3}], s{(sT0, sT1)[s] if s < 2 else sWQO+s} offen offset:{i*1024}{opt['wq_pol']} lds", tag=f"slab{s}")] for i in range(4)]
def g_wo(j, opt):
    hn, half = divmod(j, 2)
    out = []
    for i in range(7):
        pre = []
        if i in (0, 4): pre += [f"s_add_u32 m0, s{sWOM}, {(j % R2) * SUP + i * 1024}"]
        if i == 0: pre += [f"s_mul_i32 s{sWH}, s{sHB+hn}, {256*896}", f"s_add_u32 s{sWH}, s{sWH}, s{sWOR+half}"]
        if i == 4: pre += ["s_nop 0"]
        out.append(pre + [I(f"buffer_load_dwordx4 v{vWO+i}, s[{sWO}:{sWO+3}], s{sWH} offen offset:{(i & 3)*1024}{opt['wo_pol']} lds", tag=f"sup{j}")])
    return out
def g_p(hn, opt):
    out = []
    o = (hn & 1) * 6
    for mt in range(3):
        pre = [f"s_mul_i32 s{sSO}, s{sHB+hn}, 4608"] if mt == 0 else []
        out.append(pre + [f"buffer_load_dwordx4 {A(aP + mt*12 + o, 4)}, v{vP2A}, s[{sWS}:{sWS+3}], s{sSO} offen offset:{mt*1536} sc1"])
        out.append([f"buffer_load_dwordx2 {A(aP + mt*12 + o + 4, 2)}, v{vP2B}, s[{sWS}:{sWS+3}], s{sSO} offen offset:{mt*1536} sc1"])
    return out

def tr_reads(T):
    ks, t = divmod(T, 16)
    sp, tau = divmod(t, 2)
    ap, bp = divmod(sp, 4)
    slot = ks % RING
    base = (vTR if slot < 4 else vTRH) + bp * 2 + tau
    off = (slot % 4) * SLAB + ap * 256
    d = vFR + (T % NS) * 4
    return [I(f"ds_read_b64_tr_b16 {V(d, 2)}, v{base} offset:{off}", tag=f"ta{T}"), I(f"ds_read_b64_tr_b16 {V(d+2, 2)}, v{base} offset:{off + 2048}", tag=f"ta{T}")]
NMAJ = [0]
def wo_reads(F):
    sig, nt = divmod(F, 7)
    if NMAJ[0] and F >= 196: nt, sig = divmod(F - 196, 4); sig += 28
    j, sl = divmod(sig, 4)
    ss = j % R2
    base = vTW if ss < 2 else vTWH
    off = (ss % 2) * SUP + sl * 7168 + nt * 32
    d = vFR + (F % NS) * 4
    return [I(f"ds_read_b64_tr_b16 {V(d, 2)}, v{base} offset:{off}", tag=f"tb{F}"), I(f"ds_read_b64_tr_b16 {V(d+2, 2)}, v{base} offset:{off + 1792}", tag=f"tb{F}")]

def softmax_block(sacc, m, t, pk):
    sv = lambda mt: [sacc(kt, mt) + r for kt in range(3) for r in range(4)]
    Q = []
    for mt in range(3):
        x = sv(mt)
        Q.append(f"v_max3_f32 v{m[mt]}, v{x[0]}, v{x[1]}, v{x[2]}")
    for j in range(4):
        for mt in range(3):
            x = sv(mt); Q.append(f"v_max3_f32 v{m[mt]}, v{m[mt]}, v{x[3+2*j]}, v{x[4+2*j]}")
    for mt in range(3): Q.append(f"v_max_f32 v{m[mt]}, v{m[mt]}, v{sv(mt)[11]}")
    def xred(op):
        o = []
        for pl in ('v_permlane32_swap_b32', 'v_permlane16_swap_b32'):
            o += [f"v_mov_b32 v{t[mt]}, v{m[mt]}" for mt in range(3)]
            o += [f"{pl} v{m[mt]}, v{t[mt]}" for mt in range(3)]
            o += [f"{op} v{m[mt]}, v{m[mt]}, v{t[mt]}" for mt in range(3)]
        return o
    Q += xred('v_max_f32')
    Q += [f"v_mul_f32 v{m[mt]}, s{sSC}, v{m[mt]}" for mt in range(3)]
    for j in range(12):
        Q += [f"v_fma_f32 v{sv(mt)[j]}, v{sv(mt)[j]}, s{sSC}, -v{m[mt]}" for mt in range(3)]
        Q += [f"v_exp_f32 v{sv(mt)[j]}, v{sv(mt)[j]}" for mt in range(3)]
    Q += [f"v_add_f32 v{m[mt]}, v{sv(mt)[0]}, v{sv(mt)[1]}" for mt in range(3)]
    for j in range(2, 12):
        Q += [f"v_add_f32 v{m[mt]}, v{m[mt]}, v{sv(mt)[j]}" for mt in range(3)]
    Q += xred('v_add_f32')
    Q += [f"v_rcp_f32 v{m[mt]}, v{m[mt]}" for mt in range(3)]
    for mt in range(3):
        x = sv(mt)
        for j in range(12): Q.append(f"v_mul_f32 v{x[j]}, v{x[j]}, v{m[mt]}")
        for j in range(6): Q.append(f"v_cvt_pk_bf16_f32 v{pk + mt*6 + j}, v{x[2*j]}, v{x[2*j+1]}")
        Q.append(I(f"buffer_store_dwordx4 {V(pk + mt*6, 4)}, v{vPA}, s[{sWS}:{sWS+3}], 0 offen offset:{mt*1536} sc1", tag="pst"))
        Q.append(I(f"buffer_store_dwordx2 {V(pk + mt*6 + 4, 2)}, v{vPB}, s[{sWS}:{sWS+3}], 0 offen offset:{mt*1536} sc1", tag="pst"))
    return Q

def spin(label, load, cmp_, load2=None, cmp2=None):
    if load2 is not None:
        chk = lambda c: [c, "s_nop 4", "s_cmp_eq_u64 vcc, 0", f"s_cbranch_scc1 {label}_r"]
        return [f"{label}:", f"s_mov_b32 s{sCNT}, 0x40000", "s_waitcnt vmcnt(0)", load, "s_sleep 4", f"{label}_l:", load2, "s_waitcnt vmcnt(1)"] + chk(cmp_) + [load, "s_waitcnt vmcnt(1)"] + chk(cmp2) + [
                f"s_sub_u32 s{sCNT}, s{sCNT}, 1", f"s_cmp_lg_u32 s{sCNT}, 0", f"s_cbranch_scc1 {label}_l", f"s_branch {label}_r"]
    return [f"{label}:", f"s_mov_b32 s{sCNT}, 0x40000", f"{label}_l:", "s_sleep 2", load, "s_waitcnt vmcnt(0)", cmp_, "s_nop 4", "s_cmp_eq_u64 vcc, 0", f"s_cbranch_scc1 {label}_r",
            f"s_sub_u32 s{sCNT}, s{sCNT}, 1", f"s_cmp_lg_u32 s{sCNT}, 0", f"s_cbranch_scc1 {label}_l", f"s_branch {label}_r"]

def build_body(opt):
    st = opt['st']; st.n = 0
    sg = Stager(6)
    P = prologue(opt)
    if opt.get('fake') == 2: P += [f'v_lshlrev_b32 v{vXD}, 4, v0']
    tl = Timeline()
    LA = opt['LA']
    for ks in range(14):
        for t in range(16):
            T = ks * 16 + t
            af = vFR + (T % NS) * 4
            for mt in range(3):
                c = '0' if ks == 0 else V(acc(t, mt), 4)
                idx = tl.add(f"v_mfma_f32_16x16x32_bf16 {V(acc(t, mt), 4)}, {V(af, 4)}, {A(xreg(ks, mt), 4)}, {c}")
                if mt < 2 and T + LA < 224: tl.at(idx, SA(tr_reads(T + LA)[mt]))
                if opt['pw'] and mt == 2 and T % 2 == 1 and T + 2 < 224: tl.at(idx, PinW(f"ta{T+2}"))
        pre = ([WaitTag(f"slab{ks+1}")] if ks < 13 else []) + ["s_barrier"]
        if ks == 0:
            if opt['b0']:
                tl.at(26, *pre); pre = [WaitTag("slab0"), "s_barrier"]
            pre += (st() if 0 in opt['stk'] else []) + flat([tr_reads(T) for T in range(LA)])
        tl.at(ks * 48 - 1, *pre)
    b13 = 13 * 48
    cv = []
    for sp in range(8):
        for mt in range(3):
            t0, t1 = acc(2 * sp, mt), acc(2 * sp + 1, mt)
            cv += [f"v_cvt_pk_bf16_f32 v{t0}, v{t0}, v{t0+1}", f"v_cvt_pk_bf16_f32 v{t0+1}, v{t0+2}, v{t0+3}",
                   f"v_cvt_pk_bf16_f32 v{t0+2}, v{t1}, v{t1+1}", f"v_cvt_pk_bf16_f32 v{t0+3}, v{t1+2}, v{t1+3}"]
        sw = [f"s_mov_b64 exec, s[{sODD}:{sODD+1}]"]
        for mt in range(3):
            t0 = acc(2 * sp, mt)
            sw += [f"v_swap_b32 v{t0}, v{t0+2}", f"v_swap_b32 v{t0+1}, v{t0+3}"]
        sw.append("s_mov_b64 exec, -1")
        cv.append(sw)
    pos = b13 + 10; cnt = 0
    for c in cv:
        if isinstance(c, list): tl.at(pos, *c); pos += 3; cnt = 0
        else:
            tl.at(pos, c); cnt += 1
            if cnt == 2: cnt = 0; pos += 1
    sacc = lambda kt, mt: acc(2 * kt + 1, mt)
    for sp in range(8):
        for mt in range(3):
            for kt in range(3):
                c = '0' if sp == 0 else V(sacc(kt, mt), 4)
                tl.add(f"v_mfma_f32_16x16x32_bf16 {V(sacc(kt, mt), 4)}, {A(kreg(sp, kt), 4)}, {V(acc(2*sp, mt), 4)}, {c}")
    if 1 in opt['stk']: tl.at(b13 + 47, *st())
    s3 = setup3(opt)
    p0 = pos + 1
    for q in range(0, len(s3), 3): tl.at(min(p0 + q // 3, 743), *s3[q:q+3])
    tl.at(70, Atomic(tagpub(opt)))
    tagld = f"buffer_load_dword v{vF}, off, s[{sDBG}:{sDBG+3}], 0 sc1"
    tl.at(640, tagld)
    f0 = acc(7, 0)
    sm = softmax_block(sacc, [f0, f0 + 1, f0 + 2], [f0 + 3, f0 + 4, f0 + 5], 154)
    sm_start = len(tl.main)
    nex = opt['smx']
    for q in range(0, nex, 4):
        idx = tl.add(sm[q]); tl.at(idx, *sm[q+1:min(q+4, nex)])
    for _ in range(opt['gap']): tl.add(None)
    s2s = len(tl.main)
    sm_end = s2s
    for q in range(nex, len(sm), opt['smw']):
        tl.at(sm_end, *sm[q:q+opt['smw']]); sm_end += 1
    sm_end = max(sm_end, s2s - opt['gap'])
    oline = []
    tagchk = [f"v_cmp_eq_u32 vcc, 0, v{vF}", "s_cmp_eq_u64 vcc, 0", "s_cbranch_scc0 Ltag", "Ltag_r:", f"v_readfirstlane_b32 s{sTAG}, v{vF}"]
    oline += spin("Ltag", tagld, f"v_cmp_eq_u32 vcc, 0, v{vF}")
    tl.at(sm_start - 1, *tagchk)
    kstart = {}
    oinit = set()
    NMAJ[0] = opt['nmaj']; pudone = {}
    def pu(us, nts=range(7)):
        for nt in nts:
            for u in us:
                ub = vUB + nt * 12 + u * 4
                for mt in range(3):
                    c = A(oacc(nt, mt), 4) if (nt, mt) in oinit else '0'
                    oinit.add((nt, mt))
                    pudone[nt] = tl.add(f"v_mfma_f32_16x16x32_bf16 {A(oacc(nt, mt), 4)}, {V(ub, 4)}, {A(aP + mt*12 + u*4, 4)}, {c}")
    pustart = {}; kend = {}; vuse = {}
    def utile(sig, nt, F):
        hn, s = divmod(sig, 8)
        bf = vFR + (F % NS) * 4
        for kt in range(3):
            c = '0' if s == 0 else V(uacc(kt, nt), 4)
            idx = tl.add(f"v_mfma_f32_16x16x32_bf16 {V(uacc(kt, nt), 4)}, @V@, {V(bf, 4)}, {c}"); vuse.setdefault((sig, kt), []).append(idx)
            if kt < 2 and F + LA < 224: tl.at(idx, SA(wo_reads(F + LA)[kt]))
            if opt['pw'] and kt == 2 and F % 2 == 1 and F + 2 < 224: tl.at(idx, PinW(f"tb{F+2}"))
        if s == 7:
            ub = vUB + nt * 12 + (hn % 2) * 6
            for kt in range(3):
                u = uacc(kt, nt)
                tl.at(idx + 4 + kt, f"v_cvt_pk_bf16_f32 v{ub+2*kt}, v{u}, v{u+1}", f"v_cvt_pk_bf16_f32 v{ub+2*kt+1}, v{u+2}, v{u+3}")
    for hn in range(4):
        for s in range(8):
            sig = hn * 8 + s
            if sig == opt['pu0']:
                pustart[1] = len(tl.main); pu([0, 1, 2]); puend0 = len(tl.main)
            kstart[sig] = len(tl.main) if not (opt['nmaj'] and sig > 28) else kstart[28]
            if opt['nmaj'] and sig == 28:
                for nt in range(7):
                    for s_ in range(4): utile(28 + s_, nt, 196 + nt * 4 + s_)
                    if nt == 1: pustart[3] = len(tl.main)
                    if nt >= 1: pu([0, 1, 2], [nt - 1])
                pu([0, 1, 2], [6])
            elif not (opt['nmaj'] and sig > 28):
                for nt in range(7): utile(sig, nt, sig * 7 + nt)
        if hn != 1 and not (hn == 3 and opt['nmaj']): pustart[hn] = len(tl.main)
        if hn == 3 and not opt['nmaj']: pu([0, 1, 2])
    kstart[32] = len(tl.main)
    PK, TMP = 172, 216
    CS, R11 = 18, 20
    tl.at(pustart[3], f"v_mov_b32 v{R11}, s{sTAG}", f"v_mov_b32 v{R11+1}, 0", f"v_mov_b32 v{R11+2}, 0", f"s_mul_i32 s{sT0}, s{sTAG}, -15", f"s_mov_b32 s{sODD}, 0x1111", f"s_mov_b32 s{sODD+1}, 0")
    for nt in range(7):
        seq = []
        for mt in range(3):
            tile = nt * 3 + mt
            t4 = vUB + nt * 12 + mt * 4
            seq += [f"v_accvgpr_read_b32 v{t4+r}, a{oacc(nt, mt)+r}" for r in range(4)]
            seq += [f"v_cvt_pk_bf16_f32 v{PK+2*tile}, v{t4}, v{t4+1}", f"v_cvt_pk_bf16_f32 v{PK+2*tile+1}, v{t4+2}, v{t4+3}"]
            if tile % 2 == 1 or tile == 20:
                pr = tile // 2
                c0 = f"v{CS}" if pr else "0"
                seq += [f"v_add3_u32 v{CS}, v{PK+4*pr}, v{PK+4*pr+1}, {c0}", f"v_add3_u32 v{CS}, v{PK+4*pr+2}, v{PK+4*pr+3}, v{CS}"]
                seq += [I(f"buffer_store_dwordx4 {V(PK+4*pr, 4)}, v{vST}, s[{sWS}:{sWS+3}], 0 offen offset:{pr*256} sc1", tag="part"),
                        I(f"ds_write_b128 v{vLW}, {V(PK+4*pr, 4)} offset:{pr*1024}", tag="ownw")]
        p0_ = pudone[nt] + 3
        w_ = 2 if opt['nmaj'] else 3
        for q in range(0, len(seq), w_): tl.at(p0_ + q // w_, *seq[q:q+w_])
    for j in range(7):
        base = kstart[4 * j]
        if j == 0: pre = [WaitTag("sup0", "sup1"), "s_barrier"] + (st() if 2 in opt['stk'] else []) + flat([wo_reads(F) for F in range(LA)])
        else: pre = [WaitTag(f"sup{j+1}"), "s_barrier"]
        tl.at(base - 1, *pre)
    tl.at(sm_end + opt['pubd'], WaitTag("pst"), f"v_mov_b32 v{vF}, s{sTAG}", f"s_lshl_b32 s{sT0}, s{sHH}, 7", "s_mov_b64 exec, 1",
          f"buffer_store_dword v{vF}, v{vF1A}, s[{sWS}:{sWS+3}], s{sT0} offen sc1", "s_mov_b64 exec, -1")
    pace = {'m': opt['mp'], 'h': opt['hp']}; lag = {'m': opt['ml'], 'h': opt['hl']}
    cur = opt['start']; rdpos = []; rep = []
    f1ld = f"buffer_load_dword v{vF}, v{vF1A}, s[{sWS}:{sWS+3}], 0 offen sc1"
    f1cmp = f"v_cmp_ne_u32 vcc, s{sTAG}, v{vF}"
    posl = []
    INF = 10**9
    p0min = s2s + opt['p0at']
    pool = {}
    for r in range(8, 132, 4): pool[r] = (48 * (r // 12 + 1), INF)
    if opt['pools']:
        for r in range(132, 168, 4): pool[r] = (48 * (r // 12 + 1), p0min)
        for r in range(168, 252, 4): pool[r] = (672 + 9 * (((r - 168) // 4) // 3 + 1), pustart[1])
        for r in (0, 4): pool[r] = (744, INF)
        pool[252] = (744, INF)
    base_pol = {k: opt[k] for k in ('wq_pol', 'x_pol', 'v_pol', 'wo_pol')}
    for n_, (kind, idx, cls) in enumerate(opt['sched']):
        posl.append(f'{kind}{idx}@{cur}')
        for k_ in base_pol: opt[k_] = ' nt' if (cls == 'm' and k_[0] in opt.get('mnt', '') or (k_ == 'wo_pol' and cls == 'm' and 'o' in opt.get('mnt', ''))) and not (k_ == 'wo_pol' and 'o' not in opt.get('mnt', '')) else base_pol[k_]
        if kind == 'W':
            if idx >= RING: cur = max(cur, 48 * (idx - RING + 1))
            for it in g_w(idx, opt): tl.at(cur, *it); cur += pace[cls]
            rep.append(f"W{idx}:{48*max(idx-1,0) - 1 - (cur - pace[cls])}")
            assert 48*max(idx-1,0) - 1 - (cur - pace[cls]) > 0, rep[-1]
        elif kind == 'O':
            e = {0: 48 * 9, 1: 48 * 11, 2: 48 * 13}.get(idx)
            if e is None: e = kstart[4 * (idx - 3)]
            cur = max(cur, e)
            for it in g_wo(idx, opt): tl.at(cur, *it); cur += pace[cls]
            rep.append(f"O{idx}:{kstart[4*max(idx-1,0)] - 1 - (cur - pace[cls])}")
            assert kstart[4*max(idx-1,0)] - 1 - (cur - pace[cls]) > 0, rep[-1]
        elif kind == 'Y':
            pace['m'], pace['h'] = divmod(idx, 10)
        elif kind == 'Z':
            cur = max(cur, s2s + idx - 100)
        elif kind == 'F':
            cur = max(cur, idx + s2s)
            tl.at(cur, f1ld); cur += lag['h']
            tl.at(cur, f1cmp, "s_cmp_eq_u64 vcc, 0", "s_cbranch_scc0 Lf1", "Lf1_r:")
            oline += spin("Lf1", f1ld, f1cmp)
        elif kind == 'P':
            if idx >= 2: cur = max(cur, puend0)
            if idx == 0: assert cur >= p0min, (cur, p0min)
            for it in g_p(idx, opt): tl.at(cur, *it); cur += pace[cls]
            rep.append(f"P{idx}:{pustart[1 if idx < 2 else 3] - cur}")
            assert pustart[1 if idx < 2 else 3] - cur > 8, rep[-1]
        else:
            kind0, idx0 = kind, idx
            for q in range(4 if kind0 in 'LU' else 3):
                if kind0 == 'L': kind, idx, q = 'K', q, idx0
                if kind0 == 'U': kind, idx, q = 'V', (idx0 // 3) * 4 + q, idx0 % 3
                if kind == 'X':
                    iss, rd = sg.tile(vXD, sX, [f"s_add_u32 s{sSO2}, s{sXO+idx}, {q*14336}" if idx else f"s_mov_b32 s{sSO2}, {q*14336}"], opt['x_pol'], A(xreg(2*idx, q), 4), A(xreg(2*idx+1, q), 4))
                    dl = 96 * idx - 6; er = -9999
                elif kind == 'K':
                    iss, rd = sg.tile(vKD, sK, [f"s_mov_b32 s{sSO2}, {q*8192 + idx*128}"], opt['k_pol'], A(kreg(2*idx, q), 4), A(kreg(2*idx+1, q), 4))
                    dl = 672 + 18 * idx - 6; er = 48 if (idx == 3 and q >= 1) else -9999
                else:
                    hn, j = divmod(idx, 4)
                    so = ([f"s_mul_i32 s{sVH}, s{sHB+hn}, 24576", f"s_add_u32 s{sVH}, s{sVH}, s{sVU+j}"] if (q == 0 or kind0 == 'U') else []) + [f"s_add_u32 s{sSO2}, s{sVH}, {q*8192}"]
                    dl = kstart[2 * idx] - 6
                    er = -9999; dst = []
                    for e in range(2):
                        last_use = vuse[(2 * idx + e, q)][-1] + 1
                        cand = [r for r in pool if pool[r][1] >= last_use]
                        want = cur + lag[cls]
                        rdy = [r for r in cand if pool[r][0] <= want]
                        r = min(rdy, key=lambda r: (pool[r][1], pool[r][0])) if rdy else min(cand, key=lambda r: pool[r][0])
                        er = max(er, pool[r][0]); pool[r] = (last_use, pool[r][1]); dst.append(r)
                        for i_ in vuse[(2 * idx + e, q)]: tl.main[i_] = tl.main[i_].replace('@V@', A(r, 4))
                    iss, rd = sg.tile(vVD, sV, so, opt['v_pol'], A(dst[0], 4), A(dst[1], 4))
                n = len(rdpos)
                if n >= sg.nsl: cur = max(cur, rdpos[n - sg.nsl] + 4)
                cur = max(cur, er - lag[cls])
                tl.at(cur, *iss[0]); tl.at(cur, *iss[1]); last = cur; cur += 2 * pace[cls]
                rp = max(min(last + pace[cls] + lag[cls], dl), er, last)
                if rdpos: rp = max(rp, rdpos[-1])
                if rp == -1: rp = -2
                if rp > dl and dl >= 0: print("LATE", kind, idx, q, rp, dl)
                assert rp <= dl + 5 or dl < 0, (kind, idx, rp, dl)
                tl.at(rp, *rd); rdpos.append(rp)
                rep.append(f"{kind}{idx}.{q}:{rp - last}")
        if n_ == 2: tl.at(cur - 1, *setup1(opt))
        if n_ == opt['s2at']: assert cur - 1 < -2; tl.at(cur - 1, *setup2(opt))
    for sp_ in opt.get('stp', ()): tl.at(sp_, *st())
    if opt.get('verbose') == 2: print(' '.join(posl))
    if opt.get('verbose') == 1: print(" ".join(rep), "end", cur, "s2s", s2s, "total", len(tl.main))
    if opt['smooth']: print('overflow slots', smooth(tl))
    body = tl.flat()
    if opt.get('strip') == 1:
        txt = lambda x: x if isinstance(x, str) else getattr(x, 'txt', '')
        body = [x for x in body if not (txt(x).startswith('v_mfma') or txt(x).startswith('ds_read_b64_tr') or txt(x).startswith('v_cvt') or txt(x).startswith('v_exp') or txt(x).startswith('v_swap'))]
    if opt.get('fake'):
        import re as _re
        nb = []
        for x in body:
            t = x if isinstance(x, str) else getattr(x, 'txt', '')
            if t.startswith('buffer_load_dwordx4') and ' lds' in t:
                t2 = _re.sub(r'buffer_load_dwordx4 v\d+, (s\[\d+:\d+\]), s\d+', (r'buffer_load_dwordx4 v0, \1, 0' if opt['fake'] == 1 else r'buffer_load_dwordx4 v%d, \1, 0' % vXD), t).replace(' nt', '')
                y = I(t2); y.tag = x.tag; nb.append(y)
            else: nb.append(x)
        body = nb
    if opt.get('drop'):
        srds = {'x': sX, 'w': sWQ, 'k': sK, 'v': sV, 'o': sWO}
        pats = [f"s[{srds[c]}:{srds[c]+3}]" for c in opt['drop'] if c in srds]
        nb = []
        for x in body:
            t = x if isinstance(x, str) else getattr(x, 'txt', '')
            if t.startswith('buffer_load_dwordx4') and ' lds' in t and any(p_ in t for p_ in pats):
                y = I("s_nop 0"); y.tag = x.tag; nb.append(y)
            else: nb.append(x)
        body = nb
    if opt.get('strip') == 2:
        nb = []
        for x in body:
            t = x if isinstance(x, str) else getattr(x, 'txt', '')
            if t.startswith('buffer_load_dwordx4') and ' lds' in t:
                y = I("s_nop 0"); y.tag = x.tag; nb.append(y)
            else: nb.append(x)
        body = nb
    P += body + (st() if 3 in opt['stk'] else [])
    f2ld = f"buffer_load_dword v{vF}, v{vF2A}, s[{sWS}:{sWS+3}], 0 offen sc1"
    t_ = CS + 1
    P += [f"v_add_u32_dpp v{CS}, v{CS}, v{CS} quad_perm:[1,0,3,2] row_mask:0xf bank_mask:0xf", f"v_add_u32_dpp v{CS}, v{CS}, v{CS} quad_perm:[2,3,0,1] row_mask:0xf bank_mask:0xf"]
    for pl in ('v_permlane32_swap_b32', 'v_permlane16_swap_b32'):
        P += [f"v_mov_b32 v{t_}, v{CS}", f"{pl} v{CS}, v{t_}", f"v_add_u32 v{CS}, v{CS}, v{t_}"]
    P += [f"v_sub_u32 v{CS}, s{sT0}, v{CS}", f"v_cndmask_b32 v{R11+3}, 0, v{CS}, s[{sODD}:{sODD+1}]",
          f"buffer_store_dwordx4 {V(R11, 4)}, v{vST}, s[{sWS}:{sWS+3}], 0 offen offset:2816 sc1", f2ld]
    OWN, ACC, RX = 216, 228, 64
    P += [WaitTag("ownw")] + [f"ds_read_b128 {V(OWN + 4*i, 4)}, v{vLR} offset:{i*4096}" for i in range(3)]
    for k in range(3): P += [f"s_add_u32 s{sHB+k}, s{sHQ}, {k+1}", f"s_and_b32 s{sHB+k}, s{sHB+k}, 3", f"s_mul_i32 s{sHB+k}, s{sHB+k}, 3072"]
    P += [f"s_mov_b32 s{sVU}, 0x3f80", f"s_mov_b32 s{sVU+1}, 0x3f800000", f"s_mul_i32 s{sVU+2}, s{sTAG}, 3", f"s_mov_b32 s{sVU+3}, 64"]
    NP = opt['npoll']
    pr_ = [vF] + [24 + q for q in range(NP - 1)]
    for q in range(1, NP): P += [f"s_sleep {opt['psl']}", f2ld.replace(f"v{vF},", f"v{pr_[q]},")]
    for q in range(NP - 1): P += [f1cmp.replace(f"v{vF}", f"v{pr_[q]}"), "s_cmp_eq_u64 vcc, 0", "s_cbranch_scc1 Lf2_r"]
    P += [f1cmp.replace(f"v{vF}", f"v{pr_[-1]}"), "s_cmp_eq_u64 vcc, 0", "s_cbranch_scc0 Lf2", "Lf2_r:"]
    oline += spin("Lf2", f2ld, f1cmp, f2ld.replace(f"v{vF},", f"v{vF1A},"), f1cmp.replace(f"v{vF}", f"v{vF1A}"))
    P += (st() if 4 in opt['stk'] else [])
    P += ["Lrt:"]
    for i in range(3):
        for k in range(3):
            P += [f"buffer_load_dwordx4 {V(RX + (i*3+k)*4, 4)}, v{vLD}, s[{sWS}:{sWS+3}], s{sHB+k} offen offset:{i*1024} sc1"]
    for r in range(12): P += [f"v_lshlrev_b32 v{ACC+2*r}, 16, v{OWN+r}", f"v_and_b32 v{ACC+2*r+1}, 0xffff0000, v{OWN+r}"]
    OB = 100
    for i in range(3):
        for k in range(3):
            for r in range(4):
                x = RX + (i*3+k)*4 + r
                P += [f"v_dot2c_f32_bf16 v{ACC+8*i+2*r}, s{sVU}, v{x}", f"v_dot2c_f32_bf16 v{ACC+8*i+2*r+1}, s{sVU+1}, v{x}"]
        for r in range(4): P += [f"v_cvt_pk_bf16_f32 v{OB+4*i+r}, v{ACC+8*i+2*r}, v{ACC+8*i+2*r+1}"]
        for e in range(2): P += [f"buffer_store_dwordx2 {V(OB+4*i+2*e, 2)}, v{vOUT+2*i+e}, s[{sOUT}:{sOUT+3}], 0 offen{opt['out_pol']}"]
    P += [f"v_add3_u32 v{CS}, v{RX}, v{RX+1}, 0"] + [f"v_add3_u32 v{CS}, v{RX+2*q}, v{RX+2*q+1}, v{CS}" for q in range(1, 18)]
    P += [f"v_add_u32_dpp v{CS}, v{CS}, v{CS} quad_perm:[1,0,3,2] row_mask:0xf bank_mask:0xf", f"v_add_u32_dpp v{CS}, v{CS}, v{CS} quad_perm:[2,3,0,1] row_mask:0xf bank_mask:0xf",
          f"v_add_u32_dpp v{CS}, v{CS}, v{CS} row_half_mirror row_mask:0xf bank_mask:0xf", f"v_add_u32_dpp v{CS}, v{CS}, v{CS} row_mirror row_mask:0xf bank_mask:0xf"]
    for pl in ('v_permlane32_swap_b32', 'v_permlane16_swap_b32'):
        P += [f"v_mov_b32 v{t_}, v{CS}", f"{pl} v{CS}, v{t_}", f"v_add_u32 v{CS}, v{CS}, v{t_}"]
    P += [f"v_cmp_ne_u32 vcc, s{sVU+2}, v{CS}", "s_cmp_eq_u64 vcc, 0", "s_cbranch_scc0 Lretry", "Lretry_r:"]
    oline += ["Lretry:", "s_waitcnt vmcnt(0)", f"s_sub_u32 s{sVU+3}, s{sVU+3}, 1", f"s_cmp_eq_u32 s{sVU+3}, 0", "s_cbranch_scc1 Lretry_r", "s_sleep 8", "s_branch Lrt"]
    P += (st() if 5 in opt['stk'] else []) + st.dump() + ["Lend:", "s_endpgm"]
    lines, stats = finalize(P, quiet=bool(opt.get('strip')))
    print(stats, len(lines))
    lines += oline + ['Lcodeend:']
    return lines

def build(opt):
    import re as _re
    scheds = opt['sched']
    nvar = len(scheds)
    lines = []
    if nvar > 1:
        sh, w = opt['vsel']
        lines += ["s_cmp_ge_u32 s2, 256", "s_cbranch_scc0 Lgo", "s_endpgm", "Lgo:", f"s_bfe_u32 s3, s2, {hex((w << 16) | sh)}"]
        for v in range(1, nvar):
            lines += [f"s_cmp_eq_u32 s3, {v}", f"s_cbranch_scc0 Lsk{v}", f"s_getpc_b64 s[4:5]", f"Lpc{v}:", f"s_add_u32 s4, s4, Lvar{v}-Lpc{v}", "s_addc_u32 s5, s5, 0", "s_setpc_b64 s[4:5]", f"Lsk{v}:"]
    for v in range(nvar):
        o = dict(opt); o['sched'] = scheds[v]
        if v and opt.get('drop1'): o['drop'] = opt['drop1']
        body = build_body(o)
        if nvar > 1:
            body = [_re.sub(r'\b(L(?:end|notag|tag|f1|f2|pcf|codeend|rt|retry)(?:_[lr])?)\b', lambda m: m.group(1) + f"_v{v}", l) for l in body]
            lines += [".p2align 6", f"Lvar{v}:"] if v else []
        lines += body
    hdr = open('concat_heads__mha_block_cached__gqa_block_cached__near_ridge.s.ref').read().split('; Override')[0]
    txt = hdr + "; @launch grid=(256,1,1) block=(256,1,1) lds=163840\n" + '.amdgcn_target "amdgcn-amd-amdhsa--gfx950"\n.text\n'
    txt += f".globl {NAME}\n.p2align 8\n.type {NAME},@function\n{NAME}:\n" + "\n".join("  " + l if not l.endswith(':') else l for l in lines) + "\n"
    txt += (f'.section .rodata,"a"\n.p2align 6\n.amdhsa_kernel {NAME}\n  .amdhsa_next_free_vgpr 512\n  .amdhsa_next_free_sgpr 102\n  .amdhsa_accum_offset 256\n'
            "  .amdhsa_group_segment_fixed_size 0\n  .amdhsa_kernarg_size 104\n  .amdhsa_user_sgpr_count 2\n  .amdhsa_user_sgpr_kernarg_segment_ptr 1\n"
            "  .amdhsa_system_sgpr_workgroup_id_x 1\n.end_amdhsa_kernel\n")
    return txt

def parse_sched(s):
    out = []
    for t in s.split():
        k, rest = t[0], t[1:]
        cls = 'h'
        if rest.endswith('m'): cls = 'm'; rest = rest[:-1]
        out.append((k, int(rest), cls))
    return out
SCHED = ("X0m W0m W1m X1m W2m W3m X2m W4m W5m W6 X3 W7 W8 X4 W9 W10 X5 W11 X6 W12 W13 K0m K1m K2m K3m V0m O0m O1m V4m V1 V2 V3 O2m "
         "O3m V5 V6 F60 V7 P0 P1 V8m O4 V9 O5 V10 V11 V12m O6 P2 P3 V13 O7 V14 V15")

if __name__ == "__main__":
    opt = dict(wq_pol='', x_pol='', k_pol=' nt', v_pol='', wo_pol='', rot=1, nlock=2, hrot=1, urot=1, st=Stamps(False), stk=(0, 1, 2, 4, 5), mp=7, hp=3, ml=80, hl=36, gap=80, nmaj=1, npoll=1, psl=4, LA=4, otr=0, b0=1, out_pol='', pw=1, smooth=1, smx=0, smw=2, pu0=23, p0at=370, pools=1,
               start=-160, verbose=1, s2at=3, pubd=30, sched=SCHED)
    for kv in sys.argv[2:]:
        k, v = kv.split('=')
        if k == 'st': opt['st'] = Stamps(True); opt['stk'] = tuple(int(x) for x in v.split(','))
        elif k == 'stp': opt['st'] = Stamps(True); opt['stk'] = (); opt['stp'] = tuple(int(x) for x in v.split(','))
        elif k in ('sched', 'mnt', 'drop', 'drop1'): opt[k] = v
        else: opt[k] = ((' ' + v) if v else '') if k.endswith('pol') else int(v)
    if opt.get('rt'): opt['st'].rt = opt['rt']
    opt['st'].dbg = opt.get('dbg', 0)
    opt['sched'] = [parse_sched(x) for x in opt['sched'].split('|')]
    opt['vsel'] = (opt.get('vsh', 3), 1 if len(opt['sched']) == 2 else 2)
    open(sys.argv[1], "w").write(build(opt))
```

```python
import struct, sys
from fw import *

def fbits(x): return struct.unpack('<I', struct.pack('<f', x))[0]
SZ_X, SZ_KV, SZ_W, SZ_OUT, SZ_WS = 1376256, 12582912, 3670016, 2752512, 268435456
SCALE = 1.4426950408889634 / 16.0
PART_OFF = 8 << 20
FLAG1_OFF = 40 << 20
FLAG2_OFF = 41 << 20
TAG_OFF = 42 << 20
NAME = "concat_heads__mha_block_cached__gqa_block_cached__near_ridge_kernel"

sX, sWQ, sK, sWS, sV, sWO, sOUT = 4, 8, 12, 16, 64, 68, 72
sHQ, sP, sHH, sBG, sH, sW, sB = 20, 21, 22, 23, 24, 25, 26
sM0B, sODD, sSC, sT0, sT1 = 27, 28, 30, 31, 32
sSTG, sWOM, sSO2 = 33, 34, 35
sWQO = 36
sXO = 50
sTAG, sCNT, sSO = 57, 62, 63
sDBG = 76
sHB = 80
sVU = 84
sWOR = 88
sVH, sWH = 90, 91
STAMP_REGS = [92, 94, 96, 98, 100]

vTR, vTRH, vW, vXD, vKD, vSR, vVD, vWO, vPA, vPB, vF = 2, 10, 18, 22, 24, 26, 28, 30, 37, 38, 39
vFR, NS = 40, 6
vACC = 64
vT = 64
def acc(t, mt): return vACC + (t * 3 + mt) * 4
def xreg(j, mt): return (j * 3 + mt) * 4
def kreg(s, kt):
    f = s * 3 + kt
    return 168 + 4 * f if f < 22 else 4 * (f - 22)
vTW, vTWH, vP2A, vP2B, vST, vF1A, vF2A, vLD, vOUT, vLW, vLR = 2, 3, 4, 5, 6, 7, 8, 9, 10, 16, 17
vOR, vOG = 18, 21
vU = 172
vUB = 64
def uacc(kt, nt): return vU + (nt * 3 + kt) * 4
def oacc(nt, mt): return 168 + (nt * 3 + mt) * 4
aV, NVF = 8, 31
aP = 132
def vfrag(sig, kt): return aV + ((sig * 3 + kt) % NVF) * 4
RING, SLAB = 7, 16384
SUP, R2 = 28672, 4
STG = 114688

flat = lambda gs: [x for g in gs for x in g]
def srd(d, lo, size):
    return [f"s_mov_b32 s{d}, s{lo}", f"s_mov_b32 s{d+1}, s{lo+1}", f"s_mov_b32 s{d+2}, {size}", f"s_mov_b32 s{d+3}, 0x20000"]

class Stamps:
    def __init__(self, on): self.on = on; self.n = 0; self.pend = []
    def __call__(self):
        if not self.on: return []
        r = STAMP_REGS[self.n % len(STAMP_REGS)]
        out = []
        if self.n >= len(STAMP_REGS): raise RuntimeError("too many stamps")
        self.n += 1
        if getattr(self, 'rt', 0) == 2 or (getattr(self, 'rt', 0) == 1 and self.n in (2, 4)): return [f"s_memrealtime s[{r}:{r+1}]"]
        return [f"s_memtime s[{r}:{r+1}]"]
    def dump(self):
        if not self.on: return []
        if getattr(self, 'dbg', 0):
            R = STAMP_REGS
            P = [Fence(), "s_mov_b64 exec, 1", "v_mov_b32 v3, 0", f"s_not_b32 s{sT0}, s{R[0]}", f"v_mov_b32 v2, s{sT0}", f"buffer_atomic_umax v2, v3, s[{sDBG}:{sDBG+3}], 0 offen offset:8",
                 f"v_mov_b32 v4, s{R[self.n-1]}", f"buffer_atomic_umax v4, v3, s[{sDBG}:{sDBG+3}], 0 offen offset:12"]
            for i in range(1, self.n):
                P += [f"s_sub_u32 s{sT0}, s{R[i]}, s{R[0]}", f"v_mov_b32 v{4+i}, s{sT0}", f"buffer_atomic_umax v{4+i}, v3, s[{sDBG}:{sDBG+3}], 0 offen offset:{12+4*i}",
                      f"buffer_atomic_add v{4+i}, v3, s[{sDBG}:{sDBG+3}], 0 offen offset:{32+4*i}"]
            return P
        P = [Fence(), f"s_lshl_b32 s{sT0}, s2, 2", f"s_add_u32 s{sT0}, s{sT0}, s{sW}", f"s_lshl_b32 s{sT0}, s{sT0}, 7", f"s_add_u32 s{sT0}, s{sT0}, {64 << 20}", "v_mov_b32 v3, 0"]
        for i in range(self.n):
            P += [f"v_mov_b32 v2, s{STAMP_REGS[i]}", f"buffer_store_dword v2, v3, s[{sWS}:{sWS+3}], s{sT0} offen offset:{4*i}"]
        return P

def prologue(opt):
    P = ["s_cmp_ge_u32 s2, 256", "s_cbranch_scc1 Lend",
         "s_load_dwordx16 s[36:51], s[0:1], 0", "s_load_dwordx8 s[52:59], s[0:1], 64", "s_load_dwordx2 s[60:61], s[0:1], 96"] + opt['st']() + [
         f"s_and_b32 s{sHQ}, s2, 3", f"s_bfe_u32 s{sP}, s2, 0x10002", f"s_bfe_u32 s{sHH}, s2, 0x20003", f"s_lshr_b32 s{sBG}, s2, 5",
         f"s_lshl_b32 s{sH}, s{sHQ}, 2", f"s_add_u32 s{sH}, s{sH}, s{sHH}",
         "v_lshrrev_b32 v1, 6, v0", f"v_readfirstlane_b32 s{sW}, v1", "v_and_b32 v1, 63, v0",
         f"s_lshl_b32 s{sB}, s{sBG}, 2", f"s_add_u32 s{sB}, s{sB}, s{sW}"]
    a, b, c, d = vT, vT + 1, vT + 2, vT + 3
    if opt.get('cpf'):
        P += ["s_getpc_b64 s[88:89]", "Lpcf:", f"s_lshr_b32 s{sT0}, s2, 3", f"s_lshl_b32 s{sT0}, s{sT0}, 2", f"s_add_u32 s{sT0}, s{sT0}, s{sW}", f"s_lshl_b32 s{sT0}, s{sT0}, 9",
              f"v_and_b32 v{a}, 3, v1", f"v_lshlrev_b32 v{a}, 7, v{a}", f"v_add_u32 v{a}, s{sT0}, v{a}", f"v_min_u32 v{a}, Lcodeend-Lpcf-4, v{a}", XI(f"global_load_dword v{vF}, v{a}, s[88:89]")]
    P += [f"s_mul_i32 s{sSTG}, s{sW}, 12288", f"s_add_u32 s{sSTG}, s{sSTG}, {STG}", f"s_mul_i32 s{sT0}, s{sB}, 43008"]
    P += stage_dma_voff(vXD, 896, sT0)
    P += [f"s_lshl_b32 s{sM0B}, s{sW}, 12", f"s_and_b32 s{sT0}, s{sW}, 1", f"s_lshl_b32 s{sT0}, s{sT0}, 3",
          f"s_lshl_b32 s{sT1}, s{sW}, 16", f"s_lshl_b32 s{sSO}, s{sH}, 9", f"s_add_u32 s{sT1}, s{sT1}, s{sSO}",
          f"v_lshrrev_b32 v{a}, 5, v1", f"v_and_b32 v{b}, 31, v1", f"v_or_b32 v{c}, s{sT0}, v{a}", f"v_xor_b32 v{b}, v{b}, v{c}",
          f"v_lshlrev_b32 v{b}, 4, v{b}", f"v_lshl_add_u32 v{b}, v{a}, 13, v{b}", f"v_add_u32 v{vW}, s{sT1}, v{b}",
          f"v_xor_b32 v{c}, 64, v{vW}", f"v_add_u32 v{vW+1}, {16384-1024}, v{c}", f"v_add_u32 v{vW+2}, {2*(16384-1024)}, v{vW}", f"v_add_u32 v{vW+3}, {3*(16384-1024)}, v{c}"]
    P += [f"v_and_b32 v{a}, 15, v1", f"v_lshrrev_b32 v{b}, 4, v1", f"v_lshrrev_b32 v{c}, 1, v{a}", f"v_xor_b32 v{c}, v{c}, v{b}", f"v_lshlrev_b32 v{c}, 4, v{c}",
          f"v_lshl_add_u32 v{c}, v{a}, 7, v{c}", f"v_add_u32 v{vSR}, s{sSTG}, v{c}", f"v_xor_b32 v{c}, 64, v{c}", f"v_add_u32 v{vSR+1}, s{sSTG}, v{c}"]
    P += [f"s_mov_b32 s{sX+2}, {SZ_X}", f"s_mov_b32 s{sX+3}, 0x20000", f"s_mov_b32 s{sWQ+2}, {SZ_W}", f"s_mov_b32 s{sWQ+3}, 0x20000",
          f"s_mov_b32 s{sT0}, 0", f"s_mov_b32 s{sT1}, {1 << 18}", f"s_cmp_eq_u32 s{sP}, 0",
          f"s_cselect_b64 s[{sX}:{sX+1}], s[36:37], s[46:47]", f"s_cselect_b64 s[{sWQ}:{sWQ+1}], s[42:43], s[52:53]"]
    return P

def setup1(opt):
    P = [f"s_cmp_eq_u32 s{sP}, 0"]
    for i, d_ in ((1, sK), (2, sV), (4, sWO)):
        P.append(f"s_cselect_b64 s[{d_}:{d_+1}], s[{36+2*i}:{37+2*i}], s[{46+2*i}:{47+2*i}]")
    for d_, sz in ((sK, SZ_KV), (sV, SZ_KV), (sWO, SZ_W)):
        P += [f"s_mov_b32 s{d_+2}, {sz}", f"s_mov_b32 s{d_+3}, 0x20000"]
    P += srd(sOUT, 56, SZ_OUT) + srd(sWS, 60, SZ_WS) + srd(sDBG, 58, 256)
    P += [f"s_mov_b32 s{sVH}, {TAG_OFF}", f"buffer_load_dword v{vF}, off, s[{sWS}:{sWS+3}], s{sVH} sc1"]
    P += [f"s_mov_b32 s{sXO+1}, 128", f"s_mov_b32 s{sWQO+2}, {2 << 18}", f"s_mov_b32 s{sWQO+3}, {3 << 18}"]
    return P

def stage_dma_voff(vd, rowstride, sbase):
    a, b, c = vT, vT + 1, vT + 2
    return [f"v_lshrrev_b32 v{a}, 3, v1", f"v_and_b32 v{b}, 7, v1", f"v_lshrrev_b32 v{c}, 4, v1", f"v_xor_b32 v{b}, v{b}, v{c}", f"v_lshlrev_b32 v{b}, 4, v{b}",
            f"v_mul_u32_u24 v{a}, {rowstride}, v{a}", f"v_add3_u32 v{vd}, v{a}, v{b}, s{sbase}", f"v_xor_b32 v{b}, 64, v{b}", f"v_add3_u32 v{vd+1}, v{a}, v{b}, s{sbase}",
            f"v_add_u32 v{vd+1}, {8*rowstride - 1024}, v{vd+1}"]

def setup2(opt):
    P = []
    a, b, c, d, e = vT, vT + 1, vT + 2, vT + 3, vT + 4
    nl = opt['nlock']; nr = 7 - nl
    if opt['rot'] == 3:
        P += [f"s_add_u32 s{sCNT}, s{sHH}, s{sBG}"]
        for _ in range(3): P += [f"s_cmp_ge_u32 s{sCNT}, 3", f"s_cselect_b32 s{sSO}, 3, 0", f"s_sub_u32 s{sCNT}, s{sCNT}, s{sSO}"]
        P += [f"s_lshl_b32 s{sCNT}, s{sCNT}, 1"]
    elif opt['rot'] == 2:
        P += [f"s_add_u32 s{sCNT}, s{sHH}, s{sBG}", f"s_and_b32 s{sCNT}, s{sCNT}, 1", f"s_mul_i32 s{sCNT}, s{sCNT}, 3"]
    elif opt['rot']:
        P += [f"s_lshl_b32 s{sCNT}, s{sHH}, 1", f"s_add_u32 s{sCNT}, s{sCNT}, s{sBG}"]
        for _ in range(3): P += [f"s_cmp_ge_u32 s{sCNT}, {nr}", f"s_cselect_b32 s{sSO}, {nr}, 0", f"s_sub_u32 s{sCNT}, s{sCNT}, s{sSO}"]
    else: P += [f"s_mov_b32 s{sCNT}, 0"]
    P += [f"s_add_u32 s{sCNT}, s{sCNT}, {nl}"]
    for j in range(2, nl):
        P += [f"s_mov_b32 s{sXO+j}, {j*128}", f"s_mov_b32 s{sWQO+2*j}, {j << 19}", f"s_mov_b32 s{sWQO+2*j+1}, {(j << 19) + (1 << 18)}"]
    for j in range(nl, 7):
        P += [f"s_lshl_b32 s{sXO+j}, s{sCNT}, 7", f"s_lshl_b32 s{sWQO+2*j}, s{sCNT}, 19", f"s_add_u32 s{sWQO+2*j+1}, s{sWQO+2*j}, {1 << 18}"]
        if j < 6: P += [f"s_add_u32 s{sCNT}, s{sCNT}, 1", f"s_cmp_eq_u32 s{sCNT}, 7", f"s_cselect_b32 s{sCNT}, {nl}, s{sCNT}"]
    P += [f"v_lshrrev_b32 v{a}, 4, v1", f"v_bfe_u32 v{b}, v1, 2, 2", f"v_and_b32 v{c}, 3, v1",
          f"v_lshl_add_u32 v{d}, v{a}, 3, v{b}", f"v_lshlrev_b32 v{d}, 9, v{d}",
          f"v_and_b32 v{a}, 1, v{a}", f"v_lshlrev_b32 v{a}, 3, v{a}",
          f"v_lshrrev_b32 v{e}, 1, v{b}", f"v_lshl_or_b32 v{a}, v{e}, 2, v{a}",
          f"v_and_b32 v{b}, 1, v{b}", f"v_or_b32 v{a}, v{a}, v{b}",
          f"v_xor_b32 v{a}, v{a}, v{c}", f"v_lshl_add_u32 v{d}, v{a}, 4, v{d}",
          f"v_and_b32 v{c}, 1, v{c}", f"v_lshl_add_u32 v{d}, v{c}, 3, v{d}"]
    for bb in range(4):
        for tau in range(2):
            P.append(f"v_xor_b32 v{vTR + bb*2 + tau}, {(bb << 6) | (tau << 3)}, v{d}")
            P.append(f"v_xor_b32 v{vTRH + bb*2 + tau}, {0x10000 | (bb << 6) | (tau << 3)}, v{d}")
    P += [f"s_lshl_b32 s{sSO}, s{sB}, 4", f"s_add_u32 s{sCNT}, s{sSO}, s{sH}", f"s_mul_i32 s{sSO2}, s{sCNT}, 24576"]
    P += stage_dma_voff(vKD, 512, sSO2)
    P += [f"s_mul_i32 s{sSO2}, s{sHH}, 24576", f"v_subrev_u32 v{vVD}, s{sSO2}, v{vKD}", f"v_subrev_u32 v{vVD+1}, s{sSO2}, v{vKD+1}"]
    P += [f"s_lshl_b32 s{sSO}, s{sP}, 9", f"s_add_u32 s{sSO}, s{sSO}, s{sCNT}", f"s_mul_i32 s{sSO}, s{sSO}, 4608",
          f"v_lshlrev_b32 v{a}, 4, v1", f"v_add_u32 v{vPA}, s{sSO}, v{a}", f"v_lshlrev_b32 v{a}, 3, v1", f"s_add_u32 s{sSO}, s{sSO}, 1024", f"v_add_u32 v{vPB}, s{sSO}, v{a}"]
    P += [f"s_mov_b32 s{sODD}, 0xffff0000", f"s_mov_b32 s{sODD+1}, 0xffff0000", f"s_mov_b32 s{sSC}, {fbits(SCALE)}"]
    for hn in range(4):
        src = sBG if opt['hrot'] else None
        if src is not None: P += [f"s_add_u32 s{sHB+hn}, s{src}, {hn}", f"s_and_b32 s{sHB+hn}, s{sHB+hn}, 3"]
        else: P += [f"s_mov_b32 s{sHB+hn}, {hn}"]
        if opt['urot']: P += [f"s_add_u32 s{sVU+hn}, s{sHH}, {hn}", f"s_and_b32 s{sVU+hn}, s{sVU+hn}, 3", f"s_lshl_b32 s{sVU+hn}, s{sVU+hn}, 7"]
        else: P += [f"s_mov_b32 s{sVU+hn}, {hn*128}"]
    for hf2 in range(2):
        P += [f"s_lshr_b32 s{sSO}, s{sW}, 1", f"s_add_u32 s{sSO}, s{sSO}, {2*hf2}"]
        if opt['urot']: P += [f"s_add_u32 s{sSO}, s{sSO}, s{sHH}"]
        P += [f"s_and_b32 s{sSO}, s{sSO}, 3", f"s_lshl_b32 s{sSO}, s{sSO}, 1", f"s_and_b32 s{sSO2}, s{sW}, 1", f"s_add_u32 s{sSO}, s{sSO}, s{sSO2}", f"s_mul_i32 s{sWOR+hf2}, s{sSO}, {32*896}"]
    P += [f"s_mul_i32 s{sWOM}, s{sW}, 7168"]
    P += [f"s_mul_i32 s{sSO}, s{sHH}, 224", f"s_mul_i32 s{sSO2}, s{sHQ}, {1024*896}", f"s_add_u32 s{sSO}, s{sSO}, s{sSO2}", f"s_mov_b32 s{sSO2}, {(1 << 32) // 14 + 1}"]
    for i in range(7):
        P += [f"v_add_u32 v{a}, {64*i}, v1", f"v_mul_hi_u32 v{b}, v{a}, s{sSO2}", f"v_mul_u32_u24 v{c}, 14, v{b}", f"v_sub_u32 v{c}, v{a}, v{c}",
              f"v_and_b32 v{a}, 19, v{b}", f"v_bfe_u32 v{d}, v{b}, 2, 1", f"v_lshl_or_b32 v{a}, v{d}, 3, v{a}", f"v_bfe_u32 v{d}, v{b}, 3, 1", f"v_lshl_or_b32 v{a}, v{d}, 2, v{a}",
              f"v_mul_u32_u24 v{a}, 896, v{a}", f"v_lshl_add_u32 v{a}, v{c}, 4, v{a}", f"v_add_u32 v{vWO+i}, s{sSO}, v{a}"]
        if i & 3: P += [f"v_subrev_u32 v{vWO+i}, {1024*(i & 3)}, v{vWO+i}"]
    return P

def tagpub(opt):
    return [f"v_add_u32 v{vF}, 1, v{vF}", f"v_or_b32 v{vF}, 0x80000000, v{vF}",
          f"s_or_b32 s{sSO}, s2, s{sW}", f"s_cmp_lg_u32 s{sSO}, 0", "s_cbranch_scc1 Lnotag",
          f"s_mov_b32 s{sSO}, {TAG_OFF}", "s_mov_b64 exec, 1",
          XI(f"buffer_store_dword v{vF}, off, s[{sWS}:{sWS+3}], s{sSO} sc1"), XI(f"buffer_store_dword v{vF}, off, s[{sDBG}:{sDBG+3}], 0 sc1"),
          "s_mov_b64 exec, -1", "s_nop 1", "Lnotag:"]

def XI(txt):
    i = I(txt); i.kind = 'xvm'; return i

def setup3(opt):
    a, b, c, d = vFR, vFR + 1, vFR + 2, vFR + 3
    P = [f"v_bfe_u32 v{a}, v1, 2, 3", f"v_lshrrev_b32 v{b}, 5, v1", f"v_lshl_add_u32 v{a}, v{b}, 4, v{a}", f"v_mul_u32_u24 v{a}, 224, v{a}",
         f"v_and_b32 v{b}, 3, v1", f"v_lshl_add_u32 v{vTW}, v{b}, 3, v{a}", f"v_add_u32 v{vTWH}, {2*SUP}, v{vTW}",
         f"s_mul_i32 s{sT0}, s{sHH}, 4608", f"v_subrev_u32 v{vP2A}, s{sT0}, v{vPA}", f"v_subrev_u32 v{vP2B}, s{sT0}, v{vPB}"]
    P += [f"s_lshl_b32 s{sT0}, s{sP}, 9", f"s_lshl_b32 s{sT1}, s{sB}, 4", f"s_add_u32 s{sT0}, s{sT0}, s{sT1}", f"s_lshl_b32 s{sT1}, s{sHQ}, 2", f"s_add_u32 s{sT0}, s{sT0}, s{sT1}",
          f"s_lshl_b32 s{sT0}, s{sT0}, 7", f"s_add_u32 s{sT0}, s{sT0}, {FLAG1_OFF}", f"v_lshlrev_b32 v{b}, 7, v{b}", f"v_add_u32 v{vF1A}, s{sT0}, v{b}"]
    P += [f"s_lshl_b32 s{sT0}, s{sP}, 3", f"s_add_u32 s{sT0}, s{sT0}, s{sBG}", f"s_lshl_b32 s{sT0}, s{sT0}, 2", f"s_add_u32 s{sT0}, s{sT0}, s{sHH}",
          f"s_lshl_b32 s{sT0}, s{sT0}, 2", f"s_add_u32 s{sT0}, s{sT0}, s{sW}",
          ]
    g_, jj = vFR + 5, vFR + 6
    P += [f"s_mul_i32 s{sT0}, s{sT0}, 49152", f"s_add_u32 s{sT0}, s{sT0}, {PART_OFF}",
          f"s_mul_i32 s{sT1}, s{sHQ}, 3072", f"s_add_u32 s{sT1}, s{sT1}, s{sT0}",
          f"v_lshrrev_b32 v{a}, 4, v1", f"v_bfe_u32 v{g_}, v1, 2, 2", f"v_and_b32 v{jj}, 3, v1", f"v_cmp_eq_u32 vcc, s{sHQ}, v{g_}", f"v_mul_u32_u24 v{d}, 12288, v{g_}",
          f"v_lshl_add_u32 v{c}, v{a}, 2, v{jj}", f"v_lshl_add_u32 v{d}, v{c}, 4, v{d}", f"v_add_u32 v{vST}, s{sT1}, v{d}",
          f"v_mov_b32 v{b}, 0x7ff00000", f"v_cndmask_b32 v{vST}, v{vST}, v{b}, vcc",
          f"s_mul_i32 s{sT1}, s{sHQ}, 12288", f"s_add_u32 s{sT1}, s{sT1}, s{sT0}", f"v_lshlrev_b32 v{d}, 4, v1", f"v_add_u32 v{vLD}, s{sT1}, v{d}",
          f"v_add_u32 v{vLW}, s{sSTG}, v{d}",
          f"v_min_u32 v{c}, 2, v{jj}", f"v_add_u32 v{c}, s{sHQ}, v{c}", f"v_add_u32 v{c}, 1, v{c}", f"v_and_b32 v{c}, 3, v{c}", f"v_mul_u32_u24 v{c}, 3072, v{c}", f"s_add_u32 s{sT1}, s{sT1}, 2816", f"v_add_u32 v{vF2A}, s{sT1}, v{c}",
          f"s_lshl_b32 s{sT1}, s{sHQ}, 6", f"s_add_u32 s{sT1}, s{sT1}, s{sSTG}", f"v_lshlrev_b32 v{d}, 10, v{a}", f"v_lshl_add_u32 v{d}, v{g_}, 8, v{d}", f"v_lshl_add_u32 v{d}, v{jj}, 4, v{d}", f"v_add_u32 v{vLR}, s{sT1}, v{d}"]
    P += [f"s_mul_i32 s{sT0}, s{sB}, {48*1792}", f"s_mul_i32 s{sT1}, s{sP}, 896", f"s_add_u32 s{sT0}, s{sT0}, s{sT1}", f"s_mul_i32 s{sT1}, s{sHH}, 224", f"s_add_u32 s{sT0}, s{sT0}, s{sT1}",
          f"s_mul_i32 s{sT1}, s{sHQ}, {4*1792}", f"s_add_u32 s{sT0}, s{sT0}, s{sT1}", f"v_mul_u32_u24 v{c}, 1792, v{jj}", f"v_lshl_add_u32 v{c}, v{g_}, 3, v{c}", f"v_add_u32 v{c}, s{sT0}, v{c}"]
    e_ = vFR + 4
    if opt['otr']:
        P += [f"v_mul_u32_u24 v{c}, 240, v{jj}", f"v_lshl_add_u32 v{c}, v{g_}, 3, v{c}", f"v_add_u32 v{c}, s{sSTG}, v{c}"]
        for i in range(6):
            P += [f"v_lshl_add_u32 v{e_}, v{a}, 1, {8*(i//2) + (i & 1)}", f"v_mul_u32_u24 v{b}, 43, v{e_}", f"v_lshrrev_b32 v{b}, 7, v{b}", f"v_mul_u32_u24 v{d}, 3, v{b}", f"v_sub_u32 v{d}, v{e_}, v{d}",
                  f"v_mul_u32_u24 v{d}, 960, v{d}", f"v_lshl_add_u32 v{d}, v{b}, 5, v{d}", f"v_add_u32 v{vOUT+i}, v{c}, v{d}"]
            if i >= 4: P += [f"v_cmp_lt_u32 vcc, 20, v{e_}", f"v_add_u32 v{b}, 4096, v{vOUT+i}", f"v_cndmask_b32 v{vOUT+i}, v{vOUT+i}, v{b}, vcc"]
        P += [f"s_mov_b32 s{sT1}, {(1 << 32) // 14 + 1}"]
        for k in range(3):
            P += [f"v_add_u32 v{e_}, {64*k}, v1", f"v_mul_hi_u32 v{b}, v{e_}, s{sT1}", f"v_mul_u32_u24 v{c}, 14, v{b}", f"v_sub_u32 v{c}, v{e_}, v{c}",
                  f"v_mul_u32_u24 v{d}, 240, v{b}", f"v_lshl_add_u32 v{d}, v{c}, 4, v{d}", f"v_add_u32 v{vOR+k}, s{sSTG}, v{d}",
                  f"v_lshrrev_b32 v{d}, 2, v{b}", f"v_mul_u32_u24 v{d}, {12*1792}, v{d}", f"v_mul_u32_u24 v{b}, 1792, v{b}", f"v_add3_u32 v{d}, v{d}, v{b}, s{sT0}", f"v_lshl_add_u32 v{vOG+k}, v{c}, 4, v{d}"]
            if k == 2: P += [f"v_cmp_lt_u32 vcc, 39, v1", f"v_mov_b32 v{b}, 0x7ff00000", f"v_cndmask_b32 v{vOG+k}, v{vOG+k}, v{b}, vcc"]
        return P
    for i in range(6):
        P += [f"v_lshl_add_u32 v{e_}, v{a}, 1, {8*(i//2) + (i & 1)}", f"v_mul_u32_u24 v{b}, 43, v{e_}", f"v_lshrrev_b32 v{b}, 7, v{b}", f"v_mul_u32_u24 v{d}, 3, v{b}", f"v_sub_u32 v{d}, v{e_}, v{d}",
              f"v_mul_u32_u24 v{d}, {16*1792}, v{d}", f"v_lshl_add_u32 v{d}, v{b}, 5, v{d}", f"v_add_u32 v{vOUT+i}, v{c}, v{d}"]
        if i >= 4: P += [f"v_cmp_lt_u32 vcc, 20, v{e_}", f"v_mov_b32 v{b}, 0x7ff00000", f"v_cndmask_b32 v{vOUT+i}, v{vOUT+i}, v{b}, vcc"]
    return P

def SA(i):
    i.wtags = 'A'; return i
class PinW(WaitTag):
    pinned = True

class Stager:
    def __init__(self, nsl): self.nsl = nsl; self.n = 0
    def tile(self, vdma, srd_, so_ins, pol, dst0, dst1):
        n = self.n; self.n += 1
        slot = n % self.nsl
        pre = [WaitTag(f"sr{n - self.nsl}")] if n >= self.nsl else []
        iss = [pre + [f"s_add_u32 m0, s{sSTG}, {slot*2048}"] + so_ins + [I(f"buffer_load_dwordx4 v{vdma}, s[{srd_}:{srd_+3}], s{sSO2} offen{pol} lds", tag=f"sd{n}")],
               [I(f"buffer_load_dwordx4 v{vdma+1}, s[{srd_}:{srd_+3}], s{sSO2} offen offset:1024{pol} lds", tag=f"sd{n}")]]
        rd = [WaitTag(f"sd{n}"), I(f"ds_read_b128 {dst0}, v{vSR} offset:{slot*2048}", tag=f"sr{n}"), I(f"ds_read_b128 {dst1}, v{vSR+1} offset:{slot*2048}", tag=f"sr{n}")]
        return iss, rd

def g_w(s, opt):
    slot = (s % RING) * SLAB
    return [([f"s_add_u32 m0, s{sM0B}, {slot}", "s_nop 0"] if i == 0 else []) +
            [I(f"buffer_load_dwordx4 v{vW+i}, s[{sWQ}:{sWQ+3}], s{(sT0, sT1)[s] if s < 2 else sWQO+s} offen offset:{i*1024}{opt['wq_pol']} lds", tag=f"slab{s}")] for i in range(4)]
def g_wo(j, opt):
    hn, half = divmod(j, 2)
    out = []
    for i in range(7):
        pre = []
        if i in (0, 4): pre += [f"s_add_u32 m0, s{sWOM}, {(j % R2) * SUP + i * 1024}"]
        if i == 0: pre += [f"s_mul_i32 s{sWH}, s{sHB+hn}, {256*896}", f"s_add_u32 s{sWH}, s{sWH}, s{sWOR+half}"]
        if i == 4: pre += ["s_nop 0"]
        out.append(pre + [I(f"buffer_load_dwordx4 v{vWO+i}, s[{sWO}:{sWO+3}], s{sWH} offen offset:{(i & 3)*1024}{opt['wo_pol']} lds", tag=f"sup{j}")])
    return out
def g_p(hn, opt):
    out = []
    o = (hn & 1) * 6
    for mt in range(3):
        pre = [f"s_mul_i32 s{sSO}, s{sHB+hn}, 4608"] if mt == 0 else []
        out.append(pre + [f"buffer_load_dwordx4 {A(aP + mt*12 + o, 4)}, v{vP2A}, s[{sWS}:{sWS+3}], s{sSO} offen offset:{mt*1536} sc1"])
        out.append([f"buffer_load_dwordx2 {A(aP + mt*12 + o + 4, 2)}, v{vP2B}, s[{sWS}:{sWS+3}], s{sSO} offen offset:{mt*1536} sc1"])
    return out

def tr_reads(T):
    ks, t = divmod(T, 16)
    sp, tau = divmod(t, 2)
    ap, bp = divmod(sp, 4)
    slot = ks % RING
    base = (vTR if slot < 4 else vTRH) + bp * 2 + tau
    off = (slot % 4) * SLAB + ap * 256
    d = vFR + (T % NS) * 4
    return [I(f"ds_read_b64_tr_b16 {V(d, 2)}, v{base} offset:{off}", tag=f"ta{T}"), I(f"ds_read_b64_tr_b16 {V(d+2, 2)}, v{base} offset:{off + 2048}", tag=f"ta{T}")]
NMAJ = [0]
def wo_reads(F):
    sig, nt = divmod(F, 7)
    if NMAJ[0] and F >= 196: nt, sig = divmod(F - 196, 4); sig += 28
    j, sl = divmod(sig, 4)
    ss = j % R2
    base = vTW if ss < 2 else vTWH
    off = (ss % 2) * SUP + sl * 7168 + nt * 32
    d = vFR + (F % NS) * 4
    return [I(f"ds_read_b64_tr_b16 {V(d, 2)}, v{base} offset:{off}", tag=f"tb{F}"), I(f"ds_read_b64_tr_b16 {V(d+2, 2)}, v{base} offset:{off + 1792}", tag=f"tb{F}")]

def softmax_block(sacc, m, t, pk):
    sv = lambda mt: [sacc(kt, mt) + r for kt in range(3) for r in range(4)]
    Q = []
    for mt in range(3):
        x = sv(mt)
        Q.append(f"v_max3_f32 v{m[mt]}, v{x[0]}, v{x[1]}, v{x[2]}")
    for j in range(4):
        for mt in range(3):
            x = sv(mt); Q.append(f"v_max3_f32 v{m[mt]}, v{m[mt]}, v{x[3+2*j]}, v{x[4+2*j]}")
    for mt in range(3): Q.append(f"v_max_f32 v{m[mt]}, v{m[mt]}, v{sv(mt)[11]}")
    def xred(op):
        o = []
        for pl in ('v_permlane32_swap_b32', 'v_permlane16_swap_b32'):
            o += [f"v_mov_b32 v{t[mt]}, v{m[mt]}" for mt in range(3)]
            o += [f"{pl} v{m[mt]}, v{t[mt]}" for mt in range(3)]
            o += [f"{op} v{m[mt]}, v{m[mt]}, v{t[mt]}" for mt in range(3)]
        return o
    Q += xred('v_max_f32')
    Q += [f"v_mul_f32 v{m[mt]}, s{sSC}, v{m[mt]}" for mt in range(3)]
    for j in range(12):
        Q += [f"v_fma_f32 v{sv(mt)[j]}, v{sv(mt)[j]}, s{sSC}, -v{m[mt]}" for mt in range(3)]
        Q += [f"v_exp_f32 v{sv(mt)[j]}, v{sv(mt)[j]}" for mt in range(3)]
    Q += [f"v_add_f32 v{m[mt]}, v{sv(mt)[0]}, v{sv(mt)[1]}" for mt in range(3)]
    for j in range(2, 12):
        Q += [f"v_add_f32 v{m[mt]}, v{m[mt]}, v{sv(mt)[j]}" for mt in range(3)]
    Q += xred('v_add_f32')
    Q += [f"v_rcp_f32 v{m[mt]}, v{m[mt]}" for mt in range(3)]
    for mt in range(3):
        x = sv(mt)
        for j in range(12): Q.append(f"v_mul_f32 v{x[j]}, v{x[j]}, v{m[mt]}")
        for j in range(6): Q.append(f"v_cvt_pk_bf16_f32 v{pk + mt*6 + j}, v{x[2*j]}, v{x[2*j+1]}")
        Q.append(I(f"buffer_store_dwordx4 {V(pk + mt*6, 4)}, v{vPA}, s[{sWS}:{sWS+3}], 0 offen offset:{mt*1536} sc1", tag="pst"))
        Q.append(I(f"buffer_store_dwordx2 {V(pk + mt*6 + 4, 2)}, v{vPB}, s[{sWS}:{sWS+3}], 0 offen offset:{mt*1536} sc1", tag="pst"))
    return Q

def spin(label, load, cmp_, load2=None, cmp2=None):
    if load2 is not None:
        chk = lambda c: [c, "s_nop 4", "s_cmp_eq_u64 vcc, 0", f"s_cbranch_scc1 {label}_r"]
        return [f"{label}:", f"s_mov_b32 s{sCNT}, 0x40000", "s_waitcnt vmcnt(0)", load, "s_sleep 4", f"{label}_l:", load2, "s_waitcnt vmcnt(1)"] + chk(cmp_) + [load, "s_waitcnt vmcnt(1)"] + chk(cmp2) + [
                f"s_sub_u32 s{sCNT}, s{sCNT}, 1", f"s_cmp_lg_u32 s{sCNT}, 0", f"s_cbranch_scc1 {label}_l", f"s_branch {label}_r"]
    return [f"{label}:", f"s_mov_b32 s{sCNT}, 0x40000", f"{label}_l:", "s_sleep 2", load, "s_waitcnt vmcnt(0)", cmp_, "s_nop 4", "s_cmp_eq_u64 vcc, 0", f"s_cbranch_scc1 {label}_r",
            f"s_sub_u32 s{sCNT}, s{sCNT}, 1", f"s_cmp_lg_u32 s{sCNT}, 0", f"s_cbranch_scc1 {label}_l", f"s_branch {label}_r"]

def build_body(opt):
    st = opt['st']; st.n = 0
    sg = Stager(6)
    P = prologue(opt)
    if opt.get('fake') == 2: P += [f'v_lshlrev_b32 v{vXD}, 4, v0']
    tl = Timeline()
    LA = opt['LA']
    for ks in range(14):
        for t in range(16):
            T = ks * 16 + t
            af = vFR + (T % NS) * 4
            for mt in range(3):
                c = '0' if ks == 0 else V(acc(t, mt), 4)
                idx = tl.add(f"v_mfma_f32_16x16x32_bf16 {V(acc(t, mt), 4)}, {V(af, 4)}, {A(xreg(ks, mt), 4)}, {c}")
                if mt < 2 and T + LA < 224: tl.at(idx, SA(tr_reads(T + LA)[mt]))
                if opt['pw'] and mt == 2 and T % 2 == 1 and T + 2 < 224: tl.at(idx, PinW(f"ta{T+2}"))
        pre = ([WaitTag(f"slab{ks+1}")] if ks < 13 else []) + ["s_barrier"]
        if ks == 0:
            if opt['b0']:
                tl.at(26, *pre); pre = [WaitTag("slab0"), "s_barrier"]
            pre += (st() if 0 in opt['stk'] else []) + flat([tr_reads(T) for T in range(LA)])
        tl.at(ks * 48 - 1, *pre)
    b13 = 13 * 48
    cv = []
    for sp in range(8):
        for mt in range(3):
            t0, t1 = acc(2 * sp, mt), acc(2 * sp + 1, mt)
            cv += [f"v_cvt_pk_bf16_f32 v{t0}, v{t0}, v{t0+1}", f"v_cvt_pk_bf16_f32 v{t0+1}, v{t0+2}, v{t0+3}",
                   f"v_cvt_pk_bf16_f32 v{t0+2}, v{t1}, v{t1+1}", f"v_cvt_pk_bf16_f32 v{t0+3}, v{t1+2}, v{t1+3}"]
        sw = [f"s_mov_b64 exec, s[{sODD}:{sODD+1}]"]
        for mt in range(3):
            t0 = acc(2 * sp, mt)
            sw += [f"v_swap_b32 v{t0}, v{t0+2}", f"v_swap_b32 v{t0+1}, v{t0+3}"]
        sw.append("s_mov_b64 exec, -1")
        cv.append(sw)
    pos = b13 + 10; cnt = 0
    for c in cv:
        if isinstance(c, list): tl.at(pos, *c); pos += 3; cnt = 0
        else:
            tl.at(pos, c); cnt += 1
            if cnt == 2: cnt = 0; pos += 1
    sacc = lambda kt, mt: acc(2 * kt + 1, mt)
    for sp in range(8):
        for mt in range(3):
            for kt in range(3):
                c = '0' if sp == 0 else V(sacc(kt, mt), 4)
                tl.add(f"v_mfma_f32_16x16x32_bf16 {V(sacc(kt, mt), 4)}, {A(kreg(sp, kt), 4)}, {V(acc(2*sp, mt), 4)}, {c}")
    if 1 in opt['stk']: tl.at(b13 + 47, *st())
    s3 = setup3(opt)
    p0 = pos + 1
    for q in range(0, len(s3), 3): tl.at(min(p0 + q // 3, 743), *s3[q:q+3])
    tl.at(70, Atomic(tagpub(opt)))
    tagld = f"buffer_load_dword v{vF}, off, s[{sDBG}:{sDBG+3}], 0 sc1"
    tl.at(640, tagld)
    f0 = acc(7, 0)
    sm = softmax_block(sacc, [f0, f0 + 1, f0 + 2], [f0 + 3, f0 + 4, f0 + 5], 154)
    sm_start = len(tl.main)
    nex = opt['smx']
    for q in range(0, nex, 4):
        idx = tl.add(sm[q]); tl.at(idx, *sm[q+1:min(q+4, nex)])
    for _ in range(opt['gap']): tl.add(None)
    s2s = len(tl.main)
    sm_end = s2s
    for q in range(nex, len(sm), opt['smw']):
        tl.at(sm_end, *sm[q:q+opt['smw']]); sm_end += 1
    sm_end = max(sm_end, s2s - opt['gap'])
    oline = []
    tagchk = [f"v_cmp_eq_u32 vcc, 0, v{vF}", "s_cmp_eq_u64 vcc, 0", "s_cbranch_scc0 Ltag", "Ltag_r:", f"v_readfirstlane_b32 s{sTAG}, v{vF}"]
    oline += spin("Ltag", tagld, f"v_cmp_eq_u32 vcc, 0, v{vF}")
    tl.at(sm_start - 1, *tagchk)
    kstart = {}
    oinit = set()
    NMAJ[0] = opt['nmaj']; pudone = {}
    def pu(us, nts=range(7)):
        for nt in nts:
            for u in us:
                ub = vUB + nt * 12 + u * 4
                for mt in range(3):
                    c = A(oacc(nt, mt), 4) if (nt, mt) in oinit else '0'
                    oinit.add((nt, mt))
                    pudone[nt] = tl.add(f"v_mfma_f32_16x16x32_bf16 {A(oacc(nt, mt), 4)}, {V(ub, 4)}, {A(aP + mt*12 + u*4, 4)}, {c}")
    pustart = {}; kend = {}; vuse = {}
    def utile(sig, nt, F):
        hn, s = divmod(sig, 8)
        bf = vFR + (F % NS) * 4
        for kt in range(3):
            c = '0' if s == 0 else V(uacc(kt, nt), 4)
            idx = tl.add(f"v_mfma_f32_16x16x32_bf16 {V(uacc(kt, nt), 4)}, @V@, {V(bf, 4)}, {c}"); vuse.setdefault((sig, kt), []).append(idx)
            if kt < 2 and F + LA < 224: tl.at(idx, SA(wo_reads(F + LA)[kt]))
            if opt['pw'] and kt == 2 and F % 2 == 1 and F + 2 < 224: tl.at(idx, PinW(f"tb{F+2}"))
        if s == 7:
            ub = vUB + nt * 12 + (hn % 2) * 6
            for kt in range(3):
                u = uacc(kt, nt)
                tl.at(idx + 4 + kt, f"v_cvt_pk_bf16_f32 v{ub+2*kt}, v{u}, v{u+1}", f"v_cvt_pk_bf16_f32 v{ub+2*kt+1}, v{u+2}, v{u+3}")
    for hn in range(4):
        for s in range(8):
            sig = hn * 8 + s
            if sig == opt['pu0']:
                pustart[1] = len(tl.main); pu([0, 1, 2]); puend0 = len(tl.main)
            kstart[sig] = len(tl.main) if not (opt['nmaj'] and sig > 28) else kstart[28]
            if opt['nmaj'] and sig == 28:
                for nt in range(7):
                    for s_ in range(4): utile(28 + s_, nt, 196 + nt * 4 + s_)
                    if nt == 1: pustart[3] = len(tl.main)
                    if nt >= 1: pu([0, 1, 2], [nt - 1])
                pu([0, 1, 2], [6])
            elif not (opt['nmaj'] and sig > 28):
                for nt in range(7): utile(sig, nt, sig * 7 + nt)
        if hn != 1 and not (hn == 3 and opt['nmaj']): pustart[hn] = len(tl.main)
        if hn == 3 and not opt['nmaj']: pu([0, 1, 2])
    kstart[32] = len(tl.main)
    PK, TMP = 172, 216
    CS, R11 = 18, 20
    tl.at(pustart[3], f"v_mov_b32 v{R11}, s{sTAG}", f"v_mov_b32 v{R11+1}, 0", f"v_mov_b32 v{R11+2}, 0", f"s_mul_i32 s{sT0}, s{sTAG}, -15", f"s_mov_b32 s{sODD}, 0x1111", f"s_mov_b32 s{sODD+1}, 0")
    for nt in range(7):
        seq = []
        for mt in range(3):
            tile = nt * 3 + mt
            t4 = vUB + nt * 12 + mt * 4
            seq += [f"v_accvgpr_read_b32 v{t4+r}, a{oacc(nt, mt)+r}" for r in range(4)]
            seq += [f"v_cvt_pk_bf16_f32 v{PK+2*tile}, v{t4}, v{t4+1}", f"v_cvt_pk_bf16_f32 v{PK+2*tile+1}, v{t4+2}, v{t4+3}"]
            if tile % 2 == 1 or tile == 20:
                pr = tile // 2
                c0 = f"v{CS}" if pr else "0"
                seq += [f"v_add3_u32 v{CS}, v{PK+4*pr}, v{PK+4*pr+1}, {c0}", f"v_add3_u32 v{CS}, v{PK+4*pr+2}, v{PK+4*pr+3}, v{CS}"]
                seq += [I(f"buffer_store_dwordx4 {V(PK+4*pr, 4)}, v{vST}, s[{sWS}:{sWS+3}], 0 offen offset:{pr*256} sc1", tag="part"),
                        I(f"ds_write_b128 v{vLW}, {V(PK+4*pr, 4)} offset:{pr*1024}", tag="ownw")]
        p0_ = pudone[nt] + 3
        w_ = 2 if opt['nmaj'] else 3
        for q in range(0, len(seq), w_): tl.at(p0_ + q // w_, *seq[q:q+w_])
    for j in range(7):
        base = kstart[4 * j]
        if j == 0: pre = [WaitTag("sup0", "sup1"), "s_barrier"] + (st() if 2 in opt['stk'] else []) + flat([wo_reads(F) for F in range(LA)])
        else: pre = [WaitTag(f"sup{j+1}"), "s_barrier"]
        tl.at(base - 1, *pre)
    tl.at(sm_end + opt['pubd'], WaitTag("pst"), f"v_mov_b32 v{vF}, s{sTAG}", f"s_lshl_b32 s{sT0}, s{sHH}, 7", "s_mov_b64 exec, 1",
          f"buffer_store_dword v{vF}, v{vF1A}, s[{sWS}:{sWS+3}], s{sT0} offen sc1", "s_mov_b64 exec, -1")
    pace = {'m': opt['mp'], 'h': opt['hp']}; lag = {'m': opt['ml'], 'h': opt['hl']}
    cur = opt['start']; rdpos = []; rep = []
    f1ld = f"buffer_load_dword v{vF}, v{vF1A}, s[{sWS}:{sWS+3}], 0 offen sc1"
    f1cmp = f"v_cmp_ne_u32 vcc, s{sTAG}, v{vF}"
    posl = []
    INF = 10**9
    p0min = s2s + opt['p0at']
    pool = {}
    for r in range(8, 132, 4): pool[r] = (48 * (r // 12 + 1), INF)
    if opt['pools']:
        for r in range(132, 168, 4): pool[r] = (48 * (r // 12 + 1), p0min)
        for r in range(168, 252, 4): pool[r] = (672 + 9 * (((r - 168) // 4) // 3 + 1), pustart[1])
        for r in (0, 4): pool[r] = (744, INF)
        pool[252] = (744, INF)
    base_pol = {k: opt[k] for k in ('wq_pol', 'x_pol', 'v_pol', 'wo_pol')}
    for n_, (kind, idx, cls) in enumerate(opt['sched']):
        posl.append(f'{kind}{idx}@{cur}')
        for k_ in base_pol: opt[k_] = ' nt' if (cls == 'm' and k_[0] in opt.get('mnt', '') or (k_ == 'wo_pol' and cls == 'm' and 'o' in opt.get('mnt', ''))) and not (k_ == 'wo_pol' and 'o' not in opt.get('mnt', '')) else base_pol[k_]
        if kind == 'W':
            if idx >= RING: cur = max(cur, 48 * (idx - RING + 1))
            for it in g_w(idx, opt): tl.at(cur, *it); cur += pace[cls]
            rep.append(f"W{idx}:{48*max(idx-1,0) - 1 - (cur - pace[cls])}")
            assert 48*max(idx-1,0) - 1 - (cur - pace[cls]) > 0, rep[-1]
        elif kind == 'O':
            e = {0: 48 * 9, 1: 48 * 11, 2: 48 * 13}.get(idx)
            if e is None: e = kstart[4 * (idx - 3)]
            cur = max(cur, e)
            for it in g_wo(idx, opt): tl.at(cur, *it); cur += pace[cls]
            rep.append(f"O{idx}:{kstart[4*max(idx-1,0)] - 1 - (cur - pace[cls])}")
            assert kstart[4*max(idx-1,0)] - 1 - (cur - pace[cls]) > 0, rep[-1]
        elif kind == 'Y':
            pace['m'], pace['h'] = divmod(idx, 10)
        elif kind == 'Z':
            cur = max(cur, s2s + idx - 100)
        elif kind == 'F':
            cur = max(cur, idx + s2s)
            tl.at(cur, f1ld); cur += lag['h']
            tl.at(cur, f1cmp, "s_cmp_eq_u64 vcc, 0", "s_cbranch_scc0 Lf1", "Lf1_r:")
            oline += spin("Lf1", f1ld, f1cmp)
        elif kind == 'P':
            if idx >= 2: cur = max(cur, puend0)
            if idx == 0: assert cur >= p0min, (cur, p0min)
            for it in g_p(idx, opt): tl.at(cur, *it); cur += pace[cls]
            rep.append(f"P{idx}:{pustart[1 if idx < 2 else 3] - cur}")
            assert pustart[1 if idx < 2 else 3] - cur > 8, rep[-1]
        else:
            kind0, idx0 = kind, idx
            for q in range(4 if kind0 in 'LU' else 3):
                if kind0 == 'L': kind, idx, q = 'K', q, idx0
                if kind0 == 'U': kind, idx, q = 'V', (idx0 // 3) * 4 + q, idx0 % 3
                if kind == 'X':
                    iss, rd = sg.tile(vXD, sX, [f"s_add_u32 s{sSO2}, s{sXO+idx}, {q*14336}" if idx else f"s_mov_b32 s{sSO2}, {q*14336}"], opt['x_pol'], A(xreg(2*idx, q), 4), A(xreg(2*idx+1, q), 4))
                    dl = 96 * idx - 6; er = -9999
                elif kind == 'K':
                    iss, rd = sg.tile(vKD, sK, [f"s_mov_b32 s{sSO2}, {q*8192 + idx*128}"], opt['k_pol'], A(kreg(2*idx, q), 4), A(kreg(2*idx+1, q), 4))
                    dl = 672 + 18 * idx - 6; er = 48 if (idx == 3 and q >= 1) else -9999
                else:
                    hn, j = divmod(idx, 4)
                    so = ([f"s_mul_i32 s{sVH}, s{sHB+hn}, 24576", f"s_add_u32 s{sVH}, s{sVH}, s{sVU+j}"] if (q == 0 or kind0 == 'U') else []) + [f"s_add_u32 s{sSO2}, s{sVH}, {q*8192}"]
                    dl = kstart[2 * idx] - 6
                    er = -9999; dst = []
                    for e in range(2):
                        last_use = vuse[(2 * idx + e, q)][-1] + 1
                        cand = [r for r in pool if pool[r][1] >= last_use]
                        want = cur + lag[cls]
                        rdy = [r for r in cand if pool[r][0] <= want]
                        r = min(rdy, key=lambda r: (pool[r][1], pool[r][0])) if rdy else min(cand, key=lambda r: pool[r][0])
                        er = max(er, pool[r][0]); pool[r] = (last_use, pool[r][1]); dst.append(r)
                        for i_ in vuse[(2 * idx + e, q)]: tl.main[i_] = tl.main[i_].replace('@V@', A(r, 4))
                    iss, rd = sg.tile(vVD, sV, so, opt['v_pol'], A(dst[0], 4), A(dst[1], 4))
                n = len(rdpos)
                if n >= sg.nsl: cur = max(cur, rdpos[n - sg.nsl] + 4)
                cur = max(cur, er - lag[cls])
                tl.at(cur, *iss[0]); tl.at(cur, *iss[1]); last = cur; cur += 2 * pace[cls]
                rp = max(min(last + pace[cls] + lag[cls], dl), er, last)
                if rdpos: rp = max(rp, rdpos[-1])
                if rp == -1: rp = -2
                if rp > dl and dl >= 0: print("LATE", kind, idx, q, rp, dl)
                assert rp <= dl + 5 or dl < 0, (kind, idx, rp, dl)
                tl.at(rp, *rd); rdpos.append(rp)
                rep.append(f"{kind}{idx}.{q}:{rp - last}")
        if n_ == 2: tl.at(cur - 1, *setup1(opt))
        if n_ == opt['s2at']: assert cur - 1 < -2; tl.at(cur - 1, *setup2(opt))
    for sp_ in opt.get('stp', ()): tl.at(sp_, *st())
    if opt.get('verbose') == 2: print(' '.join(posl))
    if opt.get('verbose') == 1: print(" ".join(rep), "end", cur, "s2s", s2s, "total", len(tl.main))
    if opt['smooth']: print('overflow slots', smooth(tl))
    body = tl.flat()
    if opt.get('strip') == 1:
        txt = lambda x: x if isinstance(x, str) else getattr(x, 'txt', '')
        body = [x for x in body if not (txt(x).startswith('v_mfma') or txt(x).startswith('ds_read_b64_tr') or txt(x).startswith('v_cvt') or txt(x).startswith('v_exp') or txt(x).startswith('v_swap'))]
    if opt.get('fake'):
        import re as _re
        nb = []
        for x in body:
            t = x if isinstance(x, str) else getattr(x, 'txt', '')
            if t.startswith('buffer_load_dwordx4') and ' lds' in t:
                t2 = _re.sub(r'buffer_load_dwordx4 v\d+, (s\[\d+:\d+\]), s\d+', (r'buffer_load_dwordx4 v0, \1, 0' if opt['fake'] == 1 else r'buffer_load_dwordx4 v%d, \1, 0' % vXD), t).replace(' nt', '')
                y = I(t2); y.tag = x.tag; nb.append(y)
            else: nb.append(x)
        body = nb
    if opt.get('notr'):
        nb = []; cnt_ = 0
        for x in body:
            t = x if isinstance(x, str) else getattr(x, 'txt', '')
            if t.startswith('ds_read_b64_tr'):
                cnt_ += 1
                if cnt_ > 12 and (opt['notr'] == 1 or (cnt_ // 2) % 2):
                    y = I("s_nop 0"); y.tag = x.tag; nb.append(y); continue
            nb.append(x)
        body = nb
    if opt.get('drop'):
        srds = {'x': sX, 'w': sWQ, 'k': sK, 'v': sV, 'o': sWO}
        pats = [f"s[{srds[c]}:{srds[c]+3}]" for c in opt['drop'] if c in srds]
        nb = []
        for x in body:
            t = x if isinstance(x, str) else getattr(x, 'txt', '')
            if t.startswith('buffer_load_dwordx4') and ' lds' in t and any(p_ in t for p_ in pats):
                y = I("s_nop 0"); y.tag = x.tag; nb.append(y)
            else: nb.append(x)
        body = nb
    if opt.get('strip') == 2:
        nb = []
        for x in body:
            t = x if isinstance(x, str) else getattr(x, 'txt', '')
            if t.startswith('buffer_load_dwordx4') and ' lds' in t:
                y = I("s_nop 0"); y.tag = x.tag; nb.append(y)
            else: nb.append(x)
        body = nb
    P += body + (st() if 3 in opt['stk'] else [])
    f2ld = f"buffer_load_dword v{vF}, v{vF2A}, s[{sWS}:{sWS+3}], 0 offen sc1"
    t_ = CS + 1
    P += [f"v_add_u32_dpp v{CS}, v{CS}, v{CS} quad_perm:[1,0,3,2] row_mask:0xf bank_mask:0xf", f"v_add_u32_dpp v{CS}, v{CS}, v{CS} quad_perm:[2,3,0,1] row_mask:0xf bank_mask:0xf"]
    for pl in ('v_permlane32_swap_b32', 'v_permlane16_swap_b32'):
        P += [f"v_mov_b32 v{t_}, v{CS}", f"{pl} v{CS}, v{t_}", f"v_add_u32 v{CS}, v{CS}, v{t_}"]
    P += [f"v_sub_u32 v{CS}, s{sT0}, v{CS}", f"v_cndmask_b32 v{R11+3}, 0, v{CS}, s[{sODD}:{sODD+1}]",
          f"buffer_store_dwordx4 {V(R11, 4)}, v{vST}, s[{sWS}:{sWS+3}], 0 offen offset:2816 sc1", f2ld]
    OWN, ACC, RX = 216, 228, 64
    P += [WaitTag("ownw")] + [f"ds_read_b128 {V(OWN + 4*i, 4)}, v{vLR} offset:{i*4096}" for i in range(3)]
    for k in range(3): P += [f"s_add_u32 s{sHB+k}, s{sHQ}, {k+1}", f"s_and_b32 s{sHB+k}, s{sHB+k}, 3", f"s_mul_i32 s{sHB+k}, s{sHB+k}, 3072"]
    P += [f"s_mov_b32 s{sVU}, 0x3f80", f"s_mov_b32 s{sVU+1}, 0x3f800000", f"s_mul_i32 s{sVU+2}, s{sTAG}, 3", f"s_mov_b32 s{sVU+3}, 64"]
    NP = opt['npoll']
    pr_ = [vF] + [24 + q for q in range(NP - 1)]
    for q in range(1, NP): P += [f"s_sleep {opt['psl']}", f2ld.replace(f"v{vF},", f"v{pr_[q]},")]
    for q in range(NP - 1): P += [f1cmp.replace(f"v{vF}", f"v{pr_[q]}"), "s_cmp_eq_u64 vcc, 0", "s_cbranch_scc1 Lf2_r"]
    P += [f1cmp.replace(f"v{vF}", f"v{pr_[-1]}"), "s_cmp_eq_u64 vcc, 0", "s_cbranch_scc0 Lf2", "Lf2_r:"]
    oline += spin("Lf2", f2ld, f1cmp, f2ld.replace(f"v{vF},", f"v{vF1A},"), f1cmp.replace(f"v{vF}", f"v{vF1A}"))
    P += (st() if 4 in opt['stk'] else [])
    P += ["Lrt:"]
    for i in range(3):
        for k in range(3):
            P += [f"buffer_load_dwordx4 {V(RX + (i*3+k)*4, 4)}, v{vLD}, s[{sWS}:{sWS+3}], s{sHB+k} offen offset:{i*1024} sc1"]
    for r in range(12): P += [f"v_lshlrev_b32 v{ACC+2*r}, 16, v{OWN+r}", f"v_and_b32 v{ACC+2*r+1}, 0xffff0000, v{OWN+r}"]
    OB = 100
    for i in range(3):
        for k in range(3):
            for r in range(4):
                x = RX + (i*3+k)*4 + r
                P += [f"v_dot2c_f32_bf16 v{ACC+8*i+2*r}, s{sVU}, v{x}", f"v_dot2c_f32_bf16 v{ACC+8*i+2*r+1}, s{sVU+1}, v{x}"]
        for r in range(4): P += [f"v_cvt_pk_bf16_f32 v{OB+4*i+r}, v{ACC+8*i+2*r}, v{ACC+8*i+2*r+1}"]
        for e in range(2): P += [f"buffer_store_dwordx2 {V(OB+4*i+2*e, 2)}, v{vOUT+2*i+e}, s[{sOUT}:{sOUT+3}], 0 offen{opt['out_pol']}"]
    P += [f"v_add3_u32 v{CS}, v{RX}, v{RX+1}, 0"] + [f"v_add3_u32 v{CS}, v{RX+2*q}, v{RX+2*q+1}, v{CS}" for q in range(1, 18)]
    P += [f"v_add_u32_dpp v{CS}, v{CS}, v{CS} quad_perm:[1,0,3,2] row_mask:0xf bank_mask:0xf", f"v_add_u32_dpp v{CS}, v{CS}, v{CS} quad_perm:[2,3,0,1] row_mask:0xf bank_mask:0xf",
          f"v_add_u32_dpp v{CS}, v{CS}, v{CS} row_half_mirror row_mask:0xf bank_mask:0xf", f"v_add_u32_dpp v{CS}, v{CS}, v{CS} row_mirror row_mask:0xf bank_mask:0xf"]
    for pl in ('v_permlane32_swap_b32', 'v_permlane16_swap_b32'):
        P += [f"v_mov_b32 v{t_}, v{CS}", f"{pl} v{CS}, v{t_}", f"v_add_u32 v{CS}, v{CS}, v{t_}"]
    P += [f"v_cmp_ne_u32 vcc, s{sVU+2}, v{CS}", "s_cmp_eq_u64 vcc, 0", "s_cbranch_scc0 Lretry", "Lretry_r:"]
    oline += ["Lretry:", "s_waitcnt vmcnt(0)", f"s_sub_u32 s{sVU+3}, s{sVU+3}, 1", f"s_cmp_eq_u32 s{sVU+3}, 0", "s_cbranch_scc1 Lretry_r", "s_sleep 8", "s_branch Lrt"]
    P += (st() if 5 in opt['stk'] else []) + st.dump() + ["Lend:", "s_endpgm"]
    lines, stats = finalize(P, quiet=bool(opt.get('strip')))
    print(stats, len(lines))
    lines += oline + ['Lcodeend:']
    return lines

def build(opt):
    import re as _re
    scheds = opt['sched']
    nvar = len(scheds)
    lines = []
    if nvar > 1:
        sh, w = opt['vsel']
        lines += ["s_cmp_ge_u32 s2, 256", "s_cbranch_scc0 Lgo", "s_endpgm", "Lgo:", f"s_bfe_u32 s3, s2, {hex((w << 16) | sh)}"]
        for v in range(1, nvar):
            lines += [f"s_cmp_eq_u32 s3, {v}", f"s_cbranch_scc0 Lsk{v}", f"s_getpc_b64 s[4:5]", f"Lpc{v}:", f"s_add_u32 s4, s4, Lvar{v}-Lpc{v}", "s_addc_u32 s5, s5, 0", "s_setpc_b64 s[4:5]", f"Lsk{v}:"]
    for v in range(nvar):
        o = dict(opt); o['sched'] = scheds[v]
        if v and opt.get('drop1'): o['drop'] = opt['drop1']
        body = build_body(o)
        if nvar > 1:
            body = [_re.sub(r'\b(L(?:end|notag|tag|f1|f2|pcf|codeend|rt|retry)(?:_[lr])?)\b', lambda m: m.group(1) + f"_v{v}", l) for l in body]
            lines += [".p2align 6", f"Lvar{v}:"] if v else []
        lines += body
    hdr = open('concat_heads__mha_block_cached__gqa_block_cached__near_ridge.s.ref').read().split('; Override')[0]
    txt = hdr + "; @launch grid=(256,1,1) block=(256,1,1) lds=163840\n" + '.amdgcn_target "amdgcn-amd-amdhsa--gfx950"\n.text\n'
    txt += f".globl {NAME}\n.p2align 8\n.type {NAME},@function\n{NAME}:\n" + "\n".join("  " + l if not l.endswith(':') else l for l in lines) + "\n"
    txt += (f'.section .rodata,"a"\n.p2align 6\n.amdhsa_kernel {NAME}\n  .amdhsa_next_free_vgpr 512\n  .amdhsa_next_free_sgpr 102\n  .amdhsa_accum_offset 256\n'
            "  .amdhsa_group_segment_fixed_size 0\n  .amdhsa_kernarg_size 104\n  .amdhsa_user_sgpr_count 2\n  .amdhsa_user_sgpr_kernarg_segment_ptr 1\n"
            "  .amdhsa_system_sgpr_workgroup_id_x 1\n.end_amdhsa_kernel\n")
    return txt

def parse_sched(s):
    out = []
    for t in s.split():
        k, rest = t[0], t[1:]
        cls = 'h'
        if rest.endswith('m'): cls = 'm'; rest = rest[:-1]
        out.append((k, int(rest), cls))
    return out
SCHED = ("X0m W0m W1m X1m W2m W3m X2m W4m W5m W6 X3 W7 W8 X4 W9 W10 X5 W11 X6 W12 W13 K0m K1m K2m K3m V0m O0m O1m V4m V1 V2 V3 O2m "
         "O3m V5 V6 F60 V7 P0 P1 V8m O4 V9 O5 V10 V11 V12m O6 P2 P3 V13 O7 V14 V15")

if __name__ == "__main__":
    opt = dict(wq_pol='', x_pol='', k_pol=' nt', v_pol='', wo_pol='', rot=1, nlock=2, hrot=1, urot=1, st=Stamps(False), stk=(0, 1, 2, 4, 5), mp=7, hp=3, ml=80, hl=36, gap=80, nmaj=1, npoll=1, psl=4, LA=4, otr=0, b0=1, out_pol='', pw=1, smooth=1, smx=0, smw=2, pu0=23, p0at=370, pools=1,
               start=-160, verbose=1, s2at=3, pubd=30, sched=SCHED)
    for kv in sys.argv[2:]:
        k, v = kv.split('=')
        if k == 'st': opt['st'] = Stamps(True); opt['stk'] = tuple(int(x) for x in v.split(','))
        elif k == 'stp': opt['st'] = Stamps(True); opt['stk'] = (); opt['stp'] = tuple(int(x) for x in v.split(','))
        elif k in ('sched', 'mnt', 'drop', 'drop1'): opt[k] = v
        else: opt[k] = ((' ' + v) if v else '') if k.endswith('pol') else int(v)
    if opt.get('rt'): opt['st'].rt = opt['rt']
    opt['st'].dbg = opt.get('dbg', 0)
    opt['sched'] = [parse_sched(x) for x in opt['sched'].split('|')]
    opt['vsel'] = (opt.get('vsh', 3), 1 if len(opt['sched']) == 2 else 2)
    open(sys.argv[1], "w").write(build(opt))
```
